```python
import torch

def _softmax(x, axis=-1):
    return torch.softmax(x, dim=axis)
def _gelu(x):
    return torch.nn.functional.gelu(x, approximate="tanh")
def _silu(x):
    return torch.nn.functional.silu(x)
def _sigmoid(x):
    return torch.sigmoid(x)
def _layernorm(x, axis=-1, eps=1e-5):
    m = x.mean(dim=axis, keepdim=True)
    v = x.var(dim=axis, keepdim=True, unbiased=False)
    return (x - m) / torch.sqrt(v + eps)
def _scatter_add(tgt, idx, src, axis=0):
    return tgt.clone().index_add_(axis, idx, src)
def _segment_sum(src, seg, n):
    out = torch.zeros((n,) + src.shape[1:], dtype=src.dtype)
    return out.index_add_(0, seg, src)
def _pad(x, pw):
    flat = tuple(v for pair in reversed(pw) for v in pair)
    return torch.nn.functional.pad(x, flat)

kernel_name = 'interleave_layers__sliding_local_dilated__moe_arch_mod__prompt'

def setup_inputs():

    _w = (lambda a: (lambda t: t.to(torch.bfloat16) if t.is_floating_point() else t)(torch.as_tensor(a)))
    def _A_setup():
        B, S, D = 1, 2048, 512
        return {
            "x": _w((lambda *s: torch.randn(*s, dtype=torch.bfloat16) * 0.05)(B, S, D)),
            "wqkv": _w((lambda *s: torch.randn(*s, dtype=torch.bfloat16) * 0.05)(D, 3 * D)),
            "wo": _w((lambda *s: torch.randn(*s, dtype=torch.bfloat16) * 0.05)(D, D)),
        }
    _A_in = _A_setup()

    def _B_setup():
        B, S, D, F, C = 1, 2048, 512, 1376, 1
        return {
            "x": _w((lambda *s: torch.randn(*s, dtype=torch.bfloat16) * 0.05)(B, S, D)),
            "w_r": _w((lambda *s: torch.randn(*s, dtype=torch.bfloat16) * 0.05)(D)),
            "w_gate": _w((lambda *s: torch.randn(*s, dtype=torch.bfloat16) * 0.05)(D, F)),
            "w_up": _w((lambda *s: torch.randn(*s, dtype=torch.bfloat16) * 0.05)(D, F)),
            "w_down": _w((lambda *s: torch.randn(*s, dtype=torch.bfloat16) * 0.05)(F, D)),
        }
    _B_in = _B_setup()

    return {
        "A_x": _A_in["x"],
        "A_wqkv": _A_in["wqkv"],
        "A_wo": _A_in["wo"],
        "B_x": _B_in["x"],
        "B_w_r": _B_in["w_r"],
        "B_w_gate": _B_in["w_gate"],
        "B_w_up": _B_in["w_up"],
        "B_w_down": _B_in["w_down"],
    }

def reference(A_x, A_wqkv, A_wo, B_x, B_w_r, B_w_gate, B_w_up, B_w_down):
    def _A_ref(x, wqkv, wo):
        B, S, D = x.shape
        H = 32; Dh = D // H
        W, dil = 8, 2
        qkv = (lambda x, *d: x.permute(*d))((x @ wqkv).reshape(B, S, 3, H, Dh), 2, 0, 3, 1, 4)
        q, k, v = qkv[0], qkv[1], qkv[2]
        scale = Dh ** -0.5
        pos = torch.arange(S)
        off = torch.arange(W) * dil
        idx = pos[:, None] - off[None, :]
        mask = idx >= 0
        idx_c = torch.where(mask, idx, 0).reshape(-1)
        kg = k[:, :, idx_c, :].reshape(B, H, S, W, Dh)
        vg = v[:, :, idx_c, :].reshape(B, H, S, W, Dh)
        logits = torch.einsum("bhsd,bhswd->bhsw", q, kg) * scale
        logits = torch.where(mask[None, None, :, :], logits, -1e9)
        attn = _softmax(logits, axis=-1)
        o = torch.einsum("bhsw,bhswd->bhsd", attn, vg)
        return (lambda x, *d: x.permute(*d))(o, 0, 2, 1, 3).reshape(B, S, D) @ wo

    def _B_ref(x, w_r, w_gate, w_up, w_down):
        B, S, D = x.shape
        C = 1
        r = x @ w_r
        idx = torch.argsort(-r, axis=-1)[:, :C]
        idx_e = (lambda x, n, axis: torch.repeat_interleave(x, n, dim=axis))(idx.reshape(B, C, 1), D, axis=2)
        x_sel = (lambda x, i, axis: torch.take_along_dim(x, i, dim=axis))(x, idx_e, axis=1)
        g = _silu(x_sel @ w_gate)
        u = x_sel @ w_up
        y = (g * u) @ w_down
        r_sel = _sigmoid((lambda x, i, axis: torch.take_along_dim(x, i, dim=axis))(r, idx, axis=1))
        y = y * r_sel.reshape(B, C, 1)
        b_off = (torch.arange(B) * S).reshape(B, 1)
        flat_idx = (idx + b_off).reshape(B * C)
        zero = (x * 0.0).reshape(B * S, D)
        upd = _scatter_add(zero, flat_idx, y.reshape(B * C, D), axis=0)
        return x + upd.reshape(B, S, D)

    x = A_x
    x = x + _A_ref(_layernorm(x, axis=-1), A_wqkv, A_wo)
    x = x + _B_ref(_layernorm(x, axis=-1), B_w_r, B_w_gate, B_w_up, B_w_down)
    x = x + _A_ref(_layernorm(x, axis=-1), A_wqkv, A_wo)
    x = x + _B_ref(_layernorm(x, axis=-1), B_w_r, B_w_gate, B_w_up, B_w_down)
    return x
```

```python
import re
class Asm:
    def __init__(self):
        self.lines = []
    def __call__(self, txt):
        for l in txt.split("\n"):
            l = l.strip()
            if l: self.lines.append(l)
    def label(self, n): self.lines.append(n + ":")

def regs_of(tok):
    tok = tok.strip()
    tok = tok.lstrip("-")
    if tok.startswith("abs("): tok = tok[4:-1]
    if tok.startswith("|"): tok = tok.strip("|")
    m = re.fullmatch(r"([vas])(\d+)", tok)
    if m: return [(m.group(1), int(m.group(2)))]
    m = re.fullmatch(r"([vas])\[(\d+):(\d+)\]", tok)
    if m: return [(m.group(1), i) for i in range(int(m.group(2)), int(m.group(3)) + 1)]
    if tok == "vcc": return [("s", 106), ("s", 107)]
    if tok == "vcc_lo": return [("s", 106)]
    if tok == "vcc_hi": return [("s", 107)]
    if tok == "exec": return [("s", 126), ("s", 127)]
    if tok == "exec_lo": return [("s", 126)]
    if tok == "exec_hi": return [("s", 127)]
    if tok == "m0": return [("s", 124)]
    return []

TRANS = ("v_exp_f32", "v_log_f32", "v_rcp_f32", "v_rsq_f32", "v_sqrt_f32", "v_sin_f32", "v_cos_f32")
class Ins:
    def __init__(self, text):
        self.text = text
        t = text.split(";")[0].strip()
        self.islabel = t.endswith(":")
        self.isdir = t.startswith(".")
        self.defs = set(); self.uses = set(); self.ab = set(); self.c = set(); self.data = set()
        self.mn = ""; self.kind = "other"; self.states = 1
        if self.islabel or self.isdir or not t:
            self.states = 0; self.kind = "none"; self.name = t[:-1] if self.islabel else None; return
        p = t.split(None, 1); self.mn = mn = p[0]
        rest = p[1] if len(p) > 1 else ""
        ops = []; cur = ""; d = 0
        for ch in rest:
            if ch in "[(": d += 1
            if ch in "])": d -= 1
            if ch == "," and d == 0: ops.append(cur.strip()); cur = ""
            else: cur += ch
        if cur.strip(): ops.append(cur.strip())
        mods = ""
        if ops:
            q = ops[-1].split(None, 1)
            ops[-1] = q[0]
            mods = q[1] if len(q) > 1 else ""
        self.ops = ops; self.mods = mods
        R = [regs_of(o) for o in ops]
        self.dpp = ("_dpp" in mn) or ("row_" in mods) or ("quad_perm" in mods)
        if mn == "s_nop": self.states = int(ops[0], 0) + 1; self.kind = "salu"; return
        if mn.startswith("v_mfma"):
            self.kind = "mfma"; self.defs = set(R[0]); self.ab = set(R[1] + R[2]); self.c = set(R[3]); self.uses = self.ab | self.c
            self.passes = 8 if "32x32" in mn else 4
            self.dtok = ops[0]; self.ctok = ops[3]
        elif mn.startswith("v_"):
            self.kind = "valu"
            if mn.startswith("v_permlane"):
                self.defs = set(R[0] + R[1]); self.uses = set(R[0] + R[1])
            elif mn.startswith("v_nop"):
                pass
            else:
                self.defs = set(R[0]); self.uses = set(sum(R[1:], []))
                if mn.startswith(("v_fmac", "v_dot2c", "v_writelane")) or self.dpp: self.uses |= set(R[0])
                if mn.startswith("v_cndmask") and len(ops) == 3: self.uses |= {("s", 106), ("s", 107)}
                if mn.startswith("v_cmpx"): self.defs |= {("s", 126), ("s", 127)}
            self.trans = mn.replace("_e32", "").replace("_e64", "") in TRANS
            self.dot = mn.startswith("v_dot")
        elif mn.startswith("ds_"):
            self.kind = "ds"
            if mn.startswith(("ds_read", "ds_bpermute", "ds_permute", "ds_swizzle")) or "_rtn" in mn:
                self.defs = set(R[0]); self.uses = set(sum(R[1:], []))
            else: self.uses = set(sum(R, []))
        elif mn.startswith(("buffer_", "global_")):
            self.kind = "vmem"
            islds = re.search(r"\blds\b", mods) is not None or "_lds_" in mn
            if "load" in mn and not islds:
                self.defs = set(R[0]); self.uses = set(sum(R[1:], []))
            else:
                self.uses = set(sum(R, []))
                if islds: self.uses.add(("s", 124)); self.ldsdma = True
                if "store" in mn and ("x4" in mn or "x3" in mn):
                    self.data = set(R[0]) if mn.startswith("buffer_") else set(R[1])
        elif mn.startswith("s_"):
            self.kind = "salu"
            if mn.startswith(("s_cmp", "s_cbranch", "s_branch", "s_waitcnt", "s_barrier", "s_endpgm", "s_sleep", "s_setprio", "s_bitcmp")):
                self.uses = set(sum(R, []))
            else:
                self.defs = set(R[0]) if R else set(); self.uses = set(sum(R[1:], []))
                if "saveexec" in mn: self.defs |= {("s", 126), ("s", 127)}
        else:
            raise ValueError("unknown instr " + text)

def isv(r): return r[0] in "va"
def need(p, c):
    n = 0
    if p.kind == "valu":
        vd = {r for r in p.defs if isv(r)}; sd = {r for r in p.defs if r[0] == "s"}
        if c.kind == "mfma" and vd & c.uses: n = max(n, 3 if p.dot else 2)
        if c.kind == "mfma" and ("s", 126) in sd: n = max(n, 4)
        if c.kind == "valu":
            if c.mn.startswith("v_permlane") and vd & c.uses: n = max(n, 2)
            if c.dpp and vd & c.uses: n = max(n, 2)
            if c.dpp and ("s", 126) in sd: n = max(n, 5)
            if c.mn.startswith(("v_readlane", "v_readfirstlane")) and vd & c.uses: n = max(n, 1)
            if c.mn.startswith(("v_readlane", "v_readfirstlane", "v_writelane", "v_permlane")) and ("s", 126) in sd: n = max(n, 4)
            if p.trans and not c.trans and vd & c.uses: n = max(n, 1)
            if sd & c.uses: n = max(n, 4 if c.mn.startswith(("v_readlane", "v_writelane")) else 2)
            if p.dot and vd & (c.uses | c.defs):
                same = c.mn == p.mn
                if same:
                    srcab = set(sum([regs_of(o) for o in c.ops[1:3]], []))
                    if vd & srcab: n = max(n, 3)
                else: n = max(n, 3)
            if "sdwa" in p.mn and "dst_sel:DWORD" not in p.mods and vd & (c.uses | c.defs): n = max(n, 1)
        if c.kind in ("vmem", "ds") and p.dot and vd & c.uses: n = max(n, 3)
        if c.kind == "vmem" and sd & c.uses: n = max(n, 5)
    if p.kind == "mfma":
        big = {4: 8, 8: 12}[p.passes]
        if c.kind == "mfma":
            if p.defs & c.ab: n = max(n, big)
            if p.defs & c.c:
                if not (c.ctok == p.dtok and c.passes == p.passes): n = max(n, {4: 6, 8: 10}[p.passes])
            elif p.defs & c.defs: n = max(n, big)
        elif c.kind in ("valu", "vmem", "ds"):
            if p.defs & (c.uses | c.defs): n = max(n, big)
            if c.kind == "valu" and p.c & c.defs: n = max(n, {4: 3, 8: 7}[p.passes])
            if c.kind in ("vmem", "ds") and p.c & c.defs: n = max(n, {4: 3, 8: 7}[p.passes])
    if p.kind == "salu" and ("s", 124) in p.defs and getattr(c, "ldsdma", False): n = max(n, 1)
    if p.kind == "vmem" and p.data and (p.data & c.defs): n = max(n, 2 if c.kind == "valu" else 1)
    return n

def fix_hazards(lines, verbose=False):
    total = 0
    ins = [Ins(l) for l in lines]
    start = 0
    while True:
        lab = {x.name: i for i, x in enumerate(ins) if x.islabel}
        preds = [[] for _ in ins]
        for i, x in enumerate(ins):
            if i + 1 < len(ins) and x.mn not in ("s_branch", "s_endpgm", "s_setpc_b64"): preds[i + 1].append(i)
            if x.mn.startswith(("s_cbranch", "s_branch")):
                preds[lab[x.ops[0]]].append(i)
        fix = None
        for i in range(start, len(ins)):
            c = ins[i]
            if c.kind in ("none", "salu"): continue
            worst = 0; who = None
            stack = [(j, 0) for j in preds[i]]; seen = {}
            while stack:
                j, d = stack.pop()
                if d >= 12 or seen.get(j, 99) <= d: continue
                seen[j] = d
                p = ins[j]
                if p.kind != "none":
                    k = need(p, c) - d
                    if k > worst: worst = k; who = p
                for q in preds[j]: stack.append((q, d + p.states))
            if worst > 0:
                fix = (i, worst, who); break
        if not fix: break
        i, k, who = fix
        if verbose: print(f"hazard: +{k} before [{ins[i].text}] after [{who.text}]")
        ins.insert(i, Ins(f"s_nop {k-1}"))
        start = i
        total += k
    return [x.text for x in ins], total

class VM:
    def __init__(self): self.q = []
    def issue(self, tag, n=1): self.q += [tag] * n
    def cnt(self, *tags):
        last = max(i for i, t in enumerate(self.q) if t in tags)
        n = len(self.q) - 1 - last
        assert n <= 63
        return n
    def reset(self): self.q = []

class Alloc:
    def __init__(self, pfx, start, end): self.p = pfx; self.n = start; self.end = end
    def __call__(self, n=1, al=1):
        if n >= 2: al = max(al, 2)
        self.n = (self.n + al - 1) // al * al
        r = self.n; self.n += n
        assert self.n <= self.end, f"out of {self.p} regs"
        return r
def vr(b, n=1): return f"v{b}" if n == 1 else f"v[{b}:{b+n-1}]"
def ar(b, n=1): return f"a{b}" if n == 1 else f"a[{b}:{b+n-1}]"
def sr(b, n=1): return f"s{b}" if n == 1 else f"s[{b}:{b+n-1}]"
```

```python
import sys, os
sys.path.insert(0, os.path.dirname(os.path.abspath(__file__)))
from asmfw import *

KNAME = "interleave_layers__sliding_local_dilated__moe_arch_mod__prompt_kernel"

XSLOT, FLAGS, STATS, HST, CAND, CROW, YPART, HROW, OBUF, X1BUF, DBG = (
    0x10000, 0x20000, 0x40000, 0x80000, 0x90000, 0xA0000, 0xC0000, 0x100000, 0x200000, 0x400000, 0x600000)
OOB = 0x7FFF0000
XM, XH, WB, TB = 0, 65536, 73728, 147456
T_NM, T_SC, T_RS = TB + 64, TB + 384, TB + 704
T_KEY, T_PST, T_FFN, T_ROW = TB + 1024 + 16, TB + 1024 + 64, TB + 8192, TB + 9216
LDS_BYTES = 163840
PH_X, PH_O1, PH_S1, PH_X1, PH_O2, PH_S2 = 0, 1, 2, 3, 4, 5
EPS = 0x3727C5AC
NINF = 0xFF800000


def gen(opt=None):
    O = dict(stamps=0, dump=0, force_slow=0, ffn_after=2, touch=1, xpol="nt", wbl2=1, D=6, kname=KNAME)
    O.update(opt or {})
    A = Asm(); vm = VM()
    D = 6
    WS_SIZE = 0x1000000 if (O["dump"] or O["stamps"]) else DBG
    SX, SW, SWO, SWS, SOUT, SWG, SWU, SWD, SWR = 4, 8, 12, 16, 20, 24, 28, 32, 36
    sa = Alloc("s", 40, 102)
    sG, sM, sS, sWV, sC, sTAG, sFAST, sF, sPREV, sSPIN, sSUMW, sLAY = [sa() for _ in range(12)]
    sROT = sa(8)
    sT = sa(8, 2)
    sMA, sMB, sMV = sa(2), sa(2), sa(2)
    sWOFF, sXL, sXB, sW3K, sKEY, sRT, sI, sRET = [sa() for _ in range(8)]
    sST = sa(16, 2) if O["stamps"] else None
    t0, t1, t2, t3, t4, t5 = [f"s{sT+i}" for i in range(6)]
    S = lambda r, n=1: sr(r, n)
    va = Alloc("v", 1, 256)
    vL = 0
    vI, vGq = va(), va()
    vL16 = va()
    vA, vH = va(2), va(2)
    vWO = va(4)
    vOST, vOLD, vXST, vSTA, vSTL = va(), va(), va(), va(), va()
    vTI, vTG = va(), va()
    vAL = va(2)
    vMP, vMC, vMP1 = va(4), va(4), va(4)
    vPM = va(2)
    vONE = va(4)
    vCSQ, vCSK, vCSV = va(4), va(4), va(2)
    vWR = va(8)
    vFG = va(64)
    vP = va(0, 4)
    base = va.n
    accQ = [base + 12 * t for t in range(5)]; accK = [x + 4 for x in accQ]; accV = [x + 8 for x in accQ]
    gOWN, gSUM, gHAL = base + 60, base + 64, base + 68
    tmp = base + 72
    assert tmp + 56 <= 256, tmp
    vXD, vXD2, vWD, vOD, vWT, vSO = vFG, vFG + 1, vFG + 2, vFG + 3, vFG + 4, vFG + 6
    vXS = vFG + 8
    aW = lambda ks, seg: 12 * ks + 4 * seg
    aX = lambda buf, t: 192 + 24 * buf + 4 * t
    aWDN = 224
    nst = [0]
    names = []
    def stamp(name="?"):
        if O["stamps"]:
            k = nst[0]; nst[0] += 1; names.append(name)
            assert k < 32
            A(f"s_memtime s[{sST}:{sST+1}]\ns_lshl_b32 s{sST+2}, {S(sLAY)}, 5\ns_add_u32 s{sST+2}, s{sST+2}, {k}\ns_mov_b32 m0, s{sST+2}")
            A(f"s_waitcnt lgkmcnt(0)\nv_writelane_b32 v255, s{sST}, m0")
    def spin():
        A(f"s_sub_u32 {S(sSPIN)}, {S(sSPIN)}, 1\ns_cbranch_scc1 L_exit")
    lab = [0]
    def newlab(n):
        lab[0] += 1; return f"L_{n}_{lab[0]}"
    def dual_store(instrs):
        a, b = newlab("slow"), newlab("join")
        A(f"s_cmp_eq_u32 {S(sFAST)}, 1\ns_cbranch_scc0 {a}")
        for x in instrs: A(x.replace("@", ""))
        A(f"s_branch {b}"); A.label(a)
        for x in instrs: A(x.replace("@", "sc1"))
        A.label(b)
    def dump(slot, reg, n, acc=False):
        if O["dump"] != slot: return
        assert n <= 16
        t0, t1 = f"s{sT+6}", f"s{sT+7}"
        A(f"s_lshl_b32 {t0}, s2, 2\ns_add_u32 {t0}, {t0}, {S(sWV)}\ns_lshl_b32 {t0}, {t0}, 12\ns_lshl_b32 {t1}, {S(sLAY)}, 22\ns_add_u32 {t0}, {t0}, {t1}\ns_add_u32 {t0}, {t0}, {DBG}")
        A(f"v_lshlrev_b32 v254, 2, v{vL}")
        A("s_nop 7\ns_nop 7")
        for r in range(n):
            A(f"buffer_store_dword {'a' if acc else 'v'}{reg+r}, v254, {S(SWS,4)}, {t0} offen offset:{256*r}")
        A("s_waitcnt vmcnt(0)")

    A(f"s_cmp_ge_u32 s2, 256\ns_cbranch_scc1 L_end")
    A(f"""s_load_dwordx2 {S(SX,2)}, s[0:1], 0
          s_load_dwordx2 {S(SW,2)}, s[0:1], 8
          s_load_dwordx2 {S(SWS,2)}, s[0:1], 80
          s_load_dwordx2 {S(SWO,2)}, s[0:1], 16
          s_load_dwordx2 {S(SWR,2)}, s[0:1], 32""")
    A(f"""v_lshrrev_b32 v{tmp}, 6, v0
          v_and_b32 v{vL}, 63, v0
          s_and_b32 {S(sG)}, s2, 7
          v_readfirstlane_b32 {S(sWV)}, v{tmp}
          s_bfe_u32 {S(sM)}, s2, 0x30003
          s_lshr_b32 {S(sS)}, s2, 6
          s_mov_b32 {S(sLAY)}, 0""")
    if O["stamps"]: A("v_mov_b32 v255, 0")
    for r, n in ((SX, 2097152), (SW, 1572864), (SWS, WS_SIZE), (SWO, 524288), (SWR, 1024)):
        A(f"s_mov_b32 s{r+2}, {n}\ns_mov_b32 s{r+3}, 0x20000")
    A(f"""v_lshrrev_b32 v{tmp}, 3, v{vL}
          v_and_b32 v{tmp+1}, 7, v{vL}
          v_and_b32 v{tmp+2}, 6, v{tmp}
          v_xor_b32 v{tmp+2}, v{tmp+2}, v{tmp+1}
          v_lshlrev_b32 v{tmp+2}, 4, v{tmp+2}
          v_lshl_add_u32 v{vXD}, v{tmp}, 11, v{tmp+2}
          v_add_u32 v{vXD2}, {16384-1024}, v{vXD}""")
    A(f"""v_and_b32 v{tmp+2}, 2, v{tmp}
          v_xor_b32 v{tmp+2}, v{tmp+2}, v{tmp+1}
          s_and_b32 {t0}, {S(sWV)}, 1
          s_lshl_b32 {t0}, {t0}, 2
          v_xor_b32 v{tmp+2}, {t0}, v{tmp+2}
          s_lshl_b32 {t1}, {S(sM)}, 7
          v_lshl_add_u32 v{tmp+2}, v{tmp+2}, 4, {t1}
          v_lshl_add_u32 v{vOD}, v{tmp}, 10, v{tmp+2}
          s_lshl_b32 {t0}, {S(sWV)}, 3
          v_add_u32 v{tmp+3}, {t0}, v{tmp}
          v_mul_u32_u24 v{tmp+3}, 3072, v{tmp+3}
          v_add_u32 v{vWD}, v{tmp+3}, v{tmp+2}""")
    A(f"""s_lshr_b32 {t0}, {S(sG)}, 1
          s_lshl_b32 {t0}, {t0}, 2
          s_add_u32 {t0}, {t0}, {S(sS)}
          s_lshl_b32 {t0}, {t0}, 17
          s_and_b32 {t1}, {S(sG)}, 1
          s_lshl_b32 {t1}, {t1}, 10
          s_add_u32 {t0}, {t0}, {t1}
          s_lshl_b32 {t1}, {S(sWV)}, 15
          s_add_u32 {S(sXB)}, {t0}, {t1}
          s_sub_u32 {t2}, {t0}, 16384
          s_cselect_b32 {t2}, 0, {t2}
          s_cselect_b32 {t1}, {OOB}, 0
          v_or_b32 v{vXD+5}, {t1}, v{vXD}
          s_lshl_b32 {S(sXL)}, {S(sG)}, 7
          s_mul_i32 {S(sWOFF)}, {S(sG)}, {2*98304}
          s_mul_i32 {S(sW3K)}, {S(sWV)}, 3072""")
    A(f"""s_lshl_b32 {t3}, {S(sWV)}, 8
          s_add_u32 {t3}, {t3}, {S(sXL)}
          s_add_u32 {t4}, {t3}, 128
          s_and_b32 {t3}, {t3}, 1023
          s_and_b32 {t4}, {t4}, 1023
          s_add_u32 {t3}, {t3}, {t2}
          s_add_u32 {t4}, {t4}, {t2}
          s_lshl_b32 {t5}, {S(sWV)}, 11""")
    if O["touch"]:
        tv = tmp + 4
        A(f"""v_lshlrev_b32 v{tv}, 7, v{tmp+1}
              v_lshl_add_u32 v{tv}, v{tmp}, 11, v{tv}
              s_lshl_b32 {t1}, {S(sM)}, 14
              s_add_u32 {t1}, {t1}, {t0}
              v_add_u32 v{tv}, {t1}, v{tv}
              v_min_u32 v{tv+1}, 47, v{vL}
              v_lshlrev_b32 v{tv+1}, 10, v{tv+1}
              s_lshr_b32 {t1}, s2, 3
              s_mul_i32 {t1}, {t1}, 49152
              s_add_u32 {t1}, {t1}, 384
              v_add_u32 v{tv+2}, {t1}, v{tv+1}
              s_mul_i32 {t1}, {S(sS)}, 49152
              s_add_u32 {t1}, {t1}, {S(sWOFF)}
              s_lshl_b32 {t2}, {S(sM)}, 7
              s_add_u32 {t1}, {t1}, {t2}
              v_add_u32 v{tv+1}, {t1}, v{tv+1}
              v_and_b32 v{tv+3}, 15, v{vL}
              v_lshlrev_b32 v{tv+3}, 7, v{tv+3}
              s_lshl_b32 {t1}, s2, 11
              v_add_u32 v{tv+3}, {t1}, v{tv+3}""")
    A(f"s_waitcnt lgkmcnt(0)")
    stamp("kernarg")
    A(f"s_load_dword {S(sTAG)}, {S(SWS,2)}, 0")
    if O["touch"]:
        tv = tmp + 4
        A(f"""s_cmp_eq_u32 {S(sWV)}, 0
              s_cbranch_scc0 L_tch1
              buffer_load_dword v{tmp+8}, v{tv}, {S(SX,4)}, 0 offen {O['xpol']}
              s_branch L_tchd
              L_tch1:
              s_cmp_eq_u32 {S(sWV)}, 3
              s_cbranch_scc1 L_tch3
              s_cmp_eq_u32 {S(sWV)}, 1
              s_cselect_b64 vcc, -1, 0
              v_cndmask_b32 v{tv+1}, v{tv+1}, v{tv+2}, vcc
              buffer_load_dword v{tmp+8}, v{tv+1}, {S(SW,4)}, 0 offen
              s_branch L_tchd
              L_tch3:
              buffer_load_dword v{tmp+8}, v{tv+3}, {S(SWO,4)}, 0 offen
              L_tchd:""")
        vm.issue("touch")
    def dma_x(lp):
        A(f"s_add_u32 {t0}, {S(sXB)}, {S(sXL)}\ns_lshl_b32 m0, {S(sWV)}, 14")
        if lp: A(f"s_add_u32 m0, m0, {lp*2048}")
        A(f"s_add_u32 {S(sXL)}, {S(sXL)}, 128")
        A(f"buffer_load_dwordx4 v{vXD}, {S(SX,4)}, {t0} offen {O['xpol']} lds")
        A(f"s_and_b32 {S(sXL)}, {S(sXL)}, 1023")
        A(f"buffer_load_dwordx4 v{vXD2}, {S(SX,4)}, {t0} offen offset:1024 {O['xpol']} lds")
        vm.issue(f"c{2*lp}", 2)
    def dma_w(ks):
        A(f"s_add_u32 m0, {S(sW3K)}, {WB + (ks % D) * 12288}\ns_mov_b32 {t0}, {S(sWOFF)}")
        for seg in range(3):
            A(f"buffer_load_dwordx4 v{vWD}, {S(SW,4)}, {t0} offen offset:{seg*1024} lds")
            if seg == 0: A(f"s_add_u32 {S(sWOFF)}, {S(sWOFF)}, 98304\ns_cmp_eq_u32 {S(sWOFF)}, {16*98304}")
            if seg == 1: A(f"s_cselect_b32 {S(sWOFF)}, 0, {S(sWOFF)}")
        vm.issue(f"c{ks}", 3)
    def dma_wo(sl):
        for t in range(3):
            o = 12 * sl + 4 * t
            if o >= 64: continue
            A(f"""s_add_u32 {t0}, {S(sXL)}, {o}
                  s_and_b32 {t0}, {t0}, 63
                  s_lshl_b32 {t0}, {t0}, 13
                  s_add_u32 m0, {S(sXB)}, {WB + o*1024}
                  s_nop 0
                  buffer_load_dwordx4 v{vOD}, {S(SWO,4)}, {t0} offen lds""")
            vm.issue("wo")
    A(f"s_add_u32 m0, {t5}, {XH}\ns_nop 0\nbuffer_load_dwordx4 v{vXD+5}, {S(SX,4)}, {t3} offen lds")
    A(f"s_add_u32 m0, {t5}, {XH+1024}\ns_nop 0\nbuffer_load_dwordx4 v{vXD+5}, {S(SX,4)}, {t4} offen lds")
    vm.issue("c0", 2)
    for ks in range(2):
        if ks % 2 == 0: dma_x(ks // 2)
        dma_w(ks)
    A(f"""v_and_b32 v{vI}, 15, v{vL}
          v_lshrrev_b32 v{vGq}, 4, v{vL}
          v_lshlrev_b32 v{vL16}, 4, v{vL}
          v_and_b32 v{tmp}, 1, v{vGq}
          v_lshrrev_b32 v{tmp+1}, 1, v{vGq}
          v_lshl_add_u32 v{tmp+2}, v{tmp}, 1, v{tmp+1}
          s_lshl_b32 {t0}, {S(sM)}, 7
          v_lshl_add_u32 v{tmp+3}, v{tmp+2}, 4, {t0}
          buffer_load_dwordx4 {vr(tmp+12,4)}, v{vL16}, {S(SWR,4)}, 0 offen
          buffer_load_dwordx4 {vr(vWR,4)}, v{tmp+3}, {S(SWR,4)}, 0 offen
          buffer_load_dwordx4 {vr(vWR+4,4)}, v{tmp+3}, {S(SWR,4)}, 0 offen offset:64""")
    vm.issue("wr", 3)
    for ks in range(2, D):
        if ks % 2 == 0: dma_x(ks // 2)
        dma_w(ks)
    A(f"""s_load_dwordx2 {S(SOUT,2)}, s[0:1], 64
          s_load_dwordx2 {S(SWG,2)}, s[0:1], 40
          s_load_dwordx2 {S(SWU,2)}, s[0:1], 48
          s_load_dwordx2 {S(SWD,2)}, s[0:1], 56""")
    for r, n in ((SOUT, 2097152), (SWG, 1409024), (SWU, 1409024), (SWD, 1409024)):
        A(f"s_mov_b32 s{r+2}, {n}\ns_mov_b32 s{r+3}, 0x20000")
    A(f"""s_lshl_b32 {S(sC)}, {S(sG)}, 2
          s_add_u32 {S(sC)}, {S(sC)}, {S(sS)}
          s_sub_u32 {t0}, {S(sC)}, 1
          s_sub_u32 {t1}, {S(sC)}, 5
          s_cmp_lt_u32 {S(sG)}, 2
          s_cselect_b32 {t1}, 255, {t1}
          s_cmp_eq_u32 {S(sS)}, 0
          s_cselect_b32 {S(sPREV)}, {t1}, {t0}
          s_mov_b32 {S(sSPIN)}, 400000
          s_mov_b32 {S(sRET)}, 0
          s_mov_b32 s{sMA}, 0xAAAAAAAA
          s_mov_b32 s{sMA+1}, 0xAAAAAAAA
          s_mov_b32 s{sMB}, 0xCCCCCCCC
          s_mov_b32 s{sMB+1}, 0xCCCCCCCC
          s_mov_b32 s{sMV}, 0x00F0000F
          s_mov_b32 s{sMV+1}, 0xF0000F00""")
    for p in range(8):
        A(f"s_add_u32 {t0}, {S(sG)}, {p}\ns_and_b32 {t0}, {t0}, 7\ns_lshl_b32 s{sROT+p}, {t0}, 11")
    A(f"""s_sub_u32 {t0}, {S(sM)}, 4
          s_lshl_b32 {t0}, {t0}, 2
          s_add_u32 {t0}, {t0}, {S(sS)}
          s_mul_i32 {t1}, {S(sG)}, 6
          s_add_u32 {t1}, {t1}, {t0}
          s_cmp_lt_u32 {t0}, 6
          s_cselect_b32 {S(sF)}, {t1}, 255""")
    A(f"""s_lshl_b32 {t0}, {S(sC)}, 16
          s_lshl_b32 {t1}, {S(sM)}, 11
          s_lshl_b32 {t2}, {S(sWV)}, 9
          s_add_u32 {t3}, {t0}, {t1}
          s_add_u32 {t2}, {t2}, {t3}
          s_add_u32 {t2}, {t2}, {OBUF}
          v_lshlrev_b32 v{tmp+4}, 4, v{vI}
          v_lshl_add_u32 v{vOST}, v{tmp+1}, 8, v{tmp+4}
          v_lshl_add_u32 v{vOST}, v{tmp}, 14, v{vOST}
          v_add_u32 v{vOST}, {t2}, v{vOST}""")
    A(f"""s_lshl_b32 {t2}, {S(sWV)}, 14
          s_add_u32 {t4}, {t0}, {t2}
          s_add_u32 {t4}, {t4}, {OBUF}
          v_add_u32 v{vOLD}, {t4}, v{vL16}""")
    A(f"""s_add_u32 {t3}, {t3}, {t2}
          s_add_u32 {t3}, {t3}, {X1BUF}
          v_lshl_add_u32 v{vXST}, v{tmp+2}, 8, v{tmp+4}
          v_add_u32 v{vXST}, {t3}, v{vXST}""")
    A(f"""s_lshl_b32 {t0}, {S(sC)}, 13
          s_lshl_b32 {t1}, {S(sWV)}, 8
          s_add_u32 {t0}, {t0}, {t1}
          s_add_u32 {t0}, {t0}, {STATS}
          v_add_u32 v{vSTL}, {t0}, v{tmp+4}
          s_lshl_b32 {t1}, {S(sM)}, 10
          v_add_u32 v{vSTA}, {t1}, v{vSTL}
          v_lshl_add_u32 v{vSTL}, v{vGq}, 10, v{vSTL}""")
    A(f"""v_lshlrev_b32 v{vTI}, 2, v{vI}
          v_add_u32 v{vTI}, {T_NM}, v{vTI}
          v_lshlrev_b32 v{vTG}, 4, v{vGq}
          v_add_u32 v{vTG}, {T_NM}, v{vTG}""")
    A(f"""v_and_b32 v{tmp+5}, 7, v{vI}
          v_lshlrev_b32 v{tmp+5}, 7, v{tmp+5}
          v_and_b32 v{tmp+6}, 6, v{vI}
          v_xor_b32 v{tmp+6}, v{tmp+6}, v{vGq}
          v_lshl_add_u32 v{tmp+5}, v{tmp+6}, 4, v{tmp+5}
          v_xor_b32 v{tmp+6}, 64, v{tmp+5}
          v_lshrrev_b32 v{tmp+7}, 3, v{vI}
          v_lshl_add_u32 v{vA}, v{tmp+7}, 10, v{tmp+5}
          v_lshl_add_u32 v{vA+1}, v{tmp+7}, 10, v{tmp+6}
          v_add_u32 v{tmp+5}, {XH}, v{tmp+5}
          v_add_u32 v{tmp+6}, {XH}, v{tmp+6}
          v_mov_b32 v{tmp+9}, {TB}
          v_cmp_gt_u32 vcc, 8, v{vI}
          v_cndmask_b32 v{vH}, v{tmp+5}, v{tmp+9}, vcc
          v_cndmask_b32 v{vH+1}, v{tmp+6}, v{tmp+9}, vcc
          s_lshl_b32 {t0}, {S(sWV)}, 14
          v_add_u32 v{vSO}, {t0}, v{vA}
          v_add_u32 v{vSO+1}, {t0}, v{vA+1}""")
    A(f"""v_lshrrev_b32 v{tmp+5}, 2, v{vI}
          v_and_b32 v{tmp+6}, 3, v{vI}
          v_lshlrev_b32 v{tmp+6}, 3, v{tmp+6}
          v_lshl_add_u32 v{tmp+6}, v{tmp+5}, 7, v{tmp+6}
          v_lshl_or_b32 v{tmp+7}, v{tmp}, 1, v{tmp+7}
          v_lshlrev_b32 v{tmp+7}, 5, v{tmp+7}
          v_add_u32 v{tmp+6}, v{tmp+6}, v{tmp+7}
          s_lshl_b32 {t0}, {S(sWV)}, 5
          v_xor_b32 v{vWT}, {t0}, v{tmp+6}
          v_mul_u32_u24 v{tmp+5}, 3072, v{vGq}
          v_add_u32 v{vWT}, v{vWT}, v{tmp+5}
          v_add_u32 v{vWT}, {WB}, v{vWT}
          v_lshl_add_u32 v{tmp+6}, v{vGq}, 10, v{tmp+6}
          v_add_u32 v{vWO}, {WB}, v{tmp+6}""")
    for c in range(1, 4): A(f"v_xor_b32 v{vWO+c}, {32*c}, v{vWO}")
    for r in range(4): A(f"v_mov_b32 v{vONE+r}, 0x3F803F80")
    A(f"""v_and_b32 v{tmp+5}, 7, v{vL}
          v_lshlrev_b32 v{tmp+5}, 10, v{tmp+5}
          v_add_u32 v{tmp+5}, {TB}, v{tmp+5}
          ds_write_b128 v{tmp+5}, {vr(vONE,4)}
          v_lshlrev_b32 v{tmp+5}, 2, v{vGq}
          v_sub_u32 v{tmp+5}, v{tmp+5}, v{vI}
          v_mov_b32 v{tmp+6}, {NINF}
          s_cmp_eq_u32 {S(sPREV)}, 255
          s_cselect_b32 {t0}, {NINF}, 0""")
    for r in range(4):
        A(f"""v_cmp_le_i32 vcc, {9-r}, v{tmp+5}
              v_add_u32 v{tmp+7}, {r+7}, v{tmp+5}
              v_cndmask_b32 v{vMP+r}, v{tmp+6}, 0, vcc
              v_cmp_ge_u32 vcc, 7, v{tmp+7}
              v_or_b32 v{vMP1+r}, {t0}, v{vMP+r}
              v_cndmask_b32 v{vMC+r}, v{tmp+6}, 0, vcc""")
    for h in range(2):
        A(f"""v_ashrrev_i32 v{tmp+7}, 31, v{vMP+2*h}
              v_ashrrev_i32 v{tmp+9}, 31, v{vMP+2*h+1}
              v_and_b32 v{tmp+7}, 0xFFFF, v{tmp+7}
              v_and_b32 v{tmp+9}, 0xFFFF0000, v{tmp+9}
              v_or_b32 v{tmp+7}, v{tmp+7}, v{tmp+9}
              v_not_b32 v{vPM+h}, v{tmp+7}""")
    A(f"v_mov_b32 v{vAL}, 1.0\nv_mov_b32 v{vAL+1}, 0")
    A(f"""s_waitcnt lgkmcnt(0)
          s_lshr_b32 {S(sTAG)}, {S(sTAG)}, 3
          s_mul_i32 {S(sTAG)}, {S(sTAG)}, 1664525
          s_add_u32 {S(sTAG)}, {S(sTAG)}, 1013904223
          s_lshl_b32 {S(sTAG)}, {S(sTAG)}, 3
          s_getreg_b32 {S(sFAST)}, hwreg(HW_REG_XCC_ID)
          s_and_b32 {S(sFAST)}, {S(sFAST)}, 15""")
    pv = tmp + 16
    A(f"""s_lshl_b32 {t0}, {S(sC)}, 10
          s_lshl_b32 {t1}, {S(sM)}, 7
          s_add_u32 {t0}, {t0}, {t1}
          v_mov_b32 v{pv}, -1
          v_mov_b32 v{pv+1}, -1
          v_mov_b32 v{pv+2}, -1
          v_mov_b32 v{pv+3}, -1
          v_mov_b32 v{tmp+9}, {OOB}
          s_cmp_eq_u32 {S(sWV)}, 0
          s_cbranch_scc0 L_pf1
          v_and_b32 v{tmp+5}, 7, v{vL}
          v_lshlrev_b32 v{tmp+5}, 4, v{tmp+5}
          v_lshrrev_b32 v{tmp+7}, 3, v{vL}
          v_lshl_add_u32 v{tmp+5}, v{tmp+7}, 15, v{tmp+5}
          s_add_u32 {t1}, {t0}, {CROW}
          v_cmp_gt_u32 vcc, 16, v{vL}
          s_branch L_pfd
          L_pf1:
          s_cmp_eq_u32 {S(sWV)}, 3
          s_cbranch_scc1 L_pf3
          v_mov_b32 v{tmp+5}, v{vL16}
          s_lshl_b32 {t1}, {S(sWV)}, 16
          s_lshl_b32 {t2}, {S(sF)}, 10
          s_add_u32 {t1}, {t1}, {t2}
          s_add_u32 {t1}, {t1}, {YPART - 65536}
          s_cmp_lt_u32 {S(sF)}, 43
          s_cselect_b64 vcc, -1, 0
          s_branch L_pfd
          L_pf3:
          v_mov_b32 v{tmp+5}, 0
          v_mov_b32 v{pv}, {S(sTAG)}
          v_mov_b32 v{pv+1}, {S(sFAST)}
          s_add_u32 {t1}, {t0}, {XSLOT}
          s_mov_b64 vcc, 1
          L_pfd:
          v_cndmask_b32 v{tmp+5}, v{tmp+9}, v{tmp+5}, vcc
          buffer_store_dwordx4 {vr(pv,4)}, v{tmp+5}, {S(SWS,4)}, {t1} offen sc1""")
    vm.issue("pf")
    vPW = vFG + 10
    A(f"""s_lshl_b32 {t1}, {t0}, 6
          s_add_u32 {t2}, {t1}, {OBUF}
          s_add_u32 {t3}, {t1}, {X1BUF}
          s_lshl_b32 {t4}, {t0}, 3
          s_add_u32 {t4}, {t4}, {STATS}
          s_add_u32 {t5}, {t0}, {FLAGS}
          s_cmp_eq_u32 {S(sWV)}, 1
          s_cselect_b32 {t2}, {t3}, {t2}
          s_cmp_eq_u32 {S(sWV)}, 2
          s_cselect_b32 {t2}, {t4}, {t2}
          s_cselect_b32 {t1}, 7, 63
          s_cmp_eq_u32 {S(sWV)}, 3
          s_cselect_b32 {t2}, {t5}, {t2}
          s_cselect_b32 {t1}, 0, {t1}
          v_and_b32 v{vPW}, {t1}, v{vL}
          v_lshlrev_b32 v{vPW}, 7, v{vPW}
          v_add_u32 v{vPW}, {t2}, v{vPW}
          s_lshl_b32 {t0}, {S(sC)}, 10
          s_add_u32 {t0}, {t0}, {XSLOT}
          v_and_b32 v{vPW+1}, 7, v{vL}
          v_lshlrev_b32 v{vPW+1}, 7, v{vPW+1}
          v_add_u32 v{vPW+1}, {t0}, v{vPW+1}""")
    A(f"s_waitcnt vmcnt({vm.cnt('wr')})\nv_mov_b32 v{tmp}, 0")
    for r in range(4): A(f"v_dot2c_f32_bf16 v{tmp}, v{tmp+12+r}, v{vONE}")
    for sh in (8, 4, 2, 1): A(f"v_add_f32_dpp v{tmp}, v{tmp}, v{tmp} row_ror:{sh} row_mask:0xf bank_mask:0xf")
    A(f"""v_readlane_b32 {t0}, v{tmp}, 0
          v_readlane_b32 {t1}, v{tmp}, 16
          v_readlane_b32 {t2}, v{tmp}, 32
          v_readlane_b32 {t3}, v{tmp}, 48
          v_mov_b32 v{tmp}, {t0}
          v_add_f32 v{tmp}, {t1}, v{tmp}
          v_add_f32 v{tmp}, {t2}, v{tmp}
          v_add_f32 v{tmp}, {t3}, v{tmp}
          v_readfirstlane_b32 {S(sSUMW)}, v{tmp}""")
    for r in range(8):
        A(f"v_cndmask_b32 v{vWR+r}, v{vONE}, v{vWR+r}, {S(sMA,2)}\nv_cndmask_b32 v{vWR+r}, v{vWR+r}, 0, {S(sMB,2)}")

    def reads(ks):
        e = ks & 1; b = ks & 1; L = []
        for seg in range(3):
            for hf in range(2):
                L.append(f"ds_read_b64_tr_b16 {ar(aW(ks,seg)+2*hf,2)}, v{vWT} offset:{(ks%D)*12288 + seg*1024 + hf*512}")
        X = [f"ds_read_b128 {ar(aX(b,0),4)}, v{vH+e} offset:{(ks>>1)*1024}"]
        for t in range(1, 5): X.append(f"ds_read_b128 {ar(aX(b,t),4)}, v{vA+e} offset:{(t-1)*16384 + (ks>>1)*2048}")
        X.append(f"ds_read_b128 {ar(aX(b,5),4)}, v{vSO+e} offset:{(ks>>1)*2048}")
        return X + L
    def mf(d, a, b, c, shape="16x16x32"):
        return f"v_mfma_f32_{shape}_bf16 {vr(d,4)}, {a}, {b}, {c}"
    def mfmas(ks):
        b = ks & 1; L = []
        C = lambda d: "0" if ks == 0 else vr(d, 4)
        for t in range(5):
            x = ar(aX(b, t), 4)
            L.append(mf(accQ[t], ar(aW(ks, 0), 4), x, C(accQ[t])))
            L.append(mf(accK[t], ar(aW(ks, 1), 4), x, C(accK[t])))
            L.append(mf(accV[t], x, ar(aW(ks, 2), 4), C(accV[t])))
        xo = ar(aX(b, 5), 4); xh = ar(aX(b, 0), 4)
        L = [mf(gOWN, xo, xo, C(gOWN)), mf(gSUM, vr(vONE, 4), xo, C(gSUM)), mf(gHAL, xh, xh, C(gHAL))] + L
        return L
    A(f"s_waitcnt vmcnt({vm.cnt('c0')}) lgkmcnt(0)\ns_barrier")
    stamp("c0_landed")
    for x in reads(0): A(x)
    for ks in range(16):
        if ks < 15: A(f"s_waitcnt vmcnt({vm.cnt(f'c{ks+1}')}) lgkmcnt(0)")
        else: A("s_waitcnt lgkmcnt(0)")
        A("s_barrier")
        M = mfmas(ks); R = reads(ks + 1) if ks < 15 else []
        for i, m_ in enumerate(M):
            A(m_)
            if i < len(R): A(R[i])
            if i == 13:
                j = ks + D
                if j == 16:
                    A(f"s_lshl_b32 {S(sXL)}, {S(sG)}, 3\ns_add_u32 {S(sXL)}, {S(sXL)}, {S(sWV)}\ns_lshl_b32 {S(sXB)}, {S(sWV)}, 10")
                if j < 16:
                    if j % 2 == 0: dma_x(j // 2)
                    dma_w(j)
                else: dma_wo(j % D)
                if ks == 2:
                    A(f"buffer_load_dword v{vPW+2}, v{vPW}, {S(SWS,4)}, 0 offen"); vm.issue("pw")
                if ks == 8:
                    A(f"buffer_load_dwordx2 {vr(vXS,2)}, v{vPW+1}, {S(SWS,4)}, 0 offen sc1"); vm.issue("xs")
    stamp("gemm1_end")
    q = tmp
    A(f"""v_cmp_eq_u32 vcc, {S(sTAG)}, v{vXS}
          v_cmp_eq_u32 s[{sT}:{sT+1}], {S(sFAST)}, v{vXS+1}
          s_and_b64 vcc, vcc, s[{sT}:{sT+1}]
          s_cmp_eq_u64 vcc, -1
          s_cselect_b32 {S(sFAST)}, {0 if O['force_slow'] else 1}, 0""")
    assert vm.cnt("xs") >= vm.cnt("c15")
    def diag(dst, g):
        A(f"""v_cndmask_b32 v{g}, v{g}, v{g+1}, {S(sMA,2)}
              v_cndmask_b32 v{g+2}, v{g+2}, v{g+3}, {S(sMA,2)}
              v_cndmask_b32 v{dst}, v{g}, v{g+2}, {S(sMB,2)}""")
    A(f"v_mov_b32 v{q}, v{gHAL}\nv_mov_b32 v{q+1}, v{gHAL}")
    diag(q + 2, gOWN)
    A(f"v_permlane32_swap_b32 v{q}, v{q+1}")
    diag(q + 3, gHAL)
    A(f"s_mov_b32 {t0}, 0xBB000000\ns_mov_b32 {t1}, 0x3B000000\nv_mov_b32 v{q+8}, {EPS}")
    for (s1, s2, d) in ((gSUM, q + 2, q + 4), (q, q + 3, q + 6)):
        A(f"""v_mul_f32 v{d}, {t0}, v{s1}
              v_mul_f32 v{s2}, {t1}, v{s2}
              v_fma_f32 v{s2}, -v{d}, v{d}, v{s2}
              v_max_f32 v{s2}, 0, v{s2}
              v_add_f32 v{s2}, v{q+8}, v{s2}
              v_rsq_f32 v{d+1}, v{s2}""")
    A(f"""s_lshl_b32 {t2}, {S(sWV)}, 6
          v_add_u32 v{q+9}, {t2}, v{vTI}
          s_mov_b64 exec, {S(sMV,2)}
          ds_write2_b32 v{q+9}, v{q+4}, v{q+5} offset0:16 offset1:96
          ds_write2_b32 v{vTI}, v{q+6}, v{q+7} offset0:0 offset1:80
          s_mov_b64 exec, -1""")
    for r in range(4):
        A(f"v_mov_b32_dpp v{vCSQ+r}, v{accQ[0]+r} row_newbcast:0 row_mask:0xf bank_mask:0xf")
        A(f"v_mov_b32_dpp v{vCSK+r}, v{accK[0]+r} row_newbcast:0 row_mask:0xf bank_mask:0xf")
    A(f"v_mov_b32 v{vCSV}, v{accV[0]}\nv_mov_b32 v{vCSV+1}, v{accV[0]}\nv_permlane32_swap_b32 v{vCSV}, v{vCSV+1}")
    vRA = tmp + 52
    A(f"""s_sub_u32 {t0}, {S(sM)}, {S(sG)}
          s_and_b32 {t0}, {t0}, 7
          s_lshl_b32 {t0}, {t0}, 11
          s_lshl_b32 {t1}, {S(sWV)}, 14
          s_add_u32 {S(sW3K)}, {t0}, {t1}
          v_lshrrev_b32 v{q}, 3, v{vI}
          v_and_b32 v{q+1}, 7, v{vI}
          v_lshlrev_b32 v{q+1}, 7, v{q+1}
          v_lshl_add_u32 v{q}, v{q}, 10, v{q+1}
          v_and_b32 v{q+1}, 6, v{vI}
          v_lshl_add_u32 v{q}, v{q+1}, 4, v{q}
          v_lshl_add_u32 v{q}, v{vGq}, 3, v{q}
          v_add_u32 v{vRA}, {S(sW3K)}, v{q}""")
    for c in range(1, 4): A(f"v_xor_b32 v{vRA+c}, {32*c}, v{vRA}")
    A("s_waitcnt lgkmcnt(0)\ns_barrier")

    A.label("L_attn")
    stamp("attn_start")
    tl = lambda t: tmp + 10 * t
    for t in range(5):
        A(f"ds_read2_b32 {vr(tl(t),2)}, v{vTI} offset0:{16*t} offset1:{80+16*t}")
        A(f"ds_read_b128 {vr(tl(t)+2,4)}, v{vTG} offset:{64*t}")
        A(f"ds_read_b128 {vr(tl(t)+6,4)}, v{vTG} offset:{320+64*t}")
    vV = gOWN
    for t in range(5):
        A(f"s_waitcnt lgkmcnt({3*(4-t)})")
        p = vr(tl(t), 2)
        for h in range(2):
            A(f"v_pk_fma_f32 {vr(accK[t]+2*h,2)}, {vr(vCSK+2*h,2)}, {p}, {vr(accK[t]+2*h,2)} op_sel_hi:[1,0,1]")
            A(f"v_pk_fma_f32 {vr(accV[t]+2*h,2)}, {vr(tl(t)+2+2*h,2)}, {vr(vCSV,2)}, {vr(accV[t]+2*h,2)} op_sel_hi:[1,0,1]")
            if t: A(f"v_pk_fma_f32 {vr(accQ[t]+2*h,2)}, {vr(vCSQ+2*h,2)}, {p}, {vr(accQ[t]+2*h,2)} op_sel_hi:[1,0,1]")
        for h in range(2):
            A(f"v_pk_mul_f32 {vr(accK[t]+2*h,2)}, {vr(accK[t]+2*h,2)}, {p} op_sel:[0,1] op_sel_hi:[1,1]")
            A(f"v_pk_mul_f32 {vr(accV[t]+2*h,2)}, {vr(accV[t]+2*h,2)}, {vr(tl(t)+6+2*h,2)}")
        for h in range(2):
            A(f"v_cvt_pk_bf16_f32 v{accK[t]+h}, v{accK[t]+2*h}, v{accK[t]+2*h+1}")
            if t: A(f"v_cvt_pk_bf16_f32 v{accQ[t]+h}, v{accQ[t]+2*h}, v{accQ[t]+2*h+1}")
            A(f"v_cvt_pk_bf16_f32 v{vV+2*t+h}, v{accV[t]+2*h}, v{accV[t]+2*h+1}")
        if t:
            A(f"v_mul_f32 v{tl(t)+1}, 0x3EB8AA3B, v{tl(t)+1}")
            A(mf(tl(t) + 2, vr(accK[t-1], 2), vr(accQ[t], 2), vr(vMP1 if t == 1 else vMP, 4), "16x16x16"))
            A(mf(tl(t) + 6, vr(accK[t], 2), vr(accQ[t], 2), vr(vMC, 4), "16x16x16"))
    dump(1, accQ[1], 12)
    vRX = tl(0)
    for c in range(4): A(f"ds_read_b64 {vr(vRX+2*c,2)}, v{vRA+c}")
    T = (1, 2, 3, 4)
    for t in T:
        for r in range(4): A(f"v_max_f32 v{tl(t)+2+r}, v{tl(t)+2+r}, v{tl(t)+6+r}")
        A(f"v_max3_f32 v{tl(t)}, v{tl(t)+2}, v{tl(t)+3}, v{tl(t)+4}\nv_max_f32 v{tl(t)}, v{tl(t)}, v{tl(t)+5}")
    a_, b_, c_, d_ = [tl(t) for t in T]
    A(f"""v_permlane32_swap_b32 v{a_}, v{b_}
          v_permlane32_swap_b32 v{c_}, v{d_}
          v_max_f32 v{a_}, v{a_}, v{b_}
          v_max_f32 v{c_}, v{c_}, v{d_}
          v_permlane16_swap_b32 v{a_}, v{c_}
          v_max_f32 v{a_}, v{a_}, v{c_}
          v_mov_b32 v{c_}, v{a_}
          v_permlane16_swap_b32 v{a_}, v{c_}
          v_mov_b32 v{b_}, v{a_}
          v_mov_b32 v{d_}, v{c_}
          v_permlane32_swap_b32 v{a_}, v{b_}
          v_permlane32_swap_b32 v{c_}, v{d_}""")
    for t in T: A(f"v_mul_f32 v{tl(t)}, v{tl(t)}, v{tl(t)+1}")
    for t in T:
        for r in range(4): A(f"v_fma_f32 v{tl(t)+2+r}, v{tl(t)+2+r}, v{tl(t)+1}, -v{tl(t)}")
        for r in range(4): A(f"v_exp_f32 v{tl(t)+2+r}, v{tl(t)+2+r}")
    for t in T:
        P = tl(t) + 6
        A(f"""v_cvt_pk_bf16_f32 v{tl(t)}, v{tl(t)+2}, v{tl(t)+3}
              v_cvt_pk_bf16_f32 v{tl(t)+1}, v{tl(t)+4}, v{tl(t)+5}
              v_and_b32 v{P}, v{vPM}, v{tl(t)}
              v_and_b32 v{P+1}, v{vPM+1}, v{tl(t)+1}
              v_bfi_b32 v{P+2}, v{vPM}, 0, v{tl(t)}
              v_bfi_b32 v{P+3}, v{vPM+1}, 0, v{tl(t)+1}""")
        A(mf(accK[t], vr(vONE, 2), vr(tl(t), 2), "0", "16x16x16"))
        A(mf(accV[t], vr(vV + 2 * (t - 1), 4), vr(P, 4), "0"))
    vO = accQ[0]
    for t in T: A(f"v_rcp_f32 v{accK[t]}, v{accK[t]}")
    for t in T:
        for h in range(2): A(f"v_pk_mul_f32 {vr(accV[t]+2*h,2)}, {vr(accV[t]+2*h,2)}, {vr(accK[t],2)} op_sel_hi:[1,0]")
        for h in range(2): A(f"v_cvt_pk_bf16_f32 v{vO+2*(t-1)+h}, v{accV[t]+2*h}, v{accV[t]+2*h+1}")
    for u in range(2):
        for h in range(2): A(f"v_permlane16_swap_b32 v{vO+4*u+h}, v{vO+4*u+2+h}")
    A(f"s_mov_b32 {t0}, 32768")
    dual_store([f"buffer_store_dwordx4 {vr(vO,4)}, v{vOST}, {S(SWS,4)}, 0 offen @",
                f"buffer_store_dwordx4 {vr(vO+4,4)}, v{vOST}, {S(SWS,4)}, {t0} offen @"])
    stamp("o_stored")
    accP = tmp + 16
    vOF = base + 8
    A("s_waitcnt lgkmcnt(0)")
    for c in range(4):
        for h in range(2):
            s_ = vRX + 2 * c + h; d = accP + 4 * c + 2 * h
            A(f"v_lshlrev_b32 v{d}, 16, v{s_}\nv_and_b32 v{d+1}, 0xFFFF0000, v{s_}")
            A(f"v_pk_fma_f32 {vr(d,2)}, {vr(d,2)}, {vr(vAL,2)}, {vr(vAL,2)} op_sel:[0,0,1] op_sel_hi:[1,0,1]")
    vFA, vFV, vFP = tmp + 8, tmp + 9, tmp + 10
    A(f"""s_lshl_b32 {t0}, {S(sC)}, 10
          s_add_u32 {t0}, {t0}, {FLAGS}
          s_lshl_b32 {t1}, {S(sM)}, 7
          s_lshl_b32 {t2}, {S(sWV)}, 2
          s_add_u32 {t1}, {t1}, {t2}
          v_mov_b32 v{vFA}, {t1}
          s_mul_i32 {t2}, {S(sLAY)}, {PH_O2-PH_O1}
          s_add_u32 {t2}, {t2}, {S(sTAG)}
          s_add_u32 {t2}, {t2}, {PH_O1}
          v_mov_b32 v{vFV}, {t2}
          v_bfe_u32 v{vFP}, v{vL}, 2, 3
          v_and_b32 v{vFP+1}, 3, v{vL}
          v_lshlrev_b32 v{vFP+1}, 2, v{vFP+1}
          v_lshl_add_u32 v{vFP}, v{vFP}, 7, v{vFP+1}
          s_waitcnt vmcnt(0)
          s_mov_b64 exec, 1""")
    dual_store([f"buffer_store_dword v{vFV}, v{vFA}, {S(SWS,4)}, {t0} offen @"])
    A("s_mov_b64 exec, -1\ns_barrier")
    if O.get("stop") == 1: A("s_branch L_exit")
    stamp("o_flagged")
    aO = lambda ks, c: 192 + 16 * (ks & 1) + 4 * c
    def woreads(ks):
        return [f"ds_read_b64_tr_b16 {ar(aO(ks,c)+2*hf,2)}, v{vWO+c} offset:{ks*4096 + hf*512}" for c in range(4) for hf in range(2)]
    for x in woreads(0): A(x)
    A.label("L_opoll")
    A(f"buffer_load_dword v{vFP+1}, v{vFP}, {S(SWS,4)}, {t0} offen sc1\ns_waitcnt vmcnt(0)\nv_cmp_ne_u32 vcc, {t2}, v{vFP+1}")
    spin()
    A("s_cbranch_vccnz L_opoll")
    stamp("o_seen")
    for ks in range(16):
        A(f"buffer_load_dwordx4 {vr(vOF+4*ks,4)}, v{vOLD}, {S(SWS,4)}, s{sROT+(ks>>1)} offen offset:{(ks&1)*1024} sc1")
    for ks in range(16):
        R = woreads(ks + 1) if ks < 15 else []
        A(f"s_waitcnt vmcnt({15-ks}) lgkmcnt(0)")
        for c in range(4):
            A(mf(accP + 4 * c, ar(aO(ks, c), 4), vr(vOF + 4 * ks, 4), vr(accP + 4 * c, 4)))
            for x in R[2 * c:2 * c + 2]: A(x)
    stamp("p2_end")
    vX = base
    for c in range(4):
        for h in range(2): A(f"v_cvt_pk_bf16_f32 v{vX+2*c+h}, v{accP+4*c+2*h}, v{accP+4*c+2*h+1}")
    for u in range(2):
        for h in range(2): A(f"v_permlane16_swap_b32 v{vX+4*u+h}, v{vX+4*u+2+h}")
    gS, gG = tmp, tmp + 4
    A(mf(gG, vr(vX, 4), vr(vX, 4), "0")); A(mf(gS, vr(vWR, 4), vr(vX, 4), "0"))
    A(mf(gG, vr(vX + 4, 4), vr(vX + 4, 4), vr(gG, 4))); A(mf(gS, vr(vWR + 4, 4), vr(vX + 4, 4), vr(gS, 4)))
    A(f"s_add_u32 {t2}, {t2}, 1\ns_cmp_eq_u32 {S(sLAY)}, 0\ns_cbranch_scc0 L_nox1")
    dual_store([f"buffer_store_dwordx4 {vr(vX,4)}, v{vXST}, {S(SWS,4)}, 0 offen @",
                f"buffer_store_dwordx4 {vr(vX+4,4)}, v{vXST}, {S(SWS,4)}, 0 offen offset:1024 @"])
    A.label("L_nox1")
    diag(gS + 2, gG)
    A(f"v_mov_b32 v{gS+3}, {t2}\ns_mov_b64 exec, {S(sMV,2)}")
    dual_store([f"buffer_store_dwordx4 {vr(gS,4)}, v{vSTA}, {S(SWS,4)}, 0 offen @"])
    A("s_mov_b64 exec, -1")
    dump(2, vX, 8)
    stamp("stats_out")
    A(f"""s_lshl_b32 {t3}, {S(sLAY)}, 2
          s_add_u32 {t3}, {t3}, {S(sWV)}
          s_cmp_eq_u32 {t3}, 3
          s_cbranch_scc0 L_nohalo_st
          v_bfe_u32 v{tmp+12}, v{vXST}, 8, 2
          v_and_b32 v{tmp+13}, 7, v{vI}
          v_lshlrev_b32 v{tmp+13}, 4, v{tmp+13}
          v_lshl_add_u32 v{tmp+12}, v{tmp+12}, 7, v{tmp+13}
          s_lshl_b32 {t4}, {S(sC)}, 13
          s_lshl_b32 {t5}, {S(sM)}, 10
          s_add_u32 {t4}, {t4}, {t5}
          s_add_u32 {t4}, {t4}, {HROW}
          s_mov_b32 exec_lo, 0xFF00FF00
          s_mov_b32 exec_hi, 0xFF00FF00
          buffer_store_dwordx4 {vr(vX,4)}, v{tmp+12}, {S(SWS,4)}, {t4} offen sc1
          buffer_store_dwordx4 {vr(vX+4,4)}, v{tmp+12}, {S(SWS,4)}, {t4} offen offset:512 sc1
          s_mov_b64 exec, -1
          L_nohalo_st:""")
    vXF = base + 8
    for d in range(8): A(f"v_lshlrev_b32 v{vXF+2*d}, 16, v{vX+d}\nv_and_b32 v{vXF+2*d+1}, 0xFFFF0000, v{vX+d}")
    g0, g1 = tmp + 16, tmp + 20
    A(f"s_mov_b32 {t1}, 4096")
    A.label("L_spoll")
    A(f"""buffer_load_dwordx4 {vr(g0,4)}, v{vSTL}, {S(SWS,4)}, 0 offen sc1
          buffer_load_dwordx4 {vr(g1,4)}, v{vSTL}, {S(SWS,4)}, {t1} offen sc1
          s_waitcnt vmcnt(0)
          v_cmp_ne_u32 vcc, {t2}, v{g0+3}
          v_cmp_ne_u32 s[{sT+4}:{sT+5}], {t2}, v{g1+3}
          s_or_b64 vcc, vcc, s[{sT+4}:{sT+5}]""")
    spin()
    A("s_cbranch_vccnz L_spoll")
    stamp("stats_seen")
    A(f"""s_cmp_eq_u32 {S(sLAY)}, 0
          s_cbranch_scc0 L_noflag
          s_add_u32 {t4}, {S(sTAG)}, {PH_X1}
          v_mov_b32 v{vFV}, {t4}
          s_mov_b64 exec, 1""")
    dual_store([f"buffer_store_dword v{vFV}, v{vFA}, {S(SWS,4)}, {t0} offen offset:16 @"])
    A(f"""s_mov_b64 exec, -1
          s_cmp_eq_u32 {S(sWV)}, 3
          s_cbranch_scc0 L_noflag
          s_lshl_b32 {t4}, {S(sC)}, 10
          s_lshl_b32 {t5}, {S(sM)}, 7
          s_add_u32 {t4}, {t4}, {t5}
          s_add_u32 {t4}, {t4}, {HST}
          s_mov_b32 exec_lo, 0
          s_mov_b32 exec_hi, s{sMV+1}
          buffer_store_dwordx4 {vr(gS,4)}, v{tmp+13}, {S(SWS,4)}, {t4} offen sc1
          s_mov_b64 exec, -1
          L_noflag:""")
    def red3(a, b, c, d):
        A(f"""v_mov_b32 v{d}, v{c}
              v_permlane32_swap_b32 v{a}, v{b}
              v_permlane32_swap_b32 v{c}, v{d}
              v_add_f32 v{a}, v{a}, v{b}
              v_add_f32 v{c}, v{c}, v{d}
              v_permlane16_swap_b32 v{a}, v{c}
              v_add_f32 v{a}, v{a}, v{c}
              v_mov_b32 v{c}, v{a}
              v_permlane16_swap_b32 v{a}, v{c}
              v_mov_b32 v{b}, v{a}
              v_permlane32_swap_b32 v{a}, v{b}""")
    for r in range(3): A(f"v_add_f32 v{g0+r}, v{g0+r}, v{g1+r}")
    red3(g0, g0 + 1, g0 + 2, g0 + 3)
    nm, rs, var, vk = g1, g1 + 1, g0 + 2, g1 + 2
    A(f"""v_mul_f32 v{nm}, 0xBB000000, v{g0}
          v_mul_f32 v{var}, 0x3B000000, v{var}
          v_fma_f32 v{var}, -v{nm}, v{nm}, v{var}
          v_max_f32 v{var}, 0, v{var}
          v_add_f32 v{rs}, {EPS}, v{var}
          v_rsq_f32 v{rs}, v{rs}
          v_fma_f32 v{vk}, v{nm}, {S(sSUMW)}, v{g0+1}
          s_lshl_b32 {t4}, {S(sC)}, 6
          s_lshl_b32 {t5}, {S(sWV)}, 4
          s_add_u32 {t4}, {t4}, {t5}
          v_add_u32 v{g0}, {t4}, v{vI}
          v_mul_f32 v{vk}, v{vk}, v{rs}
          v_ashrrev_i32 v{g0+1}, 31, v{vk}
          v_or_b32 v{g0+1}, 0x80000000, v{g0+1}
          v_xor_b32 v{vk}, v{vk}, v{g0+1}
          v_and_b32 v{vk}, 0xFFFFF800, v{vk}
          v_or_b32 v{vk}, v{vk}, v{g0}
          v_mov_b32 v{g0}, v{vk}""")
    for sh in (8, 4, 2, 1): A(f"v_max_u32_dpp v{g0}, v{g0}, v{g0} row_ror:{sh} row_mask:0xf bank_mask:0xf")
    A(f"""s_lshl_b32 {t4}, {S(sWV)}, 2
          s_add_u32 {t4}, {t4}, {T_KEY}
          v_mov_b32 v{g0+1}, {t4}
          ds_write_b32 v{g0+1}, v{g0}
          v_add_f32 v{vAL}, 1.0, v{rs}
          v_mul_f32 v{vAL+1}, v{nm}, v{rs}
          v_mul_f32 v{g0+3}, v{vAL}, v{vAL}
          v_mov_b32 v{g0+1}, {EPS}
          v_fma_f32 v{g0+3}, v{var}, v{g0+3}, v{g0+1}
          v_rsq_f32 v{g0+3}, v{g0+3}
          s_lshl_b32 {t4}, {S(sWV)}, 6
          v_add_u32 v{g0+1}, {t4}, v{vTI}
          v_mul_f32 v{g0+3}, v{g0+3}, v{vAL}
          ds_write2_b32 v{g0+1}, v{nm}, v{g0+3} offset0:16 offset1:96
          ds_write_b32 v{g0+1}, v{rs} offset:{4*176}
          v_mov_b32 v{g0+1}, {T_KEY}
          s_waitcnt lgkmcnt(0)
          s_barrier
          ds_read_b128 {vr(tmp+24,4)}, v{g0+1}""")
    vXN = base + 24
    for d in range(8):
        A(f"v_pk_fma_f32 {vr(vXN+8+2*d,2)}, {vr(vXF+2*d,2)}, {vr(nm,2)}, {vr(vAL,2)} op_sel:[0,1,1] op_sel_hi:[1,1,1]")
    A(f"""s_waitcnt lgkmcnt(0)
          v_max3_u32 v{tmp+24}, v{tmp+24}, v{tmp+25}, v{tmp+26}
          v_max_u32 v{tmp+24}, v{tmp+24}, v{tmp+27}
          v_mov_b32 v{tmp+25}, {t2}
          s_lshl_b32 {t4}, {S(sLAY)}, 5
          s_add_u32 {t4}, {t4}, {S(sC)}
          s_add_u32 {t5}, {S(sM)}, {S(sWV)}
          s_cmp_eq_u32 {t5}, 0
          s_cbranch_scc0 L_nocand
          s_lshl_b32 {t5}, {t4}, 7
          s_add_u32 {t5}, {t5}, {CAND}
          s_mov_b64 exec, 1
          buffer_store_dwordx2 {vr(tmp+24,2)}, v{vL}, {S(SWS,4)}, {t5} offen sc1
          s_mov_b64 exec, -1
          L_nocand:""")
    for d in range(8): A(f"v_cvt_pk_bf16_f32 v{vXN+d}, v{vXN+8+2*d}, v{vXN+9+2*d}")
    A(f"""v_bfe_u32 v{tmp+26}, v{vXST}, 8, 2
          v_lshlrev_b32 v{tmp+26}, 4, v{tmp+26}
          s_lshl_b32 {t4}, {t4}, 10
          s_lshl_b32 {t5}, {S(sM)}, 7
          s_add_u32 {t4}, {t4}, {t5}
          s_add_u32 {t4}, {t4}, {CROW}
          v_cmp_eq_u32 vcc, v{tmp+24}, v{vk}
          s_and_saveexec_b64 s[{sT+6}:{sT+7}], vcc
          s_cbranch_execz L_norow
          buffer_store_dwordx4 {vr(vXN,4)}, v{tmp+26}, {S(SWS,4)}, {t4} offen sc1
          buffer_store_dwordx4 {vr(vXN+4,4)}, v{tmp+26}, {S(SWS,4)}, {t4} offen offset:64 sc1
          L_norow:
          s_mov_b64 exec, -1""")
    stamp("cand_out")
    A(f"s_cmp_eq_u32 {S(sLAY)}, 0\ns_cbranch_scc0 L_final")

    A(f"""v_and_b32 v{tmp}, 7, v{vL}
          v_lshlrev_b32 v{tmp}, 7, v{tmp}
          s_lshl_b32 {t4}, {S(sWV)}, 2
          v_add_u32 v{tmp}, {t4}, v{tmp}
          s_add_u32 {t4}, {S(sTAG)}, {PH_X1}
          v_add_u32 v{tmp+2}, {X1BUF-OBUF}, v{vOLD}""")
    A.label("L_xpoll")
    A(f"buffer_load_dword v{tmp+1}, v{tmp}, {S(SWS,4)}, {t0} offen offset:16 sc1\ns_waitcnt vmcnt(0)\nv_cmp_ne_u32 vcc, {t4}, v{tmp+1}")
    spin()
    A("s_cbranch_vccnz L_xpoll")
    A(f"s_lshl_b32 {t4}, {S(sWV)}, 14")
    for p in range(8):
        A(f"s_add_u32 m0, {t4}, {p*2048}\ns_nop 0")
        for e in range(2): A(f"buffer_load_dwordx4 v{tmp+2}, {S(SWS,4)}, s{sROT+p} offen offset:{e*1024} sc1 lds")
    A(f"""v_mov_b32 v{vA}, v{vL16}
          v_add_u32 v{vA+1}, 1024, v{vL16}
          v_and_b32 v{tmp}, 7, v{vI}
          v_lshlrev_b32 v{tmp}, 4, v{tmp}
          v_lshl_add_u32 v{tmp}, v{vGq}, 7, v{tmp}
          v_add_u32 v{tmp}, {XH}, v{tmp}
          v_add_u32 v{tmp+1}, 512, v{tmp}
          v_cmp_gt_u32 vcc, 8, v{vI}
          v_cndmask_b32 v{vH}, v{tmp}, v{vH}, vcc
          v_cndmask_b32 v{vH+1}, v{tmp+1}, v{vH+1}, vcc
          v_lshrrev_b32 v{tmp}, 1, v{vGq}
          v_lshlrev_b32 v{tmp}, 8, v{tmp}
          v_lshl_add_u32 v{tmp}, v{vI}, 4, v{tmp}
          v_and_b32 v{tmp+1}, 1, v{vGq}
          v_lshl_add_u32 v{tmp}, v{tmp+1}, 3, v{tmp}
          v_add_u32 v{vRA}, {S(sW3K)}, v{tmp}""")
    for c in range(1, 4): A(f"v_add_u32 v{vRA+c}, {512*c}, v{vRA}")
    vWDR = tmp + 16
    fE = lambda t, mat, par: vFG + 16 * t + 8 * mat + 4 * par
    A(f"""s_cmp_lt_u32 {S(sF)}, 43
          s_cbranch_scc0 L_noffnld
          s_mul_i32 {t4}, {S(sWV)}, {128*2752}
          s_lshl_b32 {t5}, {S(sF)}, 6
          s_add_u32 {t4}, {t4}, {t5}
          v_mul_u32_u24 v{tmp}, {8*2752}, v{vGq}
          v_lshl_add_u32 v{tmp}, v{vI}, 2, v{tmp}
          v_add_u32 v{tmp}, {t4}, v{tmp}
          s_lshl_b32 {t4}, {S(sWV)}, 8
          s_lshl_b32 {t5}, {S(sF)}, 15
          s_add_u32 {t4}, {t4}, {t5}
          v_lshlrev_b32 v{tmp+1}, 13, v{vGq}
          v_lshl_add_u32 v{tmp+1}, v{vI}, 4, v{tmp+1}
          v_add_u32 v{tmp+1}, {t4}, v{tmp+1}
          s_mov_b32 {t5}, 4096""")
    for e in range(8):
        A(f"buffer_load_dwordx4 {vr(vWDR+4*e,4)}, v{tmp+1}, {S(SWD,4)}, {t5 if e >= 4 else 0} offen offset:{(e&3)*1024}")
    def gu_loads(t):
        for d in range(4):
            A(f"s_mov_b32 {t4}, {(32*t + 2*d) * 2752}")
            for mat, srd in ((0, SWG), (1, SWU)):
                for par in range(2):
                    A(f"buffer_load_dword v{fE(t,mat,par)+d}, v{tmp}, {S(srd,4)}, {t4} offen offset:{par*2752}")
    gu_loads(0); gu_loads(1)
    A("s_waitcnt vmcnt(40)")
    gu_loads(2)
    A("s_waitcnt vmcnt(40)")
    gu_loads(3)
    A("s_branch L_xwait2")
    A.label("L_noffnld")
    A("s_waitcnt vmcnt(0)")
    A.label("L_xwait2")
    A("s_barrier")
    stamp("x1_landed")
    def gemm_tile(t):
        A.label(f"L_tile{t}")
        NB = 4
        fr = lambda ks: 192 + 4 * (ks % NB)
        def rd(ks):
            if t == 0: return f"ds_read_b128 {ar(fr(ks),4)}, v{vH+(ks&1)} offset:{(ks>>1)*1024}"
            return f"ds_read_b128 {ar(fr(ks),4)}, v{vA+(ks&1)} offset:{(t-1)*16384 + (ks>>1)*2048}"
        for ks in range(NB - 1): A(rd(ks))
        for ks in range(16):
            n = min(NB - 2, 15 - ks)
            A(f"s_waitcnt lgkmcnt({n})")
            x = ar(fr(ks), 4); C = lambda d: "0" if ks == 0 else vr(d, 4)
            A(mf(accK[t], ar(aW(ks, 1), 4), x, C(accK[t])))
            if ks + NB - 1 < 16: A(rd(ks + NB - 1))
            A(mf(accV[t], x, ar(aW(ks, 2), 4), C(accV[t])))
            if t: A(mf(accQ[t], ar(aW(ks, 0), 4), x, C(accQ[t])))
        A(f"s_cmp_eq_u32 {S(sRET)}, 0\ns_cbranch_scc0 L_patched")
    for t in range(1, O["ffn_after"] + 1): gemm_tile(t)
    A(f"""s_cmp_lt_u32 {S(sF)}, 43
          s_cbranch_scc0 L_ffn_ret1
          s_mov_b32 {t4}, 0x05040100
          s_mov_b32 {t5}, 0x07060302
          s_waitcnt vmcnt(0)""")
    for n in range(8):
        for d in range(4):
            A(f"v_perm_b32 v{tmp+(d&1)}, v{vWDR+8*d+4+(n>>1)}, v{vWDR+8*d+(n>>1)}, {t5 if n & 1 else t4}")
            A(f"v_accvgpr_write_b32 a{aWDN+4*n+d}, v{tmp+(d&1)}")
    for t in range(4):
        for mat in range(2):
            for d in range(4):
                e_, o_ = fE(t, mat, 0) + d, fE(t, mat, 1) + d
                A(f"v_perm_b32 v{tmp}, v{o_}, v{e_}, {t4}\nv_perm_b32 v{o_}, v{o_}, v{e_}, {t5}\nv_mov_b32 v{e_}, v{tmp}")
    A("s_branch L_bpoll0")
    A.label("L_ffn_ret1")
    stamp("ffn_ret1")
    for t in range(O["ffn_after"] + 1, 5): gemm_tile(t)
    stamp("tiles_done")
    A(f"""s_cmp_eq_u32 {S(sPREV)}, 255
          s_cbranch_scc1 L_nohalo
          s_lshl_b32 {t4}, {S(sPREV)}, 10
          s_add_u32 {t4}, {t4}, {HST}
          s_add_u32 {t5}, {S(sTAG)}, {PH_S1}""")
    A.label("L_hpoll")
    A(f"buffer_load_dwordx4 {vr(tmp,4)}, v{vL16}, {S(SWS,4)}, {t4} offen sc1\ns_waitcnt vmcnt(0)\nv_cmp_ne_u32 vcc, {t5}, v{tmp+3}")
    spin()
    A("s_cbranch_vccnz L_hpoll")
    A(f"""s_lshl_b32 {t4}, {S(sPREV)}, 13
          s_add_u32 {t4}, {t4}, {HROW}
          s_lshl_b32 {t3}, {S(sWV)}, 1
          s_add_u32 {t3}, {t3}, {S(sG)}
          s_lshl_b32 {t5}, {S(sWV)}, 11""")
    for e in range(2):
        A(f"""s_add_u32 {t2}, {t3}, {e}
              s_and_b32 {t2}, {t2}, 7
              s_lshl_b32 {t2}, {t2}, 10
              s_add_u32 {t2}, {t2}, {t4}
              s_add_u32 m0, {t5}, {XH + e*1024}
              s_nop 0
              buffer_load_dwordx4 v{vL16}, {S(SWS,4)}, {t2} offen sc1 lds""")
    h1, h2 = tmp, tmp + 2
    for x in (h1, h2): A(f"v_add_f32_dpp v{x}, v{x}, v{x} row_ror:8 row_mask:0xf bank_mask:0xf")
    red3(h1, tmp + 1, h2, tmp + 3)
    A(f"""v_mul_f32 v{tmp+4}, 0xBB000000, v{h1}
          v_mul_f32 v{h2}, 0x3B000000, v{h2}
          v_fma_f32 v{h2}, -v{tmp+4}, v{tmp+4}, v{h2}
          v_max_f32 v{h2}, 0, v{h2}
          v_add_f32 v{tmp+5}, {EPS}, v{h2}
          v_rsq_f32 v{tmp+5}, v{tmp+5}
          v_mov_b32 v{tmp+1}, {EPS}
          v_add_f32 v{tmp+6}, 1.0, v{tmp+5}
          v_mul_f32 v{tmp+7}, v{tmp+6}, v{tmp+6}
          v_fma_f32 v{tmp+7}, v{h2}, v{tmp+7}, v{tmp+1}
          v_rsq_f32 v{tmp+7}, v{tmp+7}
          s_nop 0
          v_mul_f32 v{tmp+7}, v{tmp+7}, v{tmp+6}
          ds_write2_b32 v{vTI}, v{tmp+4}, v{tmp+7} offset0:0 offset1:80
          ds_write_b32 v{vTI}, v{tmp+5} offset:{4*160}
          s_waitcnt vmcnt(0) lgkmcnt(0)
          s_barrier""")
    A.label("L_nohalo")
    stamp("halo_in")
    gemm_tile(0)
    stamp("halo_tile")
    A(f"s_cmp_lt_u32 {S(sF)}, 43\ns_cbranch_scc0 L_bpoll0")
    A.label("L_ffn_ret2")
    stamp("winner_known")
    A(f"""s_cmp_eq_u32 s2, 0
          s_cbranch_scc0 L_noepoch
          v_mov_b32 v{tmp}, {S(sTAG)}
          s_mov_b64 exec, 1
          buffer_store_dword v{tmp}, v{vL}, {S(SWS,4)}, 0 offen sc1
          s_mov_b64 exec, -1
          L_noepoch:
          s_mov_b32 {S(sLAY)}, 1
          s_bfe_u32 {t0}, {S(sKEY)}, 0x50006
          s_and_b32 {t1}, {S(sKEY)}, 63
          s_and_b32 {S(sI)}, {S(sKEY)}, 15
          s_lshr_b32 {S(sRT)}, {t1}, 4
          s_add_u32 {S(sRT)}, {S(sRT)}, 1
          s_lshl_b32 {t2}, {S(sRT)}, 14
          s_lshl_b32 {t3}, {S(sI)}, 4
          s_add_u32 {t2}, {t2}, {t3}
          s_sub_u32 {t2}, {t2}, 16384
          s_mov_b32 {t3}, 8
          s_cmp_eq_u32 {t0}, {S(sC)}
          s_cbranch_scc1 L_patch
          s_cmp_eq_u32 {t0}, {S(sPREV)}
          s_cbranch_scc0 L_attn
          s_cmp_ge_u32 {t1}, 57
          s_cbranch_scc0 L_attn
          s_mov_b32 {S(sRT)}, 0
          s_lshl_b32 {t2}, {S(sI)}, 4
          s_add_u32 {t2}, {t2}, {XH - 128}
          s_mov_b32 {t3}, 7""")
    A.label("L_patch")
    pa, px, pb, psel, pya, pyb, psig = tmp, tmp + 2, tmp + 4, tmp + 8, tmp + 12, tmp + 13, tmp + 14
    vY = tmp + 16
    yacc = tmp + 48
    def sigma(dst):
        A(f"""s_and_b32 {t4}, {S(sKEY)}, 0xFFFFF800
              s_ashr_i32 {t5}, {t4}, 31
              s_not_b32 {t5}, {t5}
              s_or_b32 {t5}, {t5}, 0x80000000
              s_xor_b32 {t4}, {t4}, {t5}
              v_mov_b32 v{dst}, 0xBFB8AA3B
              v_mul_f32 v{dst}, {t4}, v{dst}
              v_exp_f32 v{dst}, v{dst}
              s_nop 0
              v_add_f32 v{dst}, 1.0, v{dst}
              v_rcp_f32 v{dst}, v{dst}""")
    def selector(dst, scr):
        A(f"""v_and_b32 v{scr}, 1, v{vI}
              v_lshlrev_b32 v{scr}, 4, v{scr}
              v_mov_b32 v{scr+1}, 0x3F80
              v_lshlrev_b32 v{scr}, v{scr}, v{scr+1}
              v_bfe_u32 v{scr+1}, v{vI}, 1, 2""")
        for d in range(4): A(f"v_cmp_eq_u32 vcc, {d}, v{scr+1}\nv_cndmask_b32 v{dst+d}, 0, v{scr}, vcc")
    A(f"""s_lshl_b32 {t4}, {S(sWV)}, 4
          s_lshl_b32 {t5}, {S(sG)}, 3
          s_sub_u32 {t4}, {t4}, {t5}
          v_add_u32 v{pa}, {t4}, v{vI}
          v_and_b32 v{pa}, 63, v{pa}
          v_lshlrev_b32 v{pa}, {t3}, v{pa}
          v_and_b32 v{pa+1}, 1, v{vGq}
          v_lshl_add_u32 v{pa}, v{pa+1}, 3, v{pa}
          v_add_u32 v{pa}, {t2}, v{pa}
          s_lshl_b32 {t4}, {S(sRT)}, 4
          s_add_u32 {t4}, {t4}, {S(sI)}
          s_lshl_b32 {t4}, {t4}, 2
          s_add_u32 {t4}, {t4}, {T_NM}
          v_mov_b32 v{pa+1}, {t4}
          ds_read_b64 {vr(px,2)}, v{pa}
          ds_read2_b32 {vr(vY,2)}, v{pa+1} offset0:0 offset1:160""")
    selector(psel, pya)
    sigma(psig)
    A(f"""s_lshl_b32 {t4}, {S(sWV)}, 8
          s_add_u32 {t4}, {t4}, {YPART}
          v_lshlrev_b32 v{pya}, 10, v{vGq}
          v_lshl_add_u32 v{pya}, v{vI}, 4, v{pya}
          v_add_u32 v{pya}, {t4}, v{pya}
          v_mov_b32 v{pyb}, {OOB}
          v_cmp_gt_u32 vcc, 3, v{vGq}
          v_cndmask_b32 v{pyb}, v{pyb}, v{pya}, vcc
          s_waitcnt lgkmcnt(0)
          v_mul_f32 v{vY}, v{vY}, v{vY+1}
          v_add_f32 v{vY+1}, 1.0, v{vY+1}""")
    for h in range(2):
        A(f"v_lshlrev_b32 v{pb+2*h}, 16, v{px+h}\nv_and_b32 v{pb+2*h+1}, 0xFFFF0000, v{px+h}")
        A(f"v_pk_fma_f32 {vr(pb+2*h,2)}, {vr(pb+2*h,2)}, {vr(vY,2)}, {vr(vY,2)} op_sel:[0,1,0] op_sel_hi:[1,1,0]")
    A(f"""s_add_u32 {t4}, {S(sWV)}, 1
          s_cmp_eq_u32 {t4}, {S(sRT)}
          s_cselect_b32 {t4}, {S(sI)}, 99
          v_cmp_eq_u32 vcc, {t4}, v{vI}
          v_cndmask_b32 v{vAL}, v{vAL}, 1.0, vcc
          v_cndmask_b32 v{vAL+1}, v{vAL+1}, 0, vcc""")
    for bi, (lo, hi) in enumerate(((0, 8), (8, 11))):
        A.label(f"L_ypoll{bi}")
        for t in range(lo, hi):
            A(f"s_mov_b32 {t4}, {t*4096}\nbuffer_load_dwordx4 {vr(vY+4*(t-lo),4)}, v{pyb if t == 10 else pya}, {S(SWS,4)}, {t4} offen sc1")
        A(f"v_mov_b32 v{px}, 0")
        for t in range(lo, hi):
            y = vY + 4 * (t - lo)
            A(f"s_waitcnt vmcnt({hi-1-t})\nv_max3_u32 v{px}, v{px}, v{y}, v{y+1}\nv_max3_u32 v{px}, v{px}, v{y+2}, v{y+3}")
        A(f"v_cmp_eq_u32 vcc, -1, v{px}")
        spin()
        A(f"s_cbranch_vccnz L_ypoll{bi}")
        for t in range(lo, hi):
            A(mf(yacc, vr(psel, 4), vr(vY + 4 * (t - lo), 4), "0" if t == 0 else vr(yacc, 4)))
    stamp("y_in")
    for r in range(4): A(f"v_fma_f32 v{pb+r}, v{yacc+r}, v{psig}, v{pb+r}")
    A(f"""v_cvt_pk_bf16_f32 v{px}, v{pb}, v{pb+1}
          v_cvt_pk_bf16_f32 v{px+1}, v{pb+2}, v{pb+3}
          v_mov_b32 v{pb}, 0
          v_mov_b32 v{pb+1}, 0
          ds_write_b64 v{pa}, {vr(px,2)}
          v_dot2c_f32_bf16 v{pb}, v{px}, v{vONE}
          v_dot2c_f32_bf16 v{pb+1}, v{px}, v{px}
          v_dot2c_f32_bf16 v{pb}, v{px+1}, v{vONE}
          v_dot2c_f32_bf16 v{pb+1}, v{px+1}, v{px+1}""")
    for sh in (8, 4, 2, 1):
        for x in (pb, pb + 1): A(f"v_add_f32_dpp v{x}, v{x}, v{x} row_ror:{sh} row_mask:0xf bank_mask:0xf")
    A(f"""v_and_b32 v{pb+2}, 1, v{vGq}
          v_lshlrev_b32 v{pb+2}, 3, v{pb+2}
          s_lshl_b32 {t4}, {S(sWV)}, 4
          s_add_u32 {t4}, {t4}, {T_PST}
          v_add_u32 v{pb+2}, {t4}, v{pb+2}
          ds_write_b64 v{pb+2}, {vr(pb,2)}
          s_mov_b32 {S(sRET)}, 1
          s_waitcnt lgkmcnt(0)
          s_barrier""")
    for t in range(4): A(f"s_cmp_eq_u32 {S(sRT)}, {t}\ns_cbranch_scc1 L_tile{t}")
    A("s_branch L_tile4")
    A.label("L_patched")
    A(f"v_mov_b32 v{pb}, {T_PST}")
    for w in range(4): A(f"ds_read_b128 {vr(vY+4*w,4)}, v{pb} offset:{16*w}")
    A("s_waitcnt lgkmcnt(0)")
    for w in range(1, 8): A(f"v_pk_add_f32 {vr(vY,2)}, {vr(vY,2)}, {vr(vY+2*w,2)}")
    A(f"""v_mul_f32 v{vY}, 0xBB000000, v{vY}
          v_mul_f32 v{vY+1}, 0x3B000000, v{vY+1}
          v_fma_f32 v{vY+1}, -v{vY}, v{vY}, v{vY+1}
          v_max_f32 v{vY+1}, 0, v{vY+1}
          v_add_f32 v{vY+1}, {EPS}, v{vY+1}
          v_rsq_f32 v{vY+1}, v{vY+1}
          s_nop 0
          ds_write2_b32 v{pa+1}, v{vY}, v{vY+1} offset0:0 offset1:80
          s_branch L_attn""")

    A.label("L_final")
    vOUT = base + 24
    for d in range(8):
        A(f"v_pk_fma_f32 {vr(vXF+2*d,2)}, {vr(vXF+2*d,2)}, {vr(vAL,2)}, {vr(vAL,2)} op_sel:[0,0,1] op_sel_hi:[1,0,1]")
    A(f"""v_lshlrev_b32 v{tmp+27}, 1, v{tmp+26}
          v_add_u32 v{tmp+27}, {T_ROW}, v{tmp+27}
          s_and_saveexec_b64 s[{sT+6}:{sT+7}], vcc""")
    for k in range(4): A(f"ds_write_b128 v{tmp+27}, {vr(vXF+4*k,4)} offset:{(k>>1)*128 + (k&1)*16}")
    A("s_mov_b64 exec, -1")
    vPK = base + 48
    for d in range(8): A(f"v_cvt_pk_bf16_f32 v{vPK+d}, v{vXF+2*d}, v{vXF+2*d+1}")
    A(f"""s_lshl_b32 {t4}, {S(sWV)}, 14
          v_lshl_add_u32 v{tmp+27}, v{vI}, 7, v{tmp+26}
          v_add_u32 v{tmp+27}, {t4}, v{tmp+27}
          v_add_u32 v{tmp+28}, {t4}, v{vL16}
          ds_write_b128 v{tmp+27}, {vr(vPK,4)}
          ds_write_b128 v{tmp+27}, {vr(vPK+4,4)} offset:64
          s_waitcnt lgkmcnt(0)
          ds_read_b128 {vr(vPK,4)}, v{tmp+28}
          ds_read_b128 {vr(vPK+4,4)}, v{tmp+28} offset:1024
          s_lshr_b32 {t0}, {S(sG)}, 1
          s_lshl_b32 {t0}, {t0}, 2
          s_add_u32 {t0}, {t0}, {S(sS)}
          s_lshl_b32 {t0}, {t0}, 17
          s_and_b32 {t1}, {S(sG)}, 1
          s_lshl_b32 {t1}, {t1}, 10
          s_add_u32 {t0}, {t0}, {t1}
          s_lshl_b32 {t1}, {S(sM)}, 7
          s_add_u32 {S(sXB)}, {t0}, {t1}
          s_lshl_b32 {t1}, {S(sWV)}, 15
          s_add_u32 {t0}, {S(sXB)}, {t1}
          s_add_u32 {t1}, {t0}, 16384
          v_lshrrev_b32 v{tmp+27}, 3, v{vL}
          v_and_b32 v{tmp+28}, 7, v{vL}
          v_lshlrev_b32 v{tmp+28}, 4, v{tmp+28}
          v_lshl_add_u32 v{tmp+27}, v{tmp+27}, 11, v{tmp+28}
          s_waitcnt lgkmcnt(0)
          buffer_store_dwordx4 {vr(vPK,4)}, v{tmp+27}, {S(SOUT,4)}, {t0} offen sc1
          buffer_store_dwordx4 {vr(vPK+4,4)}, v{tmp+27}, {S(SOUT,4)}, {t1} offen sc1""")
    if O["wbl2"]:
        A(f"""s_lshl_b32 {t4}, {S(sM)}, 2
              s_add_u32 {t4}, {t4}, {S(sWV)}
              s_cmp_eq_u32 {t4}, 31
              s_cbranch_scc0 L_nowb
              buffer_wbl2 sc1
              L_nowb:""")
    stamp("out_stored")
    A.label("L_bpoll0")
    bk = tmp
    A(f"""v_and_b32 v{bk+2}, 31, v{vL}
          v_lshlrev_b32 v{bk+2}, 7, v{bk+2}
          s_lshl_b32 {t4}, {S(sLAY)}, 12
          s_add_u32 {t4}, {t4}, {CAND}
          s_mul_i32 {t5}, {S(sLAY)}, {PH_S2-PH_S1}
          s_add_u32 {t5}, {t5}, {S(sTAG)}
          s_add_u32 {t5}, {t5}, {PH_S1}""")
    A.label("L_bpoll")
    A(f"buffer_load_dwordx2 {vr(bk,2)}, v{bk+2}, {S(SWS,4)}, {t4} offen sc1\ns_waitcnt vmcnt(0)\nv_cmp_ne_u32 vcc, {t5}, v{bk+1}")
    spin()
    A("s_cbranch_vccnz L_bpoll")
    for sh in (8, 4, 2, 1): A(f"v_max_u32_dpp v{bk}, v{bk}, v{bk} row_ror:{sh} row_mask:0xf bank_mask:0xf")
    A(f"""v_readlane_b32 {t4}, v{bk}, 0
          v_readlane_b32 {t5}, v{bk}, 16
          s_max_u32 {S(sKEY)}, {t4}, {t5}""")
    stamp("b_seen")
    A(f"""s_cmp_lt_u32 {S(sF)}, 43
          s_cbranch_scc0 L_ffn_done
          s_bfe_u32 {t4}, {S(sKEY)}, 0x50006
          s_lshl_b32 {t5}, {S(sLAY)}, 5
          s_add_u32 {t4}, {t4}, {t5}
          s_lshl_b32 {t4}, {t4}, 10
          s_lshl_b32 {t5}, {S(sWV)}, 8
          s_add_u32 {t4}, {t4}, {t5}
          s_add_u32 {t4}, {t4}, {CROW}
          v_lshlrev_b32 v{bk}, 4, v{vGq}""")
    xr = tmp + 4; fa = tmp + 20
    A.label("L_rpoll")
    for t in range(4): A(f"buffer_load_dwordx4 {vr(xr+4*t,4)}, v{bk}, {S(SWS,4)}, {t4} offen offset:{64*t} sc1")
    A(f"v_mov_b32 v{bk+1}, 0\ns_waitcnt vmcnt(0)")
    for t in range(4): A(f"v_max3_u32 v{bk+1}, v{bk+1}, v{xr+4*t}, v{xr+4*t+1}\nv_max3_u32 v{bk+1}, v{bk+1}, v{xr+4*t+2}, v{xr+4*t+3}")
    A(f"v_cmp_eq_u32 vcc, -1, v{bk+1}")
    spin()
    A("s_cbranch_vccnz L_rpoll")
    stamp("row_in")
    for t in range(4):
        for k in range(4):
            A(mf(fa + 4 * k, vr(xr + 4 * t, 4), vr(fE(t, k >> 1, k & 1), 4), "0" if t == 0 else vr(fa + 4 * k, 4)))
    A(f"""s_lshl_b32 {t4}, {S(sWV)}, 8
          s_add_u32 {t4}, {t4}, {T_FFN}
          v_lshlrev_b32 v{bk}, 4, v{vI}
          v_add_u32 v{bk}, {t4}, v{bk}
          v_and_b32 v{bk+1}, 3, v{vI}
          v_lshl_add_u32 v{bk+1}, v{vGq}, 2, v{bk+1}
          v_lshlrev_b32 v{bk+1}, 4, v{bk+1}
          v_add_u32 v{bk+1}, {T_FFN}, v{bk+1}
          v_mov_b32 v{fa+1}, v{fa+4}
          v_mov_b32 v{fa+2}, v{fa+8}
          v_mov_b32 v{fa+3}, v{fa+12}
          s_mov_b64 exec, 0xFFFF
          ds_write_b128 v{bk}, {vr(fa,4)}
          s_mov_b64 exec, -1
          s_waitcnt lgkmcnt(0)
          s_barrier""")
    for w in range(4): A(f"ds_read_b128 {vr(xr+4*w,4)}, v{bk+1} offset:{256*w}")
    A(f"""s_lshl_b32 {t4}, {S(sLAY)}, 16
          s_lshl_b32 {t5}, {S(sF)}, 10
          s_add_u32 {t4}, {t4}, {t5}
          s_lshl_b32 {t5}, {S(sWV)}, 8
          s_add_u32 {t4}, {t4}, {t5}
          s_add_u32 {t4}, {t4}, {YPART}
          s_waitcnt lgkmcnt(0)""")
    for h in range(2):
        A(f"v_pk_add_f32 {vr(xr+2*h,2)}, {vr(xr+2*h,2)}, {vr(xr+4+2*h,2)}\nv_pk_add_f32 {vr(xr+8+2*h,2)}, {vr(xr+8+2*h,2)}, {vr(xr+12+2*h,2)}")
    for h in range(2): A(f"v_pk_add_f32 {vr(xr+2*h,2)}, {vr(xr+2*h,2)}, {vr(xr+8+2*h,2)}")
    A(f"""v_mul_f32 v{xr+4}, 0xBFB8AA3B, v{xr}
          v_mul_f32 v{xr+5}, 0xBFB8AA3B, v{xr+1}
          v_exp_f32 v{xr+4}, v{xr+4}
          v_exp_f32 v{xr+5}, v{xr+5}
          v_pk_mul_f32 {vr(xr,2)}, {vr(xr,2)}, {vr(xr+2,2)}
          v_add_f32 v{xr+4}, 1.0, v{xr+4}
          v_add_f32 v{xr+5}, 1.0, v{xr+5}
          v_rcp_f32 v{xr+4}, v{xr+4}
          v_rcp_f32 v{xr+5}, v{xr+5}
          s_nop 0
          v_pk_mul_f32 {vr(xr,2)}, {vr(xr,2)}, {vr(xr+4,2)}
          v_cvt_pk_bf16_f32 v{xr}, v{xr}, v{xr+1}""")
    for d in range(4): A(f"v_mov_b32_dpp v{xr+4+d}, v{xr} quad_perm:[{d},{d},{d},{d}] row_mask:0xf bank_mask:0xf")
    yo = tmp + 16
    for n in range(8): A(mf(yo + 4 * n, vr(xr + 4, 4), ar(aWDN + 4 * n, 4), "0"))
    for d in range(4): A(f"v_cvt_pk_bf16_f32 v{xr+d}, v{yo+8*d}, v{yo+8*d+4}")
    A(f"""s_mov_b64 exec, 0xFFFF
          buffer_store_dwordx4 {vr(xr,4)}, v{vL16}, {S(SWS,4)}, {t4} offen sc1
          s_mov_b64 exec, -1
          s_cmp_eq_u32 {S(sLAY)}, 0
          s_cbranch_scc1 L_ffn_ret1""")
    A.label("L_ffn_done")
    A(f"s_cmp_eq_u32 {S(sLAY)}, 0\ns_cbranch_scc1 L_ffn_ret2")
    stamp("ffn_done")
    A(f"""s_bfe_u32 {t0}, {S(sKEY)}, 0x70004
          s_lshl_b32 {t1}, {S(sC)}, 2
          s_add_u32 {t1}, {t1}, {S(sWV)}
          s_cmp_eq_u32 {t0}, {t1}
          s_cbranch_scc0 L_exit""")
    selector(psel, pya)
    sigma(psig)
    A(f"""v_lshrrev_b32 v{pa}, 3, v{vL}
          v_and_b32 v{pa+1}, 7, v{vL}
          v_lshlrev_b32 v{pya}, 4, v{pa+1}
          v_lshl_add_u32 v{pya}, v{pa}, 10, v{pya}
          s_lshl_b32 {t4}, {S(sM)}, 7
          s_add_u32 {t4}, {t4}, {YPART + 65536}
          v_add_u32 v{pya}, {t4}, v{pya}
          v_mov_b32 v{pyb}, {OOB}
          v_cmp_gt_u32 vcc, 3, v{pa}
          v_cndmask_b32 v{pyb}, v{pyb}, v{pya}, vcc
          v_and_b32 v{pa}, 1, v{vGq}
          v_lshl_add_u32 v{pa}, v{pa+1}, 1, v{pa}
          v_lshlrev_b32 v{pa+1}, 4, v{pa}
          v_add_u32 v{pa+1}, {T_ROW}, v{pa+1}
          ds_read_b128 {vr(pb,4)}, v{pa+1}
          v_lshlrev_b32 v{pa}, 3, v{pa}
          s_and_b32 {t0}, {S(sKEY)}, 63
          s_lshl_b32 {t0}, {t0}, 11
          s_add_u32 {t0}, {t0}, {S(sXB)}""")
    A.label("L_zpoll")
    for t in range(6):
        A(f"s_mov_b32 {t4}, {t*8192}\nbuffer_load_dwordx4 {vr(vY+4*t,4)}, v{pyb if t == 5 else pya}, {S(SWS,4)}, {t4} offen sc1")
    A(f"v_mov_b32 v{px}, 0")
    for t in range(6):
        y = vY + 4 * t
        A(f"s_waitcnt vmcnt({5-t})\nv_max3_u32 v{px}, v{px}, v{y}, v{y+1}\nv_max3_u32 v{px}, v{px}, v{y+2}, v{y+3}")
    A(f"v_cmp_eq_u32 vcc, -1, v{px}")
    spin()
    A("s_cbranch_vccnz L_zpoll")
    for t in range(6): A(mf(yacc, vr(psel, 4), vr(vY + 4 * t, 4), "0" if t == 0 else vr(yacc, 4)))
    A("s_waitcnt lgkmcnt(0)")
    for r in range(4): A(f"v_add_f32_dpp v{yacc+r}, v{yacc+r}, v{yacc+r} row_ror:8 row_mask:0xf bank_mask:0xf")
    for r in range(4): A(f"v_fma_f32 v{pb+r}, v{yacc+r}, v{psig}, v{pb+r}")
    A(f"""v_cvt_pk_bf16_f32 v{px}, v{pb}, v{pb+1}
          v_cvt_pk_bf16_f32 v{px+1}, v{pb+2}, v{pb+3}
          s_mov_b64 exec, 0x00FF00FF
          buffer_store_dwordx2 {vr(px,2)}, v{pa}, {S(SOUT,4)}, {t0} offen sc1
          s_mov_b64 exec, -1""")
    A.label("L_exit")
    if O["stamps"]:
        stamp("exit")
        A(f"""s_mov_b64 exec, -1
              s_lshl_b32 {t0}, s2, 2
              s_add_u32 {t0}, {t0}, {S(sWV)}
              s_lshl_b32 {t0}, {t0}, 8
              s_add_u32 {t0}, {t0}, {DBG + 0x800000}
              v_lshlrev_b32 v254, 2, v{vL}
              buffer_store_dword v255, v254, {S(SWS,4)}, {t0} offen""")
    A.label("L_end")
    A("s_endpgm")

    lines, nn = fix_hazards(A.lines, verbose=O.get("verbose", False))
    kn = O["kname"]
    hdr = open("interleave_layers__sliding_local_dilated__moe_arch_mod__prompt.s.ref").read().split("; Override launch")[0]
    out = hdr + f"; @launch grid=(256,1,1) block=(256,1,1) lds={LDS_BYTES}\n"
    out += f'.amdgcn_target "amdgcn-amd-amdhsa--gfx950"\n.text\n.globl {kn}\n.p2align 8\n.type {kn},@function\n{kn}:\n'
    out += "".join((l + "\n") if l.endswith(":") else ("    " + l + "\n") for l in lines)
    out += f""".section .rodata,"a"
.p2align 6
.amdhsa_kernel {kn}
  .amdhsa_next_free_vgpr 512
  .amdhsa_next_free_sgpr 102
  .amdhsa_accum_offset 256
  .amdhsa_group_segment_fixed_size 0
  .amdhsa_kernarg_size 88
  .amdhsa_user_sgpr_count 2
  .amdhsa_user_sgpr_kernarg_segment_ptr 1
  .amdhsa_system_sgpr_workgroup_id_x 1
  .amdhsa_float_denorm_mode_32 3
.end_amdhsa_kernel
"""
    return out, dict(names=names, nops=nn, base=base, tmp=tmp, nstamps=nst[0], ninstr=len(lines))


if __name__ == "__main__":
    import json
    opt = json.loads(sys.argv[2]) if len(sys.argv) > 2 else {}
    s, info = gen(opt)
    open(sys.argv[1], "w").write(s)
    json.dump(info.pop("names"), open(sys.argv[1][:-2] + ".names.json", "w"))
    print(info)
```

```python
import sys, os
sys.path.insert(0, os.path.dirname(os.path.abspath(__file__)))
from asmfw import *

KNAME = "interleave_layers__sliding_local_dilated__moe_arch_mod__prompt_kernel"

XSLOT, FLAGS, STATS, HST, CAND, CROW, YPART, HROW, OBUF, X1BUF, DBG = (
    0x10000, 0x20000, 0x40000, 0x80000, 0x90000, 0xA0000, 0xC0000, 0x100000, 0x200000, 0x400000, 0x600000)
OOB = 0x7FFF0000
XM, XH, WB, TB = 0, 65536, 73728, 147456
T_NM, T_SC, T_RS = TB + 64, TB + 384, TB + 704
T_KEY, T_PST, T_FFN, T_ROW = TB + 1024 + 16, TB + 1024 + 64, TB + 8192, TB + 9216
LDS_BYTES = 163840
PH_X, PH_O1, PH_S1, PH_X1, PH_O2, PH_S2 = 0, 1, 2, 3, 4, 5
EPS = 0x3727C5AC
NINF = 0xFF800000


def gen(opt=None):
    O = dict(stamps=0, dump=0, force_slow=0, ffn_after=2, touch=1, xpol="nt", wbl2=1, D=6, kname=KNAME)
    O.update(opt or {})
    A = Asm(); vm = VM()
    D = 6
    WS_SIZE = 0x1000000 if (O["dump"] or O["stamps"]) else DBG
    SX, SW, SWO, SWS, SOUT, SWG, SWU, SWD, SWR = 4, 8, 12, 16, 20, 24, 28, 32, 36
    sa = Alloc("s", 40, 102)
    sG, sM, sS, sWV, sC, sTAG, sFAST, sF, sPREV, sSPIN, sSUMW, sLAY = [sa() for _ in range(12)]
    sROT = sa(8)
    sT = sa(8, 2)
    sMA, sMB, sMV = sa(2), sa(2), sa(2)
    sWOFF, sXL, sXB, sW3K, sKEY, sRT, sI, sRET = [sa() for _ in range(8)]
    sST = sa(16, 2) if O["stamps"] else None
    t0, t1, t2, t3, t4, t5 = [f"s{sT+i}" for i in range(6)]
    S = lambda r, n=1: sr(r, n)
    va = Alloc("v", 1, 256)
    vL = 0
    vI, vGq = va(), va()
    vL16 = va()
    vA, vH = va(2), va(2)
    vWO = va(4)
    vOST, vOLD, vXST, vSTA, vSTL = va(), va(), va(), va(), va()
    vTI, vTG = va(), va()
    vAL = va(2)
    vMP, vMC, vMP1 = va(4), va(4), va(4)
    vPM = va(2)
    vONE = va(4)
    vCSQ, vCSK, vCSV = va(4), va(4), va(2)
    vWR = va(8)
    vFG = va(64)
    vP = va(0, 4)
    base = va.n
    accQ = [base + 12 * t for t in range(5)]; accK = [x + 4 for x in accQ]; accV = [x + 8 for x in accQ]
    gOWN, gSUM, gHAL = base + 60, base + 64, base + 68
    tmp = base + 72
    assert tmp + 56 <= 256, tmp
    vXD, vXD2, vWD, vOD, vWT, vSO = vFG, vFG + 1, vFG + 2, vFG + 3, vFG + 4, vFG + 6
    vXS = vFG + 8
    aW = lambda ks, seg: 12 * ks + 4 * seg
    aX = lambda buf, t: 192 + 24 * buf + 4 * t
    aWDN = 224
    nst = [0]
    names = []
    def stamp(name="?"):
        if O["stamps"]:
            k = nst[0]; nst[0] += 1; names.append(name)
            assert k < 32
            A(f"s_memtime s[{sST}:{sST+1}]\ns_lshl_b32 s{sST+2}, {S(sLAY)}, 5\ns_add_u32 s{sST+2}, s{sST+2}, {k}\ns_mov_b32 m0, s{sST+2}")
            A(f"s_waitcnt lgkmcnt(0)\nv_writelane_b32 v255, s{sST}, m0")
    def spin():
        A(f"s_sub_u32 {S(sSPIN)}, {S(sSPIN)}, 1\ns_cbranch_scc1 L_exit")
    lab = [0]
    def newlab(n):
        lab[0] += 1; return f"L_{n}_{lab[0]}"
    def dual_store(instrs):
        a, b = newlab("slow"), newlab("join")
        A(f"s_cmp_eq_u32 {S(sFAST)}, 1\ns_cbranch_scc0 {a}")
        for x in instrs: A(x.replace("@", ""))
        A(f"s_branch {b}"); A.label(a)
        for x in instrs: A(x.replace("@", "sc1"))
        A.label(b)
    def dump(slot, reg, n, acc=False):
        if O["dump"] != slot: return
        assert n <= 16
        t0, t1 = f"s{sT+6}", f"s{sT+7}"
        A(f"s_lshl_b32 {t0}, s2, 2\ns_add_u32 {t0}, {t0}, {S(sWV)}\ns_lshl_b32 {t0}, {t0}, 12\ns_lshl_b32 {t1}, {S(sLAY)}, 22\ns_add_u32 {t0}, {t0}, {t1}\ns_add_u32 {t0}, {t0}, {DBG}")
        A(f"v_lshlrev_b32 v254, 2, v{vL}")
        A("s_nop 7\ns_nop 7")
        for r in range(n):
            A(f"buffer_store_dword {'a' if acc else 'v'}{reg+r}, v254, {S(SWS,4)}, {t0} offen offset:{256*r}")
        A("s_waitcnt vmcnt(0)")

    if O.get("dbgtime"): A("s_memrealtime s[96:97]\ns_memtime s[98:99]")
    A(f"s_cmp_ge_u32 s2, 256\ns_cbranch_scc1 L_end")
    A(f"""s_load_dwordx2 {S(SX,2)}, s[0:1], 0
          s_load_dwordx2 {S(SW,2)}, s[0:1], 8
          s_load_dwordx2 {S(SWS,2)}, s[0:1], 80
          s_load_dwordx2 {S(SWO,2)}, s[0:1], 16
          s_load_dwordx2 {S(SWR,2)}, s[0:1], 32""")
    A(f"""v_lshrrev_b32 v{tmp}, 6, v0
          v_and_b32 v{vL}, 63, v0
          s_and_b32 {S(sG)}, s2, 7
          v_readfirstlane_b32 {S(sWV)}, v{tmp}
          s_bfe_u32 {S(sM)}, s2, 0x30003
          s_lshr_b32 {S(sS)}, s2, 6
          s_mov_b32 {S(sLAY)}, 0""")
    if O["stamps"]: A("v_mov_b32 v255, 0")
    for r, n in ((SX, 2097152), (SW, 1572864), (SWS, WS_SIZE), (SWO, 524288), (SWR, 1024)):
        A(f"s_mov_b32 s{r+2}, {n}\ns_mov_b32 s{r+3}, 0x20000")
    A(f"""v_lshrrev_b32 v{tmp}, 3, v{vL}
          v_and_b32 v{tmp+1}, 7, v{vL}
          v_and_b32 v{tmp+2}, 6, v{tmp}
          v_xor_b32 v{tmp+2}, v{tmp+2}, v{tmp+1}
          v_lshlrev_b32 v{tmp+2}, 4, v{tmp+2}
          v_lshl_add_u32 v{vXD}, v{tmp}, 11, v{tmp+2}
          v_add_u32 v{vXD2}, {16384-1024}, v{vXD}""")
    A(f"""v_and_b32 v{tmp+2}, 2, v{tmp}
          v_xor_b32 v{tmp+2}, v{tmp+2}, v{tmp+1}
          s_and_b32 {t0}, {S(sWV)}, 1
          s_lshl_b32 {t0}, {t0}, 2
          v_xor_b32 v{tmp+2}, {t0}, v{tmp+2}
          s_lshl_b32 {t1}, {S(sM)}, 7
          v_lshl_add_u32 v{tmp+2}, v{tmp+2}, 4, {t1}
          v_lshl_add_u32 v{vOD}, v{tmp}, 10, v{tmp+2}
          s_lshl_b32 {t0}, {S(sWV)}, 3
          v_add_u32 v{tmp+3}, {t0}, v{tmp}
          v_mul_u32_u24 v{tmp+3}, 3072, v{tmp+3}
          v_add_u32 v{vWD}, v{tmp+3}, v{tmp+2}""")
    A(f"""s_lshr_b32 {t0}, {S(sG)}, 1
          s_lshl_b32 {t0}, {t0}, 2
          s_add_u32 {t0}, {t0}, {S(sS)}
          s_lshl_b32 {t0}, {t0}, 17
          s_and_b32 {t1}, {S(sG)}, 1
          s_lshl_b32 {t1}, {t1}, 10
          s_add_u32 {t0}, {t0}, {t1}
          s_lshl_b32 {t1}, {S(sWV)}, 15
          s_add_u32 {S(sXB)}, {t0}, {t1}
          s_sub_u32 {t2}, {t0}, 16384
          s_cselect_b32 {t2}, 0, {t2}
          s_cselect_b32 {t1}, {OOB}, 0
          v_or_b32 v{vXD+5}, {t1}, v{vXD}
          s_lshl_b32 {S(sXL)}, {S(sG)}, 7
          s_mul_i32 {S(sWOFF)}, {S(sG)}, {2*98304}
          s_mul_i32 {S(sW3K)}, {S(sWV)}, 3072""")
    A(f"""s_lshl_b32 {t3}, {S(sWV)}, 8
          s_add_u32 {t3}, {t3}, {S(sXL)}
          s_add_u32 {t4}, {t3}, 128
          s_and_b32 {t3}, {t3}, 1023
          s_and_b32 {t4}, {t4}, 1023
          s_add_u32 {t3}, {t3}, {t2}
          s_add_u32 {t4}, {t4}, {t2}
          s_lshl_b32 {t5}, {S(sWV)}, 11""")
    if O["touch"]:
        tv = tmp + 4
        A(f"""v_lshlrev_b32 v{tv}, 7, v{tmp+1}
              v_lshl_add_u32 v{tv}, v{tmp}, 11, v{tv}
              s_lshl_b32 {t1}, {S(sM)}, 14
              s_add_u32 {t1}, {t1}, {t0}
              v_add_u32 v{tv}, {t1}, v{tv}
              v_min_u32 v{tv+1}, 47, v{vL}
              v_lshlrev_b32 v{tv+1}, 10, v{tv+1}
              s_lshr_b32 {t1}, s2, 3
              s_mul_i32 {t1}, {t1}, 49152
              s_add_u32 {t1}, {t1}, 384
              v_add_u32 v{tv+2}, {t1}, v{tv+1}
              s_mul_i32 {t1}, {S(sS)}, 49152
              s_add_u32 {t1}, {t1}, {S(sWOFF)}
              s_lshl_b32 {t2}, {S(sM)}, 7
              s_add_u32 {t1}, {t1}, {t2}
              v_add_u32 v{tv+1}, {t1}, v{tv+1}
              v_and_b32 v{tv+3}, 15, v{vL}
              v_lshlrev_b32 v{tv+3}, 7, v{tv+3}
              s_lshl_b32 {t1}, s2, 11
              v_add_u32 v{tv+3}, {t1}, v{tv+3}""")
    A(f"s_waitcnt lgkmcnt(0)")
    stamp("kernarg")
    A(f"s_load_dword {S(sTAG)}, {S(SWS,2)}, 0")
    if O["touch"]:
        tv = tmp + 4
        A(f"""s_cmp_eq_u32 {S(sWV)}, 0
              s_cbranch_scc0 L_tch1
              buffer_load_dword v{tmp+8}, v{tv}, {S(SX,4)}, 0 offen {O['xpol']}
              s_branch L_tchd
              L_tch1:
              s_cmp_eq_u32 {S(sWV)}, 3
              s_cbranch_scc1 L_tch3
              s_cmp_eq_u32 {S(sWV)}, 1
              s_cselect_b64 vcc, -1, 0
              v_cndmask_b32 v{tv+1}, v{tv+1}, v{tv+2}, vcc
              buffer_load_dword v{tmp+8}, v{tv+1}, {S(SW,4)}, 0 offen
              s_branch L_tchd
              L_tch3:
              buffer_load_dword v{tmp+8}, v{tv+3}, {S(SWO,4)}, 0 offen
              L_tchd:""")
        vm.issue("touch")
    def dma_x(lp):
        A(f"s_add_u32 {t0}, {S(sXB)}, {S(sXL)}\ns_lshl_b32 m0, {S(sWV)}, 14")
        if lp: A(f"s_add_u32 m0, m0, {lp*2048}")
        A(f"s_add_u32 {S(sXL)}, {S(sXL)}, 128")
        A(f"buffer_load_dwordx4 v{vXD}, {S(SX,4)}, {t0} offen {O['xpol']} lds")
        A(f"s_and_b32 {S(sXL)}, {S(sXL)}, 1023")
        A(f"buffer_load_dwordx4 v{vXD2}, {S(SX,4)}, {t0} offen offset:1024 {O['xpol']} lds")
        vm.issue(f"c{2*lp}", 2)
    def dma_w(ks):
        A(f"s_add_u32 m0, {S(sW3K)}, {WB + (ks % D) * 12288}\ns_mov_b32 {t0}, {S(sWOFF)}")
        for seg in range(3):
            A(f"buffer_load_dwordx4 v{vWD}, {S(SW,4)}, {t0} offen offset:{seg*1024} lds")
            if seg == 0: A(f"s_add_u32 {S(sWOFF)}, {S(sWOFF)}, 98304\ns_cmp_eq_u32 {S(sWOFF)}, {16*98304}")
            if seg == 1: A(f"s_cselect_b32 {S(sWOFF)}, 0, {S(sWOFF)}")
        vm.issue(f"c{ks}", 3)
    def dma_wo(sl):
        for t in range(3):
            o = 12 * sl + 4 * t
            if o >= 64: continue
            A(f"""s_add_u32 {t0}, {S(sXL)}, {o}
                  s_and_b32 {t0}, {t0}, 63
                  s_lshl_b32 {t0}, {t0}, 13
                  s_add_u32 m0, {S(sXB)}, {WB + o*1024}
                  s_nop 0
                  buffer_load_dwordx4 v{vOD}, {S(SWO,4)}, {t0} offen lds""")
            vm.issue("wo")
    A(f"s_add_u32 m0, {t5}, {XH}\ns_nop 0\nbuffer_load_dwordx4 v{vXD+5}, {S(SX,4)}, {t3} offen lds")
    A(f"s_add_u32 m0, {t5}, {XH+1024}\ns_nop 0\nbuffer_load_dwordx4 v{vXD+5}, {S(SX,4)}, {t4} offen lds")
    vm.issue("c0", 2)
    for ks in range(2):
        if ks % 2 == 0: dma_x(ks // 2)
        dma_w(ks)
    A(f"""v_and_b32 v{vI}, 15, v{vL}
          v_lshrrev_b32 v{vGq}, 4, v{vL}
          v_lshlrev_b32 v{vL16}, 4, v{vL}
          v_and_b32 v{tmp}, 1, v{vGq}
          v_lshrrev_b32 v{tmp+1}, 1, v{vGq}
          v_lshl_add_u32 v{tmp+2}, v{tmp}, 1, v{tmp+1}
          s_lshl_b32 {t0}, {S(sM)}, 7
          v_lshl_add_u32 v{tmp+3}, v{tmp+2}, 4, {t0}
          buffer_load_dwordx4 {vr(tmp+12,4)}, v{vL16}, {S(SWR,4)}, 0 offen
          buffer_load_dwordx4 {vr(vWR,4)}, v{tmp+3}, {S(SWR,4)}, 0 offen
          buffer_load_dwordx4 {vr(vWR+4,4)}, v{tmp+3}, {S(SWR,4)}, 0 offen offset:64""")
    vm.issue("wr", 3)
    for ks in range(2, D):
        if ks % 2 == 0: dma_x(ks // 2)
        dma_w(ks)
    A(f"""s_load_dwordx2 {S(SOUT,2)}, s[0:1], 64
          s_load_dwordx2 {S(SWG,2)}, s[0:1], 40
          s_load_dwordx2 {S(SWU,2)}, s[0:1], 48
          s_load_dwordx2 {S(SWD,2)}, s[0:1], 56""")
    for r, n in ((SOUT, 2097152), (SWG, 1409024), (SWU, 1409024), (SWD, 1409024)):
        A(f"s_mov_b32 s{r+2}, {n}\ns_mov_b32 s{r+3}, 0x20000")
    A(f"""s_lshl_b32 {S(sC)}, {S(sG)}, 2
          s_add_u32 {S(sC)}, {S(sC)}, {S(sS)}
          s_sub_u32 {t0}, {S(sC)}, 1
          s_sub_u32 {t1}, {S(sC)}, 5
          s_cmp_lt_u32 {S(sG)}, 2
          s_cselect_b32 {t1}, 255, {t1}
          s_cmp_eq_u32 {S(sS)}, 0
          s_cselect_b32 {S(sPREV)}, {t1}, {t0}
          s_mov_b32 {S(sSPIN)}, 400000
          s_mov_b32 {S(sRET)}, 0
          s_mov_b32 s{sMA}, 0xAAAAAAAA
          s_mov_b32 s{sMA+1}, 0xAAAAAAAA
          s_mov_b32 s{sMB}, 0xCCCCCCCC
          s_mov_b32 s{sMB+1}, 0xCCCCCCCC
          s_mov_b32 s{sMV}, 0x00F0000F
          s_mov_b32 s{sMV+1}, 0xF0000F00""")
    for p in range(8):
        A(f"s_add_u32 {t0}, {S(sG)}, {p}\ns_and_b32 {t0}, {t0}, 7\ns_lshl_b32 s{sROT+p}, {t0}, 11")
    A(f"""s_sub_u32 {t0}, {S(sM)}, 4
          s_lshl_b32 {t0}, {t0}, 2
          s_add_u32 {t0}, {t0}, {S(sS)}
          s_mul_i32 {t1}, {S(sG)}, 6
          s_add_u32 {t1}, {t1}, {t0}
          s_cmp_lt_u32 {t0}, 6
          s_cselect_b32 {S(sF)}, {t1}, 255""")
    A(f"""s_lshl_b32 {t0}, {S(sC)}, 16
          s_lshl_b32 {t1}, {S(sM)}, 11
          s_lshl_b32 {t2}, {S(sWV)}, 9
          s_add_u32 {t3}, {t0}, {t1}
          s_add_u32 {t2}, {t2}, {t3}
          s_add_u32 {t2}, {t2}, {OBUF}
          v_lshlrev_b32 v{tmp+4}, 4, v{vI}
          v_lshl_add_u32 v{vOST}, v{tmp+1}, 8, v{tmp+4}
          v_lshl_add_u32 v{vOST}, v{tmp}, 14, v{vOST}
          v_add_u32 v{vOST}, {t2}, v{vOST}""")
    A(f"""s_lshl_b32 {t2}, {S(sWV)}, 14
          s_add_u32 {t4}, {t0}, {t2}
          s_add_u32 {t4}, {t4}, {OBUF}
          v_add_u32 v{vOLD}, {t4}, v{vL16}""")
    A(f"""s_add_u32 {t3}, {t3}, {t2}
          s_add_u32 {t3}, {t3}, {X1BUF}
          v_lshl_add_u32 v{vXST}, v{tmp+2}, 8, v{tmp+4}
          v_add_u32 v{vXST}, {t3}, v{vXST}""")
    A(f"""s_lshl_b32 {t0}, {S(sC)}, 13
          s_lshl_b32 {t1}, {S(sWV)}, 8
          s_add_u32 {t0}, {t0}, {t1}
          s_add_u32 {t0}, {t0}, {STATS}
          v_add_u32 v{vSTL}, {t0}, v{tmp+4}
          s_lshl_b32 {t1}, {S(sM)}, 10
          v_add_u32 v{vSTA}, {t1}, v{vSTL}
          v_lshl_add_u32 v{vSTL}, v{vGq}, 10, v{vSTL}""")
    A(f"""v_lshlrev_b32 v{vTI}, 2, v{vI}
          v_add_u32 v{vTI}, {T_NM}, v{vTI}
          v_lshlrev_b32 v{vTG}, 4, v{vGq}
          v_add_u32 v{vTG}, {T_NM}, v{vTG}""")
    A(f"""v_and_b32 v{tmp+5}, 7, v{vI}
          v_lshlrev_b32 v{tmp+5}, 7, v{tmp+5}
          v_and_b32 v{tmp+6}, 6, v{vI}
          v_xor_b32 v{tmp+6}, v{tmp+6}, v{vGq}
          v_lshl_add_u32 v{tmp+5}, v{tmp+6}, 4, v{tmp+5}
          v_xor_b32 v{tmp+6}, 64, v{tmp+5}
          v_lshrrev_b32 v{tmp+7}, 3, v{vI}
          v_lshl_add_u32 v{vA}, v{tmp+7}, 10, v{tmp+5}
          v_lshl_add_u32 v{vA+1}, v{tmp+7}, 10, v{tmp+6}
          v_add_u32 v{tmp+5}, {XH}, v{tmp+5}
          v_add_u32 v{tmp+6}, {XH}, v{tmp+6}
          v_mov_b32 v{tmp+9}, {TB}
          v_cmp_gt_u32 vcc, 8, v{vI}
          v_cndmask_b32 v{vH}, v{tmp+5}, v{tmp+9}, vcc
          v_cndmask_b32 v{vH+1}, v{tmp+6}, v{tmp+9}, vcc
          s_lshl_b32 {t0}, {S(sWV)}, 14
          v_add_u32 v{vSO}, {t0}, v{vA}
          v_add_u32 v{vSO+1}, {t0}, v{vA+1}""")
    A(f"""v_lshrrev_b32 v{tmp+5}, 2, v{vI}
          v_and_b32 v{tmp+6}, 3, v{vI}
          v_lshlrev_b32 v{tmp+6}, 3, v{tmp+6}
          v_lshl_add_u32 v{tmp+6}, v{tmp+5}, 7, v{tmp+6}
          v_lshl_or_b32 v{tmp+7}, v{tmp}, 1, v{tmp+7}
          v_lshlrev_b32 v{tmp+7}, 5, v{tmp+7}
          v_add_u32 v{tmp+6}, v{tmp+6}, v{tmp+7}
          s_lshl_b32 {t0}, {S(sWV)}, 5
          v_xor_b32 v{vWT}, {t0}, v{tmp+6}
          v_mul_u32_u24 v{tmp+5}, 3072, v{vGq}
          v_add_u32 v{vWT}, v{vWT}, v{tmp+5}
          v_add_u32 v{vWT}, {WB}, v{vWT}
          v_lshl_add_u32 v{tmp+6}, v{vGq}, 10, v{tmp+6}
          v_add_u32 v{vWO}, {WB}, v{tmp+6}""")
    for c in range(1, 4): A(f"v_xor_b32 v{vWO+c}, {32*c}, v{vWO}")
    for r in range(4): A(f"v_mov_b32 v{vONE+r}, 0x3F803F80")
    A(f"""v_and_b32 v{tmp+5}, 7, v{vL}
          v_lshlrev_b32 v{tmp+5}, 10, v{tmp+5}
          v_add_u32 v{tmp+5}, {TB}, v{tmp+5}
          ds_write_b128 v{tmp+5}, {vr(vONE,4)}
          v_lshlrev_b32 v{tmp+5}, 2, v{vGq}
          v_sub_u32 v{tmp+5}, v{tmp+5}, v{vI}
          v_mov_b32 v{tmp+6}, {NINF}
          s_cmp_eq_u32 {S(sPREV)}, 255
          s_cselect_b32 {t0}, {NINF}, 0""")
    for r in range(4):
        A(f"""v_cmp_le_i32 vcc, {9-r}, v{tmp+5}
              v_add_u32 v{tmp+7}, {r+7}, v{tmp+5}
              v_cndmask_b32 v{vMP+r}, v{tmp+6}, 0, vcc
              v_cmp_ge_u32 vcc, 7, v{tmp+7}
              v_or_b32 v{vMP1+r}, {t0}, v{vMP+r}
              v_cndmask_b32 v{vMC+r}, v{tmp+6}, 0, vcc""")
    for h in range(2):
        A(f"""v_ashrrev_i32 v{tmp+7}, 31, v{vMP+2*h}
              v_ashrrev_i32 v{tmp+9}, 31, v{vMP+2*h+1}
              v_and_b32 v{tmp+7}, 0xFFFF, v{tmp+7}
              v_and_b32 v{tmp+9}, 0xFFFF0000, v{tmp+9}
              v_or_b32 v{tmp+7}, v{tmp+7}, v{tmp+9}
              v_not_b32 v{vPM+h}, v{tmp+7}""")
    A(f"v_mov_b32 v{vAL}, 1.0\nv_mov_b32 v{vAL+1}, 0")
    A(f"""s_waitcnt lgkmcnt(0)
          s_lshr_b32 {S(sTAG)}, {S(sTAG)}, 3
          s_mul_i32 {S(sTAG)}, {S(sTAG)}, 1664525
          s_add_u32 {S(sTAG)}, {S(sTAG)}, 1013904223
          s_lshl_b32 {S(sTAG)}, {S(sTAG)}, 3
          s_getreg_b32 {S(sFAST)}, hwreg(HW_REG_XCC_ID)
          s_and_b32 {S(sFAST)}, {S(sFAST)}, 15""")
    pv = tmp + 16
    A(f"""s_lshl_b32 {t0}, {S(sC)}, 10
          s_lshl_b32 {t1}, {S(sM)}, 7
          s_add_u32 {t0}, {t0}, {t1}
          v_mov_b32 v{pv}, -1
          v_mov_b32 v{pv+1}, -1
          v_mov_b32 v{pv+2}, -1
          v_mov_b32 v{pv+3}, -1
          v_mov_b32 v{tmp+9}, {OOB}
          s_cmp_eq_u32 {S(sWV)}, 0
          s_cbranch_scc0 L_pf1
          v_and_b32 v{tmp+5}, 7, v{vL}
          v_lshlrev_b32 v{tmp+5}, 4, v{tmp+5}
          v_lshrrev_b32 v{tmp+7}, 3, v{vL}
          v_lshl_add_u32 v{tmp+5}, v{tmp+7}, 15, v{tmp+5}
          s_add_u32 {t1}, {t0}, {CROW}
          v_cmp_gt_u32 vcc, 16, v{vL}
          s_branch L_pfd
          L_pf1:
          s_cmp_eq_u32 {S(sWV)}, 3
          s_cbranch_scc1 L_pf3
          v_mov_b32 v{tmp+5}, v{vL16}
          s_lshl_b32 {t1}, {S(sWV)}, 16
          s_lshl_b32 {t2}, {S(sF)}, 10
          s_add_u32 {t1}, {t1}, {t2}
          s_add_u32 {t1}, {t1}, {YPART - 65536}
          s_cmp_lt_u32 {S(sF)}, 43
          s_cselect_b64 vcc, -1, 0
          s_branch L_pfd
          L_pf3:
          v_mov_b32 v{tmp+5}, 0
          v_mov_b32 v{pv}, {S(sTAG)}
          v_mov_b32 v{pv+1}, {S(sFAST)}
          s_add_u32 {t1}, {t0}, {XSLOT}
          s_mov_b64 vcc, 1
          L_pfd:
          v_cndmask_b32 v{tmp+5}, v{tmp+9}, v{tmp+5}, vcc
          buffer_store_dwordx4 {vr(pv,4)}, v{tmp+5}, {S(SWS,4)}, {t1} offen sc1""")
    vm.issue("pf")
    vPW = vFG + 10
    A(f"""s_lshl_b32 {t1}, {t0}, 6
          s_add_u32 {t2}, {t1}, {OBUF}
          s_add_u32 {t3}, {t1}, {X1BUF}
          s_lshl_b32 {t4}, {t0}, 3
          s_add_u32 {t4}, {t4}, {STATS}
          s_add_u32 {t5}, {t0}, {FLAGS}
          s_cmp_eq_u32 {S(sWV)}, 1
          s_cselect_b32 {t2}, {t3}, {t2}
          s_cmp_eq_u32 {S(sWV)}, 2
          s_cselect_b32 {t2}, {t4}, {t2}
          s_cselect_b32 {t1}, 7, 63
          s_cmp_eq_u32 {S(sWV)}, 3
          s_cselect_b32 {t2}, {t5}, {t2}
          s_cselect_b32 {t1}, 0, {t1}
          v_and_b32 v{vPW}, {t1}, v{vL}
          v_lshlrev_b32 v{vPW}, 7, v{vPW}
          v_add_u32 v{vPW}, {t2}, v{vPW}
          s_lshl_b32 {t0}, {S(sC)}, 10
          s_add_u32 {t0}, {t0}, {XSLOT}
          v_and_b32 v{vPW+1}, 7, v{vL}
          v_lshlrev_b32 v{vPW+1}, 7, v{vPW+1}
          v_add_u32 v{vPW+1}, {t0}, v{vPW+1}""")
    A(f"s_waitcnt vmcnt({vm.cnt('wr')})\nv_mov_b32 v{tmp}, 0")
    for r in range(4): A(f"v_dot2c_f32_bf16 v{tmp}, v{tmp+12+r}, v{vONE}")
    for sh in (8, 4, 2, 1): A(f"v_add_f32_dpp v{tmp}, v{tmp}, v{tmp} row_ror:{sh} row_mask:0xf bank_mask:0xf")
    A(f"""v_readlane_b32 {t0}, v{tmp}, 0
          v_readlane_b32 {t1}, v{tmp}, 16
          v_readlane_b32 {t2}, v{tmp}, 32
          v_readlane_b32 {t3}, v{tmp}, 48
          v_mov_b32 v{tmp}, {t0}
          v_add_f32 v{tmp}, {t1}, v{tmp}
          v_add_f32 v{tmp}, {t2}, v{tmp}
          v_add_f32 v{tmp}, {t3}, v{tmp}
          v_readfirstlane_b32 {S(sSUMW)}, v{tmp}""")
    for r in range(8):
        A(f"v_cndmask_b32 v{vWR+r}, v{vONE}, v{vWR+r}, {S(sMA,2)}\nv_cndmask_b32 v{vWR+r}, v{vWR+r}, 0, {S(sMB,2)}")

    def reads(ks):
        e = ks & 1; b = ks & 1; L = []
        for seg in range(3):
            for hf in range(2):
                L.append(f"ds_read_b64_tr_b16 {ar(aW(ks,seg)+2*hf,2)}, v{vWT} offset:{(ks%D)*12288 + seg*1024 + hf*512}")
        X = [f"ds_read_b128 {ar(aX(b,0),4)}, v{vH+e} offset:{(ks>>1)*1024}"]
        for t in range(1, 5): X.append(f"ds_read_b128 {ar(aX(b,t),4)}, v{vA+e} offset:{(t-1)*16384 + (ks>>1)*2048}")
        X.append(f"ds_read_b128 {ar(aX(b,5),4)}, v{vSO+e} offset:{(ks>>1)*2048}")
        return X + L
    def mf(d, a, b, c, shape="16x16x32"):
        return f"v_mfma_f32_{shape}_bf16 {vr(d,4)}, {a}, {b}, {c}"
    def mfmas(ks):
        b = ks & 1; L = []
        C = lambda d: "0" if ks == 0 else vr(d, 4)
        for t in range(5):
            x = ar(aX(b, t), 4)
            L.append(mf(accQ[t], ar(aW(ks, 0), 4), x, C(accQ[t])))
            L.append(mf(accK[t], ar(aW(ks, 1), 4), x, C(accK[t])))
            L.append(mf(accV[t], x, ar(aW(ks, 2), 4), C(accV[t])))
        xo = ar(aX(b, 5), 4); xh = ar(aX(b, 0), 4)
        L = [mf(gOWN, xo, xo, C(gOWN)), mf(gSUM, vr(vONE, 4), xo, C(gSUM)), mf(gHAL, xh, xh, C(gHAL))] + L
        return L
    A(f"s_waitcnt vmcnt({vm.cnt('c0')}) lgkmcnt(0)\ns_barrier")
    stamp("c0_landed")
    for x in reads(0): A(x)
    for ks in range(16):
        if ks < 15: A(f"s_waitcnt vmcnt({vm.cnt(f'c{ks+1}')}) lgkmcnt(0)")
        else: A("s_waitcnt lgkmcnt(0)")
        A("s_barrier")
        M = mfmas(ks); R = reads(ks + 1) if ks < 15 else []
        for i, m_ in enumerate(M):
            A(m_)
            if i < len(R): A(R[i])
            if i == 13:
                j = ks + D
                if j == 16:
                    A(f"s_lshl_b32 {S(sXL)}, {S(sG)}, 3\ns_add_u32 {S(sXL)}, {S(sXL)}, {S(sWV)}\ns_lshl_b32 {S(sXB)}, {S(sWV)}, 10")
                if j < 16:
                    if j % 2 == 0: dma_x(j // 2)
                    dma_w(j)
                else: dma_wo(j % D)
                if ks == 2:
                    A(f"buffer_load_dword v{vPW+2}, v{vPW}, {S(SWS,4)}, 0 offen"); vm.issue("pw")
                if ks == 8:
                    A(f"buffer_load_dwordx2 {vr(vXS,2)}, v{vPW+1}, {S(SWS,4)}, 0 offen sc1"); vm.issue("xs")
    stamp("gemm1_end")
    q = tmp
    A(f"""v_cmp_eq_u32 vcc, {S(sTAG)}, v{vXS}
          v_cmp_eq_u32 s[{sT}:{sT+1}], {S(sFAST)}, v{vXS+1}
          s_and_b64 vcc, vcc, s[{sT}:{sT+1}]
          s_cmp_eq_u64 vcc, -1
          s_cselect_b32 {S(sFAST)}, {0 if O['force_slow'] else 1}, 0""")
    assert vm.cnt("xs") >= vm.cnt("c15")
    def diag(dst, g):
        A(f"""v_cndmask_b32 v{g}, v{g}, v{g+1}, {S(sMA,2)}
              v_cndmask_b32 v{g+2}, v{g+2}, v{g+3}, {S(sMA,2)}
              v_cndmask_b32 v{dst}, v{g}, v{g+2}, {S(sMB,2)}""")
    A(f"v_mov_b32 v{q}, v{gHAL}\nv_mov_b32 v{q+1}, v{gHAL}")
    diag(q + 2, gOWN)
    A(f"v_permlane32_swap_b32 v{q}, v{q+1}")
    diag(q + 3, gHAL)
    A(f"s_mov_b32 {t0}, 0xBB000000\ns_mov_b32 {t1}, 0x3B000000\nv_mov_b32 v{q+8}, {EPS}")
    for (s1, s2, d) in ((gSUM, q + 2, q + 4), (q, q + 3, q + 6)):
        A(f"""v_mul_f32 v{d}, {t0}, v{s1}
              v_mul_f32 v{s2}, {t1}, v{s2}
              v_fma_f32 v{s2}, -v{d}, v{d}, v{s2}
              v_max_f32 v{s2}, 0, v{s2}
              v_add_f32 v{s2}, v{q+8}, v{s2}
              v_rsq_f32 v{d+1}, v{s2}""")
    A(f"""s_lshl_b32 {t2}, {S(sWV)}, 6
          v_add_u32 v{q+9}, {t2}, v{vTI}
          s_mov_b64 exec, {S(sMV,2)}
          ds_write2_b32 v{q+9}, v{q+4}, v{q+5} offset0:16 offset1:96
          ds_write2_b32 v{vTI}, v{q+6}, v{q+7} offset0:0 offset1:80
          s_mov_b64 exec, -1""")
    for r in range(4):
        A(f"v_mov_b32_dpp v{vCSQ+r}, v{accQ[0]+r} row_newbcast:0 row_mask:0xf bank_mask:0xf")
        A(f"v_mov_b32_dpp v{vCSK+r}, v{accK[0]+r} row_newbcast:0 row_mask:0xf bank_mask:0xf")
    A(f"v_mov_b32 v{vCSV}, v{accV[0]}\nv_mov_b32 v{vCSV+1}, v{accV[0]}\nv_permlane32_swap_b32 v{vCSV}, v{vCSV+1}")
    vRA = tmp + 52
    A(f"""s_sub_u32 {t0}, {S(sM)}, {S(sG)}
          s_and_b32 {t0}, {t0}, 7
          s_lshl_b32 {t0}, {t0}, 11
          s_lshl_b32 {t1}, {S(sWV)}, 14
          s_add_u32 {S(sW3K)}, {t0}, {t1}
          v_lshrrev_b32 v{q}, 3, v{vI}
          v_and_b32 v{q+1}, 7, v{vI}
          v_lshlrev_b32 v{q+1}, 7, v{q+1}
          v_lshl_add_u32 v{q}, v{q}, 10, v{q+1}
          v_and_b32 v{q+1}, 6, v{vI}
          v_lshl_add_u32 v{q}, v{q+1}, 4, v{q}
          v_lshl_add_u32 v{q}, v{vGq}, 3, v{q}
          v_add_u32 v{vRA}, {S(sW3K)}, v{q}""")
    for c in range(1, 4): A(f"v_xor_b32 v{vRA+c}, {32*c}, v{vRA}")
    A("s_waitcnt lgkmcnt(0)\ns_barrier")

    A.label("L_attn")
    stamp("attn_start")
    tl = lambda t: tmp + 10 * t
    for t in range(5):
        A(f"ds_read2_b32 {vr(tl(t),2)}, v{vTI} offset0:{16*t} offset1:{80+16*t}")
        A(f"ds_read_b128 {vr(tl(t)+2,4)}, v{vTG} offset:{64*t}")
        A(f"ds_read_b128 {vr(tl(t)+6,4)}, v{vTG} offset:{320+64*t}")
    vV = gOWN
    for t in range(5):
        A(f"s_waitcnt lgkmcnt({3*(4-t)})")
        p = vr(tl(t), 2)
        for h in range(2):
            A(f"v_pk_fma_f32 {vr(accK[t]+2*h,2)}, {vr(vCSK+2*h,2)}, {p}, {vr(accK[t]+2*h,2)} op_sel_hi:[1,0,1]")
            A(f"v_pk_fma_f32 {vr(accV[t]+2*h,2)}, {vr(tl(t)+2+2*h,2)}, {vr(vCSV,2)}, {vr(accV[t]+2*h,2)} op_sel_hi:[1,0,1]")
            if t: A(f"v_pk_fma_f32 {vr(accQ[t]+2*h,2)}, {vr(vCSQ+2*h,2)}, {p}, {vr(accQ[t]+2*h,2)} op_sel_hi:[1,0,1]")
        for h in range(2):
            A(f"v_pk_mul_f32 {vr(accK[t]+2*h,2)}, {vr(accK[t]+2*h,2)}, {p} op_sel:[0,1] op_sel_hi:[1,1]")
            A(f"v_pk_mul_f32 {vr(accV[t]+2*h,2)}, {vr(accV[t]+2*h,2)}, {vr(tl(t)+6+2*h,2)}")
        for h in range(2):
            A(f"v_cvt_pk_bf16_f32 v{accK[t]+h}, v{accK[t]+2*h}, v{accK[t]+2*h+1}")
            if t: A(f"v_cvt_pk_bf16_f32 v{accQ[t]+h}, v{accQ[t]+2*h}, v{accQ[t]+2*h+1}")
            A(f"v_cvt_pk_bf16_f32 v{vV+2*t+h}, v{accV[t]+2*h}, v{accV[t]+2*h+1}")
        if t:
            A(f"v_mul_f32 v{tl(t)+1}, 0x3EB8AA3B, v{tl(t)+1}")
            A(mf(tl(t) + 2, vr(accK[t-1], 2), vr(accQ[t], 2), vr(vMP1 if t == 1 else vMP, 4), "16x16x16"))
            A(mf(tl(t) + 6, vr(accK[t], 2), vr(accQ[t], 2), vr(vMC, 4), "16x16x16"))
    dump(1, accQ[1], 12)
    vRX = tl(0)
    for c in range(4): A(f"ds_read_b64 {vr(vRX+2*c,2)}, v{vRA+c}")
    T = (1, 2, 3, 4)
    for t in T:
        for r in range(4): A(f"v_max_f32 v{tl(t)+2+r}, v{tl(t)+2+r}, v{tl(t)+6+r}")
        A(f"v_max3_f32 v{tl(t)}, v{tl(t)+2}, v{tl(t)+3}, v{tl(t)+4}\nv_max_f32 v{tl(t)}, v{tl(t)}, v{tl(t)+5}")
    a_, b_, c_, d_ = [tl(t) for t in T]
    A(f"""v_permlane32_swap_b32 v{a_}, v{b_}
          v_permlane32_swap_b32 v{c_}, v{d_}
          v_max_f32 v{a_}, v{a_}, v{b_}
          v_max_f32 v{c_}, v{c_}, v{d_}
          v_permlane16_swap_b32 v{a_}, v{c_}
          v_max_f32 v{a_}, v{a_}, v{c_}
          v_mov_b32 v{c_}, v{a_}
          v_permlane16_swap_b32 v{a_}, v{c_}
          v_mov_b32 v{b_}, v{a_}
          v_mov_b32 v{d_}, v{c_}
          v_permlane32_swap_b32 v{a_}, v{b_}
          v_permlane32_swap_b32 v{c_}, v{d_}""")
    for t in T: A(f"v_mul_f32 v{tl(t)}, v{tl(t)}, v{tl(t)+1}")
    for t in T:
        for r in range(4): A(f"v_fma_f32 v{tl(t)+2+r}, v{tl(t)+2+r}, v{tl(t)+1}, -v{tl(t)}")
        for r in range(4): A(f"v_exp_f32 v{tl(t)+2+r}, v{tl(t)+2+r}")
    for t in T:
        P = tl(t) + 6
        A(f"""v_cvt_pk_bf16_f32 v{tl(t)}, v{tl(t)+2}, v{tl(t)+3}
              v_cvt_pk_bf16_f32 v{tl(t)+1}, v{tl(t)+4}, v{tl(t)+5}
              v_and_b32 v{P}, v{vPM}, v{tl(t)}
              v_and_b32 v{P+1}, v{vPM+1}, v{tl(t)+1}
              v_bfi_b32 v{P+2}, v{vPM}, 0, v{tl(t)}
              v_bfi_b32 v{P+3}, v{vPM+1}, 0, v{tl(t)+1}""")
        A(mf(accK[t], vr(vONE, 2), vr(tl(t), 2), "0", "16x16x16"))
        A(mf(accV[t], vr(vV + 2 * (t - 1), 4), vr(P, 4), "0"))
    vO = accQ[0]
    for t in T: A(f"v_rcp_f32 v{accK[t]}, v{accK[t]}")
    for t in T:
        for h in range(2): A(f"v_pk_mul_f32 {vr(accV[t]+2*h,2)}, {vr(accV[t]+2*h,2)}, {vr(accK[t],2)} op_sel_hi:[1,0]")
        for h in range(2): A(f"v_cvt_pk_bf16_f32 v{vO+2*(t-1)+h}, v{accV[t]+2*h}, v{accV[t]+2*h+1}")
    for u in range(2):
        for h in range(2): A(f"v_permlane16_swap_b32 v{vO+4*u+h}, v{vO+4*u+2+h}")
    A(f"s_mov_b32 {t0}, 32768")
    dual_store([f"buffer_store_dwordx4 {vr(vO,4)}, v{vOST}, {S(SWS,4)}, 0 offen @",
                f"buffer_store_dwordx4 {vr(vO+4,4)}, v{vOST}, {S(SWS,4)}, {t0} offen @"])
    stamp("o_stored")
    accP = tmp + 16
    vOF = base + 8
    A("s_waitcnt lgkmcnt(0)")
    for c in range(4):
        for h in range(2):
            s_ = vRX + 2 * c + h; d = accP + 4 * c + 2 * h
            A(f"v_lshlrev_b32 v{d}, 16, v{s_}\nv_and_b32 v{d+1}, 0xFFFF0000, v{s_}")
            A(f"v_pk_fma_f32 {vr(d,2)}, {vr(d,2)}, {vr(vAL,2)}, {vr(vAL,2)} op_sel:[0,0,1] op_sel_hi:[1,0,1]")
    vFA, vFV, vFP = tmp + 8, tmp + 9, tmp + 10
    A(f"""s_lshl_b32 {t0}, {S(sC)}, 10
          s_add_u32 {t0}, {t0}, {FLAGS}
          s_lshl_b32 {t1}, {S(sM)}, 7
          s_lshl_b32 {t2}, {S(sWV)}, 2
          s_add_u32 {t1}, {t1}, {t2}
          v_mov_b32 v{vFA}, {t1}
          s_mul_i32 {t2}, {S(sLAY)}, {PH_O2-PH_O1}
          s_add_u32 {t2}, {t2}, {S(sTAG)}
          s_add_u32 {t2}, {t2}, {PH_O1}
          v_mov_b32 v{vFV}, {t2}
          v_bfe_u32 v{vFP}, v{vL}, 2, 3
          v_and_b32 v{vFP+1}, 3, v{vL}
          v_lshlrev_b32 v{vFP+1}, 2, v{vFP+1}
          v_lshl_add_u32 v{vFP}, v{vFP}, 7, v{vFP+1}
          s_waitcnt vmcnt(0)
          s_mov_b64 exec, 1""")
    dual_store([f"buffer_store_dword v{vFV}, v{vFA}, {S(SWS,4)}, {t0} offen @"])
    A("s_mov_b64 exec, -1\ns_barrier")
    if O.get("stop") == 1: A("s_branch L_exit")
    stamp("o_flagged")
    aO = lambda ks, c: 192 + 16 * (ks & 1) + 4 * c
    def woreads(ks):
        return [f"ds_read_b64_tr_b16 {ar(aO(ks,c)+2*hf,2)}, v{vWO+c} offset:{ks*4096 + hf*512}" for c in range(4) for hf in range(2)]
    for x in woreads(0): A(x)
    A.label("L_opoll")
    A(f"buffer_load_dword v{vFP+1}, v{vFP}, {S(SWS,4)}, {t0} offen sc1\ns_waitcnt vmcnt(0)\nv_cmp_ne_u32 vcc, {t2}, v{vFP+1}")
    spin()
    A("s_cbranch_vccnz L_opoll")
    stamp("o_seen")
    for ks in range(16):
        A(f"buffer_load_dwordx4 {vr(vOF+4*ks,4)}, v{vOLD}, {S(SWS,4)}, s{sROT+(ks>>1)} offen offset:{(ks&1)*1024} sc1")
    for ks in range(16):
        R = woreads(ks + 1) if ks < 15 else []
        A(f"s_waitcnt vmcnt({15-ks}) lgkmcnt(0)")
        for c in range(4):
            A(mf(accP + 4 * c, ar(aO(ks, c), 4), vr(vOF + 4 * ks, 4), vr(accP + 4 * c, 4)))
            for x in R[2 * c:2 * c + 2]: A(x)
    stamp("p2_end")
    vX = base
    for c in range(4):
        for h in range(2): A(f"v_cvt_pk_bf16_f32 v{vX+2*c+h}, v{accP+4*c+2*h}, v{accP+4*c+2*h+1}")
    for u in range(2):
        for h in range(2): A(f"v_permlane16_swap_b32 v{vX+4*u+h}, v{vX+4*u+2+h}")
    gS, gG = tmp, tmp + 4
    A(mf(gG, vr(vX, 4), vr(vX, 4), "0")); A(mf(gS, vr(vWR, 4), vr(vX, 4), "0"))
    A(mf(gG, vr(vX + 4, 4), vr(vX + 4, 4), vr(gG, 4))); A(mf(gS, vr(vWR + 4, 4), vr(vX + 4, 4), vr(gS, 4)))
    A(f"s_add_u32 {t2}, {t2}, 1\ns_cmp_eq_u32 {S(sLAY)}, 0\ns_cbranch_scc0 L_nox1")
    dual_store([f"buffer_store_dwordx4 {vr(vX,4)}, v{vXST}, {S(SWS,4)}, 0 offen @",
                f"buffer_store_dwordx4 {vr(vX+4,4)}, v{vXST}, {S(SWS,4)}, 0 offen offset:1024 @"])
    A.label("L_nox1")
    diag(gS + 2, gG)
    A(f"v_mov_b32 v{gS+3}, {t2}\ns_mov_b64 exec, {S(sMV,2)}")
    dual_store([f"buffer_store_dwordx4 {vr(gS,4)}, v{vSTA}, {S(SWS,4)}, 0 offen @"])
    A("s_mov_b64 exec, -1")
    dump(2, vX, 8)
    stamp("stats_out")
    A(f"""s_lshl_b32 {t3}, {S(sLAY)}, 2
          s_add_u32 {t3}, {t3}, {S(sWV)}
          s_cmp_eq_u32 {t3}, 3
          s_cbranch_scc0 L_nohalo_st
          v_bfe_u32 v{tmp+12}, v{vXST}, 8, 2
          v_and_b32 v{tmp+13}, 7, v{vI}
          v_lshlrev_b32 v{tmp+13}, 4, v{tmp+13}
          v_lshl_add_u32 v{tmp+12}, v{tmp+12}, 7, v{tmp+13}
          s_lshl_b32 {t4}, {S(sC)}, 13
          s_lshl_b32 {t5}, {S(sM)}, 10
          s_add_u32 {t4}, {t4}, {t5}
          s_add_u32 {t4}, {t4}, {HROW}
          s_mov_b32 exec_lo, 0xFF00FF00
          s_mov_b32 exec_hi, 0xFF00FF00
          buffer_store_dwordx4 {vr(vX,4)}, v{tmp+12}, {S(SWS,4)}, {t4} offen sc1
          buffer_store_dwordx4 {vr(vX+4,4)}, v{tmp+12}, {S(SWS,4)}, {t4} offen offset:512 sc1
          s_mov_b64 exec, -1
          L_nohalo_st:""")
    vXF = base + 8
    for d in range(8): A(f"v_lshlrev_b32 v{vXF+2*d}, 16, v{vX+d}\nv_and_b32 v{vXF+2*d+1}, 0xFFFF0000, v{vX+d}")
    g0, g1 = tmp + 16, tmp + 20
    A(f"s_mov_b32 {t1}, 4096")
    A.label("L_spoll")
    A(f"""buffer_load_dwordx4 {vr(g0,4)}, v{vSTL}, {S(SWS,4)}, 0 offen sc1
          buffer_load_dwordx4 {vr(g1,4)}, v{vSTL}, {S(SWS,4)}, {t1} offen sc1
          s_waitcnt vmcnt(0)
          v_cmp_ne_u32 vcc, {t2}, v{g0+3}
          v_cmp_ne_u32 s[{sT+4}:{sT+5}], {t2}, v{g1+3}
          s_or_b64 vcc, vcc, s[{sT+4}:{sT+5}]""")
    spin()
    A("s_cbranch_vccnz L_spoll")
    stamp("stats_seen")
    A(f"""s_cmp_eq_u32 {S(sLAY)}, 0
          s_cbranch_scc0 L_noflag
          s_add_u32 {t4}, {S(sTAG)}, {PH_X1}
          v_mov_b32 v{vFV}, {t4}
          s_mov_b64 exec, 1""")
    dual_store([f"buffer_store_dword v{vFV}, v{vFA}, {S(SWS,4)}, {t0} offen offset:16 @"])
    A(f"""s_mov_b64 exec, -1
          s_cmp_eq_u32 {S(sWV)}, 3
          s_cbranch_scc0 L_noflag
          s_lshl_b32 {t4}, {S(sC)}, 10
          s_lshl_b32 {t5}, {S(sM)}, 7
          s_add_u32 {t4}, {t4}, {t5}
          s_add_u32 {t4}, {t4}, {HST}
          s_mov_b32 exec_lo, 0
          s_mov_b32 exec_hi, s{sMV+1}
          buffer_store_dwordx4 {vr(gS,4)}, v{tmp+13}, {S(SWS,4)}, {t4} offen sc1
          s_mov_b64 exec, -1
          L_noflag:""")
    def red3(a, b, c, d):
        A(f"""v_mov_b32 v{d}, v{c}
              v_permlane32_swap_b32 v{a}, v{b}
              v_permlane32_swap_b32 v{c}, v{d}
              v_add_f32 v{a}, v{a}, v{b}
              v_add_f32 v{c}, v{c}, v{d}
              v_permlane16_swap_b32 v{a}, v{c}
              v_add_f32 v{a}, v{a}, v{c}
              v_mov_b32 v{c}, v{a}
              v_permlane16_swap_b32 v{a}, v{c}
              v_mov_b32 v{b}, v{a}
              v_permlane32_swap_b32 v{a}, v{b}""")
    for r in range(3): A(f"v_add_f32 v{g0+r}, v{g0+r}, v{g1+r}")
    red3(g0, g0 + 1, g0 + 2, g0 + 3)
    nm, rs, var, vk = g1, g1 + 1, g0 + 2, g1 + 2
    A(f"""v_mul_f32 v{nm}, 0xBB000000, v{g0}
          v_mul_f32 v{var}, 0x3B000000, v{var}
          v_fma_f32 v{var}, -v{nm}, v{nm}, v{var}
          v_max_f32 v{var}, 0, v{var}
          v_add_f32 v{rs}, {EPS}, v{var}
          v_rsq_f32 v{rs}, v{rs}
          v_fma_f32 v{vk}, v{nm}, {S(sSUMW)}, v{g0+1}
          s_lshl_b32 {t4}, {S(sC)}, 6
          s_lshl_b32 {t5}, {S(sWV)}, 4
          s_add_u32 {t4}, {t4}, {t5}
          v_add_u32 v{g0}, {t4}, v{vI}
          v_mul_f32 v{vk}, v{vk}, v{rs}
          v_ashrrev_i32 v{g0+1}, 31, v{vk}
          v_or_b32 v{g0+1}, 0x80000000, v{g0+1}
          v_xor_b32 v{vk}, v{vk}, v{g0+1}
          v_and_b32 v{vk}, 0xFFFFF800, v{vk}
          v_or_b32 v{vk}, v{vk}, v{g0}
          v_mov_b32 v{g0}, v{vk}""")
    for sh in (8, 4, 2, 1): A(f"v_max_u32_dpp v{g0}, v{g0}, v{g0} row_ror:{sh} row_mask:0xf bank_mask:0xf")
    A(f"""s_lshl_b32 {t4}, {S(sWV)}, 2
          s_add_u32 {t4}, {t4}, {T_KEY}
          v_mov_b32 v{g0+1}, {t4}
          ds_write_b32 v{g0+1}, v{g0}
          v_add_f32 v{vAL}, 1.0, v{rs}
          v_mul_f32 v{vAL+1}, v{nm}, v{rs}
          v_mul_f32 v{g0+3}, v{vAL}, v{vAL}
          v_mov_b32 v{g0+1}, {EPS}
          v_fma_f32 v{g0+3}, v{var}, v{g0+3}, v{g0+1}
          v_rsq_f32 v{g0+3}, v{g0+3}
          s_lshl_b32 {t4}, {S(sWV)}, 6
          v_add_u32 v{g0+1}, {t4}, v{vTI}
          v_mul_f32 v{g0+3}, v{g0+3}, v{vAL}
          ds_write2_b32 v{g0+1}, v{nm}, v{g0+3} offset0:16 offset1:96
          ds_write_b32 v{g0+1}, v{rs} offset:{4*176}
          v_mov_b32 v{g0+1}, {T_KEY}
          s_waitcnt lgkmcnt(0)
          s_barrier
          ds_read_b128 {vr(tmp+24,4)}, v{g0+1}""")
    vXN = base + 24
    for d in range(8):
        A(f"v_pk_fma_f32 {vr(vXN+8+2*d,2)}, {vr(vXF+2*d,2)}, {vr(nm,2)}, {vr(vAL,2)} op_sel:[0,1,1] op_sel_hi:[1,1,1]")
    A(f"""s_waitcnt lgkmcnt(0)
          v_max3_u32 v{tmp+24}, v{tmp+24}, v{tmp+25}, v{tmp+26}
          v_max_u32 v{tmp+24}, v{tmp+24}, v{tmp+27}
          v_mov_b32 v{tmp+25}, {t2}
          s_lshl_b32 {t4}, {S(sLAY)}, 5
          s_add_u32 {t4}, {t4}, {S(sC)}
          s_add_u32 {t5}, {S(sM)}, {S(sWV)}
          s_cmp_eq_u32 {t5}, 0
          s_cbranch_scc0 L_nocand
          s_lshl_b32 {t5}, {t4}, 7
          s_add_u32 {t5}, {t5}, {CAND}
          s_mov_b64 exec, 1
          buffer_store_dwordx2 {vr(tmp+24,2)}, v{vL}, {S(SWS,4)}, {t5} offen sc1
          s_mov_b64 exec, -1
          L_nocand:""")
    for d in range(8): A(f"v_cvt_pk_bf16_f32 v{vXN+d}, v{vXN+8+2*d}, v{vXN+9+2*d}")
    A(f"""v_bfe_u32 v{tmp+26}, v{vXST}, 8, 2
          v_lshlrev_b32 v{tmp+26}, 4, v{tmp+26}
          s_lshl_b32 {t4}, {t4}, 10
          s_lshl_b32 {t5}, {S(sM)}, 7
          s_add_u32 {t4}, {t4}, {t5}
          s_add_u32 {t4}, {t4}, {CROW}
          v_cmp_eq_u32 vcc, v{tmp+24}, v{vk}
          s_and_saveexec_b64 s[{sT+6}:{sT+7}], vcc
          s_cbranch_execz L_norow
          buffer_store_dwordx4 {vr(vXN,4)}, v{tmp+26}, {S(SWS,4)}, {t4} offen sc1
          buffer_store_dwordx4 {vr(vXN+4,4)}, v{tmp+26}, {S(SWS,4)}, {t4} offen offset:64 sc1
          L_norow:
          s_mov_b64 exec, -1""")
    stamp("cand_out")
    A(f"s_cmp_eq_u32 {S(sLAY)}, 0\ns_cbranch_scc0 L_final")

    A(f"""v_and_b32 v{tmp}, 7, v{vL}
          v_lshlrev_b32 v{tmp}, 7, v{tmp}
          s_lshl_b32 {t4}, {S(sWV)}, 2
          v_add_u32 v{tmp}, {t4}, v{tmp}
          s_add_u32 {t4}, {S(sTAG)}, {PH_X1}
          v_add_u32 v{tmp+2}, {X1BUF-OBUF}, v{vOLD}""")
    A.label("L_xpoll")
    A(f"buffer_load_dword v{tmp+1}, v{tmp}, {S(SWS,4)}, {t0} offen offset:16 sc1\ns_waitcnt vmcnt(0)\nv_cmp_ne_u32 vcc, {t4}, v{tmp+1}")
    spin()
    A("s_cbranch_vccnz L_xpoll")
    A(f"s_lshl_b32 {t4}, {S(sWV)}, 14")
    for p in range(8):
        A(f"s_add_u32 m0, {t4}, {p*2048}\ns_nop 0")
        for e in range(2): A(f"buffer_load_dwordx4 v{tmp+2}, {S(SWS,4)}, s{sROT+p} offen offset:{e*1024} sc1 lds")
    A(f"""v_mov_b32 v{vA}, v{vL16}
          v_add_u32 v{vA+1}, 1024, v{vL16}
          v_and_b32 v{tmp}, 7, v{vI}
          v_lshlrev_b32 v{tmp}, 4, v{tmp}
          v_lshl_add_u32 v{tmp}, v{vGq}, 7, v{tmp}
          v_add_u32 v{tmp}, {XH}, v{tmp}
          v_add_u32 v{tmp+1}, 512, v{tmp}
          v_cmp_gt_u32 vcc, 8, v{vI}
          v_cndmask_b32 v{vH}, v{tmp}, v{vH}, vcc
          v_cndmask_b32 v{vH+1}, v{tmp+1}, v{vH+1}, vcc
          v_lshrrev_b32 v{tmp}, 1, v{vGq}
          v_lshlrev_b32 v{tmp}, 8, v{tmp}
          v_lshl_add_u32 v{tmp}, v{vI}, 4, v{tmp}
          v_and_b32 v{tmp+1}, 1, v{vGq}
          v_lshl_add_u32 v{tmp}, v{tmp+1}, 3, v{tmp}
          v_add_u32 v{vRA}, {S(sW3K)}, v{tmp}""")
    for c in range(1, 4): A(f"v_add_u32 v{vRA+c}, {512*c}, v{vRA}")
    vWDR = tmp + 16
    fE = lambda t, mat, par: vFG + 16 * t + 8 * mat + 4 * par
    A(f"""s_cmp_lt_u32 {S(sF)}, 43
          s_cbranch_scc0 L_noffnld
          s_mul_i32 {t4}, {S(sWV)}, {128*2752}
          s_lshl_b32 {t5}, {S(sF)}, 6
          s_add_u32 {t4}, {t4}, {t5}
          v_mul_u32_u24 v{tmp}, {8*2752}, v{vGq}
          v_lshl_add_u32 v{tmp}, v{vI}, 2, v{tmp}
          v_add_u32 v{tmp}, {t4}, v{tmp}
          s_lshl_b32 {t4}, {S(sWV)}, 8
          s_lshl_b32 {t5}, {S(sF)}, 15
          s_add_u32 {t4}, {t4}, {t5}
          v_lshlrev_b32 v{tmp+1}, 13, v{vGq}
          v_lshl_add_u32 v{tmp+1}, v{vI}, 4, v{tmp+1}
          v_add_u32 v{tmp+1}, {t4}, v{tmp+1}
          s_mov_b32 {t5}, 4096""")
    for e in range(8):
        A(f"buffer_load_dwordx4 {vr(vWDR+4*e,4)}, v{tmp+1}, {S(SWD,4)}, {t5 if e >= 4 else 0} offen offset:{(e&3)*1024}")
    def gu_loads(t):
        for d in range(4):
            A(f"s_mov_b32 {t4}, {(32*t + 2*d) * 2752}")
            for mat, srd in ((0, SWG), (1, SWU)):
                for par in range(2):
                    A(f"buffer_load_dword v{fE(t,mat,par)+d}, v{tmp}, {S(srd,4)}, {t4} offen offset:{par*2752}")
    gu_loads(0); gu_loads(1)
    A("s_waitcnt vmcnt(40)")
    gu_loads(2)
    A("s_waitcnt vmcnt(40)")
    gu_loads(3)
    A("s_branch L_xwait2")
    A.label("L_noffnld")
    A("s_waitcnt vmcnt(0)")
    A.label("L_xwait2")
    A("s_barrier")
    stamp("x1_landed")
    def gemm_tile(t):
        A.label(f"L_tile{t}")
        NB = 4
        fr = lambda ks: 192 + 4 * (ks % NB)
        def rd(ks):
            if t == 0: return f"ds_read_b128 {ar(fr(ks),4)}, v{vH+(ks&1)} offset:{(ks>>1)*1024}"
            return f"ds_read_b128 {ar(fr(ks),4)}, v{vA+(ks&1)} offset:{(t-1)*16384 + (ks>>1)*2048}"
        for ks in range(NB - 1): A(rd(ks))
        for ks in range(16):
            n = min(NB - 2, 15 - ks)
            A(f"s_waitcnt lgkmcnt({n})")
            x = ar(fr(ks), 4); C = lambda d: "0" if ks == 0 else vr(d, 4)
            A(mf(accK[t], ar(aW(ks, 1), 4), x, C(accK[t])))
            if ks + NB - 1 < 16: A(rd(ks + NB - 1))
            A(mf(accV[t], x, ar(aW(ks, 2), 4), C(accV[t])))
            if t: A(mf(accQ[t], ar(aW(ks, 0), 4), x, C(accQ[t])))
        A(f"s_cmp_eq_u32 {S(sRET)}, 0\ns_cbranch_scc0 L_patched")
    for t in range(1, O["ffn_after"] + 1): gemm_tile(t)
    A(f"""s_cmp_lt_u32 {S(sF)}, 43
          s_cbranch_scc0 L_ffn_ret1
          s_mov_b32 {t4}, 0x05040100
          s_mov_b32 {t5}, 0x07060302
          s_waitcnt vmcnt(0)""")
    for n in range(8):
        for d in range(4):
            A(f"v_perm_b32 v{tmp+(d&1)}, v{vWDR+8*d+4+(n>>1)}, v{vWDR+8*d+(n>>1)}, {t5 if n & 1 else t4}")
            A(f"v_accvgpr_write_b32 a{aWDN+4*n+d}, v{tmp+(d&1)}")
    for t in range(4):
        for mat in range(2):
            for d in range(4):
                e_, o_ = fE(t, mat, 0) + d, fE(t, mat, 1) + d
                A(f"v_perm_b32 v{tmp}, v{o_}, v{e_}, {t4}\nv_perm_b32 v{o_}, v{o_}, v{e_}, {t5}\nv_mov_b32 v{e_}, v{tmp}")
    A("s_branch L_bpoll0")
    A.label("L_ffn_ret1")
    stamp("ffn_ret1")
    for t in range(O["ffn_after"] + 1, 5): gemm_tile(t)
    stamp("tiles_done")
    A(f"""s_cmp_eq_u32 {S(sPREV)}, 255
          s_cbranch_scc1 L_nohalo
          s_lshl_b32 {t4}, {S(sPREV)}, 10
          s_add_u32 {t4}, {t4}, {HST}
          s_add_u32 {t5}, {S(sTAG)}, {PH_S1}""")
    A.label("L_hpoll")
    A(f"buffer_load_dwordx4 {vr(tmp,4)}, v{vL16}, {S(SWS,4)}, {t4} offen sc1\ns_waitcnt vmcnt(0)\nv_cmp_ne_u32 vcc, {t5}, v{tmp+3}")
    spin()
    A("s_cbranch_vccnz L_hpoll")
    A(f"""s_lshl_b32 {t4}, {S(sPREV)}, 13
          s_add_u32 {t4}, {t4}, {HROW}
          s_lshl_b32 {t3}, {S(sWV)}, 1
          s_add_u32 {t3}, {t3}, {S(sG)}
          s_lshl_b32 {t5}, {S(sWV)}, 11""")
    for e in range(2):
        A(f"""s_add_u32 {t2}, {t3}, {e}
              s_and_b32 {t2}, {t2}, 7
              s_lshl_b32 {t2}, {t2}, 10
              s_add_u32 {t2}, {t2}, {t4}
              s_add_u32 m0, {t5}, {XH + e*1024}
              s_nop 0
              buffer_load_dwordx4 v{vL16}, {S(SWS,4)}, {t2} offen sc1 lds""")
    h1, h2 = tmp, tmp + 2
    for x in (h1, h2): A(f"v_add_f32_dpp v{x}, v{x}, v{x} row_ror:8 row_mask:0xf bank_mask:0xf")
    red3(h1, tmp + 1, h2, tmp + 3)
    A(f"""v_mul_f32 v{tmp+4}, 0xBB000000, v{h1}
          v_mul_f32 v{h2}, 0x3B000000, v{h2}
          v_fma_f32 v{h2}, -v{tmp+4}, v{tmp+4}, v{h2}
          v_max_f32 v{h2}, 0, v{h2}
          v_add_f32 v{tmp+5}, {EPS}, v{h2}
          v_rsq_f32 v{tmp+5}, v{tmp+5}
          v_mov_b32 v{tmp+1}, {EPS}
          v_add_f32 v{tmp+6}, 1.0, v{tmp+5}
          v_mul_f32 v{tmp+7}, v{tmp+6}, v{tmp+6}
          v_fma_f32 v{tmp+7}, v{h2}, v{tmp+7}, v{tmp+1}
          v_rsq_f32 v{tmp+7}, v{tmp+7}
          s_nop 0
          v_mul_f32 v{tmp+7}, v{tmp+7}, v{tmp+6}
          ds_write2_b32 v{vTI}, v{tmp+4}, v{tmp+7} offset0:0 offset1:80
          ds_write_b32 v{vTI}, v{tmp+5} offset:{4*160}
          s_waitcnt vmcnt(0) lgkmcnt(0)
          s_barrier""")
    A.label("L_nohalo")
    stamp("halo_in")
    gemm_tile(0)
    stamp("halo_tile")
    A(f"s_cmp_lt_u32 {S(sF)}, 43\ns_cbranch_scc0 L_bpoll0")
    A.label("L_ffn_ret2")
    stamp("winner_known")
    A(f"""s_cmp_eq_u32 s2, 0
          s_cbranch_scc0 L_noepoch
          v_mov_b32 v{tmp}, {S(sTAG)}
          s_mov_b64 exec, 1
          buffer_store_dword v{tmp}, v{vL}, {S(SWS,4)}, 0 offen sc1
          s_mov_b64 exec, -1
          L_noepoch:
          s_mov_b32 {S(sLAY)}, 1
          s_bfe_u32 {t0}, {S(sKEY)}, 0x50006
          s_and_b32 {t1}, {S(sKEY)}, 63
          s_and_b32 {S(sI)}, {S(sKEY)}, 15
          s_lshr_b32 {S(sRT)}, {t1}, 4
          s_add_u32 {S(sRT)}, {S(sRT)}, 1
          s_lshl_b32 {t2}, {S(sRT)}, 14
          s_lshl_b32 {t3}, {S(sI)}, 4
          s_add_u32 {t2}, {t2}, {t3}
          s_sub_u32 {t2}, {t2}, 16384
          s_mov_b32 {t3}, 8
          s_cmp_eq_u32 {t0}, {S(sC)}
          s_cbranch_scc1 L_patch
          s_cmp_eq_u32 {t0}, {S(sPREV)}
          s_cbranch_scc0 L_attn
          s_cmp_ge_u32 {t1}, 57
          s_cbranch_scc0 L_attn
          s_mov_b32 {S(sRT)}, 0
          s_lshl_b32 {t2}, {S(sI)}, 4
          s_add_u32 {t2}, {t2}, {XH - 128}
          s_mov_b32 {t3}, 7""")
    A.label("L_patch")
    pa, px, pb, psel, pya, pyb, psig = tmp, tmp + 2, tmp + 4, tmp + 8, tmp + 12, tmp + 13, tmp + 14
    vY = tmp + 16
    yacc = tmp + 48
    def sigma(dst):
        A(f"""s_and_b32 {t4}, {S(sKEY)}, 0xFFFFF800
              s_ashr_i32 {t5}, {t4}, 31
              s_not_b32 {t5}, {t5}
              s_or_b32 {t5}, {t5}, 0x80000000
              s_xor_b32 {t4}, {t4}, {t5}
              v_mov_b32 v{dst}, 0xBFB8AA3B
              v_mul_f32 v{dst}, {t4}, v{dst}
              v_exp_f32 v{dst}, v{dst}
              s_nop 0
              v_add_f32 v{dst}, 1.0, v{dst}
              v_rcp_f32 v{dst}, v{dst}""")
    def selector(dst, scr):
        A(f"""v_and_b32 v{scr}, 1, v{vI}
              v_lshlrev_b32 v{scr}, 4, v{scr}
              v_mov_b32 v{scr+1}, 0x3F80
              v_lshlrev_b32 v{scr}, v{scr}, v{scr+1}
              v_bfe_u32 v{scr+1}, v{vI}, 1, 2""")
        for d in range(4): A(f"v_cmp_eq_u32 vcc, {d}, v{scr+1}\nv_cndmask_b32 v{dst+d}, 0, v{scr}, vcc")
    A(f"""s_lshl_b32 {t4}, {S(sWV)}, 4
          s_lshl_b32 {t5}, {S(sG)}, 3
          s_sub_u32 {t4}, {t4}, {t5}
          v_add_u32 v{pa}, {t4}, v{vI}
          v_and_b32 v{pa}, 63, v{pa}
          v_lshlrev_b32 v{pa}, {t3}, v{pa}
          v_and_b32 v{pa+1}, 1, v{vGq}
          v_lshl_add_u32 v{pa}, v{pa+1}, 3, v{pa}
          v_add_u32 v{pa}, {t2}, v{pa}
          s_lshl_b32 {t4}, {S(sRT)}, 4
          s_add_u32 {t4}, {t4}, {S(sI)}
          s_lshl_b32 {t4}, {t4}, 2
          s_add_u32 {t4}, {t4}, {T_NM}
          v_mov_b32 v{pa+1}, {t4}
          ds_read_b64 {vr(px,2)}, v{pa}
          ds_read2_b32 {vr(vY,2)}, v{pa+1} offset0:0 offset1:160""")
    selector(psel, pya)
    sigma(psig)
    A(f"""s_lshl_b32 {t4}, {S(sWV)}, 8
          s_add_u32 {t4}, {t4}, {YPART}
          v_lshlrev_b32 v{pya}, 10, v{vGq}
          v_lshl_add_u32 v{pya}, v{vI}, 4, v{pya}
          v_add_u32 v{pya}, {t4}, v{pya}
          v_mov_b32 v{pyb}, {OOB}
          v_cmp_gt_u32 vcc, 3, v{vGq}
          v_cndmask_b32 v{pyb}, v{pyb}, v{pya}, vcc
          s_waitcnt lgkmcnt(0)
          v_mul_f32 v{vY}, v{vY}, v{vY+1}
          v_add_f32 v{vY+1}, 1.0, v{vY+1}""")
    for h in range(2):
        A(f"v_lshlrev_b32 v{pb+2*h}, 16, v{px+h}\nv_and_b32 v{pb+2*h+1}, 0xFFFF0000, v{px+h}")
        A(f"v_pk_fma_f32 {vr(pb+2*h,2)}, {vr(pb+2*h,2)}, {vr(vY,2)}, {vr(vY,2)} op_sel:[0,1,0] op_sel_hi:[1,1,0]")
    A(f"""s_add_u32 {t4}, {S(sWV)}, 1
          s_cmp_eq_u32 {t4}, {S(sRT)}
          s_cselect_b32 {t4}, {S(sI)}, 99
          v_cmp_eq_u32 vcc, {t4}, v{vI}
          v_cndmask_b32 v{vAL}, v{vAL}, 1.0, vcc
          v_cndmask_b32 v{vAL+1}, v{vAL+1}, 0, vcc""")
    for bi, (lo, hi) in enumerate(((0, 8), (8, 11))):
        A.label(f"L_ypoll{bi}")
        for t in range(lo, hi):
            A(f"s_mov_b32 {t4}, {t*4096}\nbuffer_load_dwordx4 {vr(vY+4*(t-lo),4)}, v{pyb if t == 10 else pya}, {S(SWS,4)}, {t4} offen sc1")
        A(f"v_mov_b32 v{px}, 0")
        for t in range(lo, hi):
            y = vY + 4 * (t - lo)
            A(f"s_waitcnt vmcnt({hi-1-t})\nv_max3_u32 v{px}, v{px}, v{y}, v{y+1}\nv_max3_u32 v{px}, v{px}, v{y+2}, v{y+3}")
        A(f"v_cmp_eq_u32 vcc, -1, v{px}")
        spin()
        A(f"s_cbranch_vccnz L_ypoll{bi}")
        for t in range(lo, hi):
            A(mf(yacc, vr(psel, 4), vr(vY + 4 * (t - lo), 4), "0" if t == 0 else vr(yacc, 4)))
    stamp("y_in")
    for r in range(4): A(f"v_fma_f32 v{pb+r}, v{yacc+r}, v{psig}, v{pb+r}")
    A(f"""v_cvt_pk_bf16_f32 v{px}, v{pb}, v{pb+1}
          v_cvt_pk_bf16_f32 v{px+1}, v{pb+2}, v{pb+3}
          v_mov_b32 v{pb}, 0
          v_mov_b32 v{pb+1}, 0
          ds_write_b64 v{pa}, {vr(px,2)}
          v_dot2c_f32_bf16 v{pb}, v{px}, v{vONE}
          v_dot2c_f32_bf16 v{pb+1}, v{px}, v{px}
          v_dot2c_f32_bf16 v{pb}, v{px+1}, v{vONE}
          v_dot2c_f32_bf16 v{pb+1}, v{px+1}, v{px+1}""")
    for sh in (8, 4, 2, 1):
        for x in (pb, pb + 1): A(f"v_add_f32_dpp v{x}, v{x}, v{x} row_ror:{sh} row_mask:0xf bank_mask:0xf")
    A(f"""v_and_b32 v{pb+2}, 1, v{vGq}
          v_lshlrev_b32 v{pb+2}, 3, v{pb+2}
          s_lshl_b32 {t4}, {S(sWV)}, 4
          s_add_u32 {t4}, {t4}, {T_PST}
          v_add_u32 v{pb+2}, {t4}, v{pb+2}
          ds_write_b64 v{pb+2}, {vr(pb,2)}
          s_mov_b32 {S(sRET)}, 1
          s_waitcnt lgkmcnt(0)
          s_barrier""")
    for t in range(4): A(f"s_cmp_eq_u32 {S(sRT)}, {t}\ns_cbranch_scc1 L_tile{t}")
    A("s_branch L_tile4")
    A.label("L_patched")
    A(f"v_mov_b32 v{pb}, {T_PST}")
    for w in range(4): A(f"ds_read_b128 {vr(vY+4*w,4)}, v{pb} offset:{16*w}")
    A("s_waitcnt lgkmcnt(0)")
    for w in range(1, 8): A(f"v_pk_add_f32 {vr(vY,2)}, {vr(vY,2)}, {vr(vY+2*w,2)}")
    A(f"""v_mul_f32 v{vY}, 0xBB000000, v{vY}
          v_mul_f32 v{vY+1}, 0x3B000000, v{vY+1}
          v_fma_f32 v{vY+1}, -v{vY}, v{vY}, v{vY+1}
          v_max_f32 v{vY+1}, 0, v{vY+1}
          v_add_f32 v{vY+1}, {EPS}, v{vY+1}
          v_rsq_f32 v{vY+1}, v{vY+1}
          s_nop 0
          ds_write2_b32 v{pa+1}, v{vY}, v{vY+1} offset0:0 offset1:80
          s_branch L_attn""")

    A.label("L_final")
    vOUT = base + 24
    for d in range(8):
        A(f"v_pk_fma_f32 {vr(vXF+2*d,2)}, {vr(vXF+2*d,2)}, {vr(vAL,2)}, {vr(vAL,2)} op_sel:[0,0,1] op_sel_hi:[1,0,1]")
    A(f"""v_lshlrev_b32 v{tmp+27}, 1, v{tmp+26}
          v_add_u32 v{tmp+27}, {T_ROW}, v{tmp+27}
          s_and_saveexec_b64 s[{sT+6}:{sT+7}], vcc""")
    for k in range(4): A(f"ds_write_b128 v{tmp+27}, {vr(vXF+4*k,4)} offset:{(k>>1)*128 + (k&1)*16}")
    A("s_mov_b64 exec, -1")
    vPK = base + 48
    for d in range(8): A(f"v_cvt_pk_bf16_f32 v{vPK+d}, v{vXF+2*d}, v{vXF+2*d+1}")
    A(f"""s_lshl_b32 {t4}, {S(sWV)}, 14
          v_lshl_add_u32 v{tmp+27}, v{vI}, 7, v{tmp+26}
          v_add_u32 v{tmp+27}, {t4}, v{tmp+27}
          v_add_u32 v{tmp+28}, {t4}, v{vL16}
          ds_write_b128 v{tmp+27}, {vr(vPK,4)}
          ds_write_b128 v{tmp+27}, {vr(vPK+4,4)} offset:64
          s_waitcnt lgkmcnt(0)
          ds_read_b128 {vr(vPK,4)}, v{tmp+28}
          ds_read_b128 {vr(vPK+4,4)}, v{tmp+28} offset:1024
          s_lshr_b32 {t0}, {S(sG)}, 1
          s_lshl_b32 {t0}, {t0}, 2
          s_add_u32 {t0}, {t0}, {S(sS)}
          s_lshl_b32 {t0}, {t0}, 17
          s_and_b32 {t1}, {S(sG)}, 1
          s_lshl_b32 {t1}, {t1}, 10
          s_add_u32 {t0}, {t0}, {t1}
          s_lshl_b32 {t1}, {S(sM)}, 7
          s_add_u32 {S(sXB)}, {t0}, {t1}
          s_lshl_b32 {t1}, {S(sWV)}, 15
          s_add_u32 {t0}, {S(sXB)}, {t1}
          s_add_u32 {t1}, {t0}, 16384
          v_lshrrev_b32 v{tmp+27}, 3, v{vL}
          v_and_b32 v{tmp+28}, 7, v{vL}
          v_lshlrev_b32 v{tmp+28}, 4, v{tmp+28}
          v_lshl_add_u32 v{tmp+27}, v{tmp+27}, 11, v{tmp+28}
          s_waitcnt lgkmcnt(0)
          buffer_store_dwordx4 {vr(vPK,4)}, v{tmp+27}, {S(SOUT,4)}, {t0} offen sc1
          buffer_store_dwordx4 {vr(vPK+4,4)}, v{tmp+27}, {S(SOUT,4)}, {t1} offen sc1""")
    if O["wbl2"]:
        A(f"""s_lshl_b32 {t4}, {S(sM)}, 2
              s_add_u32 {t4}, {t4}, {S(sWV)}
              s_cmp_eq_u32 {t4}, 31
              s_cbranch_scc0 L_nowb
              buffer_wbl2 sc1
              L_nowb:""")
    stamp("out_stored")
    A.label("L_bpoll0")
    bk = tmp
    A(f"""v_and_b32 v{bk+2}, 31, v{vL}
          v_lshlrev_b32 v{bk+2}, 7, v{bk+2}
          s_lshl_b32 {t4}, {S(sLAY)}, 12
          s_add_u32 {t4}, {t4}, {CAND}
          s_mul_i32 {t5}, {S(sLAY)}, {PH_S2-PH_S1}
          s_add_u32 {t5}, {t5}, {S(sTAG)}
          s_add_u32 {t5}, {t5}, {PH_S1}""")
    A.label("L_bpoll")
    A(f"buffer_load_dwordx2 {vr(bk,2)}, v{bk+2}, {S(SWS,4)}, {t4} offen sc1\ns_waitcnt vmcnt(0)\nv_cmp_ne_u32 vcc, {t5}, v{bk+1}")
    spin()
    A("s_cbranch_vccnz L_bpoll")
    for sh in (8, 4, 2, 1): A(f"v_max_u32_dpp v{bk}, v{bk}, v{bk} row_ror:{sh} row_mask:0xf bank_mask:0xf")
    A(f"""v_readlane_b32 {t4}, v{bk}, 0
          v_readlane_b32 {t5}, v{bk}, 16
          s_max_u32 {S(sKEY)}, {t4}, {t5}""")
    stamp("b_seen")
    A(f"""s_cmp_lt_u32 {S(sF)}, 43
          s_cbranch_scc0 L_ffn_done
          s_bfe_u32 {t4}, {S(sKEY)}, 0x50006
          s_lshl_b32 {t5}, {S(sLAY)}, 5
          s_add_u32 {t4}, {t4}, {t5}
          s_lshl_b32 {t4}, {t4}, 10
          s_lshl_b32 {t5}, {S(sWV)}, 8
          s_add_u32 {t4}, {t4}, {t5}
          s_add_u32 {t4}, {t4}, {CROW}
          v_lshlrev_b32 v{bk}, 4, v{vGq}""")
    xr = tmp + 4; fa = tmp + 20
    A.label("L_rpoll")
    for t in range(4): A(f"buffer_load_dwordx4 {vr(xr+4*t,4)}, v{bk}, {S(SWS,4)}, {t4} offen offset:{64*t} sc1")
    A(f"v_mov_b32 v{bk+1}, 0\ns_waitcnt vmcnt(0)")
    for t in range(4): A(f"v_max3_u32 v{bk+1}, v{bk+1}, v{xr+4*t}, v{xr+4*t+1}\nv_max3_u32 v{bk+1}, v{bk+1}, v{xr+4*t+2}, v{xr+4*t+3}")
    A(f"v_cmp_eq_u32 vcc, -1, v{bk+1}")
    spin()
    A("s_cbranch_vccnz L_rpoll")
    stamp("row_in")
    for t in range(4):
        for k in range(4):
            A(mf(fa + 4 * k, vr(xr + 4 * t, 4), vr(fE(t, k >> 1, k & 1), 4), "0" if t == 0 else vr(fa + 4 * k, 4)))
    A(f"""s_lshl_b32 {t4}, {S(sWV)}, 8
          s_add_u32 {t4}, {t4}, {T_FFN}
          v_lshlrev_b32 v{bk}, 4, v{vI}
          v_add_u32 v{bk}, {t4}, v{bk}
          v_and_b32 v{bk+1}, 3, v{vI}
          v_lshl_add_u32 v{bk+1}, v{vGq}, 2, v{bk+1}
          v_lshlrev_b32 v{bk+1}, 4, v{bk+1}
          v_add_u32 v{bk+1}, {T_FFN}, v{bk+1}
          v_mov_b32 v{fa+1}, v{fa+4}
          v_mov_b32 v{fa+2}, v{fa+8}
          v_mov_b32 v{fa+3}, v{fa+12}
          s_mov_b64 exec, 0xFFFF
          ds_write_b128 v{bk}, {vr(fa,4)}
          s_mov_b64 exec, -1
          s_waitcnt lgkmcnt(0)
          s_barrier""")
    for w in range(4): A(f"ds_read_b128 {vr(xr+4*w,4)}, v{bk+1} offset:{256*w}")
    A(f"""s_lshl_b32 {t4}, {S(sLAY)}, 16
          s_lshl_b32 {t5}, {S(sF)}, 10
          s_add_u32 {t4}, {t4}, {t5}
          s_lshl_b32 {t5}, {S(sWV)}, 8
          s_add_u32 {t4}, {t4}, {t5}
          s_add_u32 {t4}, {t4}, {YPART}
          s_waitcnt lgkmcnt(0)""")
    for h in range(2):
        A(f"v_pk_add_f32 {vr(xr+2*h,2)}, {vr(xr+2*h,2)}, {vr(xr+4+2*h,2)}\nv_pk_add_f32 {vr(xr+8+2*h,2)}, {vr(xr+8+2*h,2)}, {vr(xr+12+2*h,2)}")
    for h in range(2): A(f"v_pk_add_f32 {vr(xr+2*h,2)}, {vr(xr+2*h,2)}, {vr(xr+8+2*h,2)}")
    A(f"""v_mul_f32 v{xr+4}, 0xBFB8AA3B, v{xr}
          v_mul_f32 v{xr+5}, 0xBFB8AA3B, v{xr+1}
          v_exp_f32 v{xr+4}, v{xr+4}
          v_exp_f32 v{xr+5}, v{xr+5}
          v_pk_mul_f32 {vr(xr,2)}, {vr(xr,2)}, {vr(xr+2,2)}
          v_add_f32 v{xr+4}, 1.0, v{xr+4}
          v_add_f32 v{xr+5}, 1.0, v{xr+5}
          v_rcp_f32 v{xr+4}, v{xr+4}
          v_rcp_f32 v{xr+5}, v{xr+5}
          s_nop 0
          v_pk_mul_f32 {vr(xr,2)}, {vr(xr,2)}, {vr(xr+4,2)}
          v_cvt_pk_bf16_f32 v{xr}, v{xr}, v{xr+1}""")
    for d in range(4): A(f"v_mov_b32_dpp v{xr+4+d}, v{xr} quad_perm:[{d},{d},{d},{d}] row_mask:0xf bank_mask:0xf")
    yo = tmp + 16
    for n in range(8): A(mf(yo + 4 * n, vr(xr + 4, 4), ar(aWDN + 4 * n, 4), "0"))
    for d in range(4): A(f"v_cvt_pk_bf16_f32 v{xr+d}, v{yo+8*d}, v{yo+8*d+4}")
    A(f"""s_mov_b64 exec, 0xFFFF
          buffer_store_dwordx4 {vr(xr,4)}, v{vL16}, {S(SWS,4)}, {t4} offen sc1
          s_mov_b64 exec, -1
          s_cmp_eq_u32 {S(sLAY)}, 0
          s_cbranch_scc1 L_ffn_ret1""")
    A.label("L_ffn_done")
    A(f"s_cmp_eq_u32 {S(sLAY)}, 0\ns_cbranch_scc1 L_ffn_ret2")
    stamp("ffn_done")
    A(f"""s_bfe_u32 {t0}, {S(sKEY)}, 0x70004
          s_lshl_b32 {t1}, {S(sC)}, 2
          s_add_u32 {t1}, {t1}, {S(sWV)}
          s_cmp_eq_u32 {t0}, {t1}
          s_cbranch_scc0 L_exit""")
    selector(psel, pya)
    sigma(psig)
    A(f"""v_lshrrev_b32 v{pa}, 3, v{vL}
          v_and_b32 v{pa+1}, 7, v{vL}
          v_lshlrev_b32 v{pya}, 4, v{pa+1}
          v_lshl_add_u32 v{pya}, v{pa}, 10, v{pya}
          s_lshl_b32 {t4}, {S(sM)}, 7
          s_add_u32 {t4}, {t4}, {YPART + 65536}
          v_add_u32 v{pya}, {t4}, v{pya}
          v_mov_b32 v{pyb}, {OOB}
          v_cmp_gt_u32 vcc, 3, v{pa}
          v_cndmask_b32 v{pyb}, v{pyb}, v{pya}, vcc
          v_and_b32 v{pa}, 1, v{vGq}
          v_lshl_add_u32 v{pa}, v{pa+1}, 1, v{pa}
          v_lshlrev_b32 v{pa+1}, 4, v{pa}
          v_add_u32 v{pa+1}, {T_ROW}, v{pa+1}
          ds_read_b128 {vr(pb,4)}, v{pa+1}
          v_lshlrev_b32 v{pa}, 3, v{pa}
          s_and_b32 {t0}, {S(sKEY)}, 63
          s_lshl_b32 {t0}, {t0}, 11
          s_add_u32 {t0}, {t0}, {S(sXB)}""")
    A.label("L_zpoll")
    for t in range(6):
        A(f"s_mov_b32 {t4}, {t*8192}\nbuffer_load_dwordx4 {vr(vY+4*t,4)}, v{pyb if t == 5 else pya}, {S(SWS,4)}, {t4} offen sc1")
    A(f"v_mov_b32 v{px}, 0")
    for t in range(6):
        y = vY + 4 * t
        A(f"s_waitcnt vmcnt({5-t})\nv_max3_u32 v{px}, v{px}, v{y}, v{y+1}\nv_max3_u32 v{px}, v{px}, v{y+2}, v{y+3}")
    A(f"v_cmp_eq_u32 vcc, -1, v{px}")
    spin()
    A("s_cbranch_vccnz L_zpoll")
    for t in range(6): A(mf(yacc, vr(psel, 4), vr(vY + 4 * t, 4), "0" if t == 0 else vr(yacc, 4)))
    A("s_waitcnt lgkmcnt(0)")
    for r in range(4): A(f"v_add_f32_dpp v{yacc+r}, v{yacc+r}, v{yacc+r} row_ror:8 row_mask:0xf bank_mask:0xf")
    for r in range(4): A(f"v_fma_f32 v{pb+r}, v{yacc+r}, v{psig}, v{pb+r}")
    A(f"""v_cvt_pk_bf16_f32 v{px}, v{pb}, v{pb+1}
          v_cvt_pk_bf16_f32 v{px+1}, v{pb+2}, v{pb+3}
          s_mov_b64 exec, 0x00FF00FF
          buffer_store_dwordx2 {vr(px,2)}, v{pa}, {S(SOUT,4)}, {t0} offen sc1
          s_mov_b64 exec, -1""")
    if O.get("dbgtime"):
        A(f"""s_mov_b64 exec, 1
              s_load_dwordx2 s[4:5], s[0:1], 72
              s_memrealtime s[92:93]
              s_memtime s[94:95]
              s_mov_b32 s6, 256
              s_waitcnt lgkmcnt(0)
              s_sub_u32 s92, s92, s96
              s_sub_u32 s94, s94, s98
              v_mov_b32 v2, s92
              v_mov_b32 v3, s94
              s_lshl_b32 s92, {S(sM)}, 3
              v_mov_b32 v4, s92
              buffer_store_dwordx2 v[2:3], v4, s[4:7], 0 offen""")
    A.label("L_exit")
    if O["stamps"]:
        stamp("exit")
        A(f"""s_mov_b64 exec, -1
              s_lshl_b32 {t0}, s2, 2
              s_add_u32 {t0}, {t0}, {S(sWV)}
              s_lshl_b32 {t0}, {t0}, 8
              s_add_u32 {t0}, {t0}, {DBG + 0x800000}
              v_lshlrev_b32 v254, 2, v{vL}
              buffer_store_dword v255, v254, {S(SWS,4)}, {t0} offen""")
    A.label("L_end")
    A("s_endpgm")

    lines, nn = fix_hazards(A.lines, verbose=O.get("verbose", False))
    kn = O["kname"]
    hdr = open("interleave_layers__sliding_local_dilated__moe_arch_mod__prompt.s.ref").read().split("; Override launch")[0]
    out = hdr + f"; @launch grid=(256,1,1) block=(256,1,1) lds={LDS_BYTES}\n"
    out += f'.amdgcn_target "amdgcn-amd-amdhsa--gfx950"\n.text\n.globl {kn}\n.p2align 8\n.type {kn},@function\n{kn}:\n'
    out += "".join((l + "\n") if l.endswith(":") else ("    " + l + "\n") for l in lines)
    out += f""".section .rodata,"a"
.p2align 6
.amdhsa_kernel {kn}
  .amdhsa_next_free_vgpr 512
  .amdhsa_next_free_sgpr 102
  .amdhsa_accum_offset 256
  .amdhsa_group_segment_fixed_size 0
  .amdhsa_kernarg_size 88
  .amdhsa_user_sgpr_count 2
  .amdhsa_user_sgpr_kernarg_segment_ptr 1
  .amdhsa_system_sgpr_workgroup_id_x 1
  .amdhsa_float_denorm_mode_32 3
.end_amdhsa_kernel
"""
    return out, dict(names=names, nops=nn, base=base, tmp=tmp, nstamps=nst[0], ninstr=len(lines))


if __name__ == "__main__":
    import json
    opt = json.loads(sys.argv[2]) if len(sys.argv) > 2 else {}
    s, info = gen(opt)
    open(sys.argv[1], "w").write(s)
    json.dump(info.pop("names"), open(sys.argv[1][:-2] + ".names.json", "w"))
    print(info)
```

```python
import re
class Asm:
    def __init__(self):
        self.lines = []
    def __call__(self, txt):
        for l in txt.split("\n"):
            l = l.strip()
            if l: self.lines.append(l)
    def label(self, n): self.lines.append(n + ":")

def regs_of(tok):
    tok = tok.strip()
    tok = tok.lstrip("-")
    if tok.startswith("abs("): tok = tok[4:-1]
    if tok.startswith("|"): tok = tok.strip("|")
    m = re.fullmatch(r"([vas])(\d+)", tok)
    if m: return [(m.group(1), int(m.group(2)))]
    m = re.fullmatch(r"([vas])\[(\d+):(\d+)\]", tok)
    if m: return [(m.group(1), i) for i in range(int(m.group(2)), int(m.group(3)) + 1)]
    if tok == "vcc": return [("s", 106), ("s", 107)]
    if tok == "vcc_lo": return [("s", 106)]
    if tok == "vcc_hi": return [("s", 107)]
    if tok == "exec": return [("s", 126), ("s", 127)]
    if tok == "exec_lo": return [("s", 126)]
    if tok == "exec_hi": return [("s", 127)]
    if tok == "m0": return [("s", 124)]
    return []

TRANS = ("v_exp_f32", "v_log_f32", "v_rcp_f32", "v_rsq_f32", "v_sqrt_f32", "v_sin_f32", "v_cos_f32")
class Ins:
    def __init__(self, text):
        self.text = text
        t = text.split(";")[0].strip()
        self.islabel = t.endswith(":")
        self.isdir = t.startswith(".")
        self.defs = set(); self.uses = set(); self.ab = set(); self.c = set(); self.data = set()
        self.mn = ""; self.kind = "other"; self.states = 1
        if self.islabel or self.isdir or not t:
            self.states = 0; self.kind = "none"; self.name = t[:-1] if self.islabel else None; return
        p = t.split(None, 1); self.mn = mn = p[0]
        rest = p[1] if len(p) > 1 else ""
        ops = []; cur = ""; d = 0
        for ch in rest:
            if ch in "[(": d += 1
            if ch in "])": d -= 1
            if ch == "," and d == 0: ops.append(cur.strip()); cur = ""
            else: cur += ch
        if cur.strip(): ops.append(cur.strip())
        mods = ""
        if ops:
            q = ops[-1].split(None, 1)
            ops[-1] = q[0]
            mods = q[1] if len(q) > 1 else ""
        self.ops = ops; self.mods = mods
        R = [regs_of(o) for o in ops]
        self.dpp = ("_dpp" in mn) or ("row_" in mods) or ("quad_perm" in mods)
        if mn == "s_nop": self.states = int(ops[0], 0) + 1; self.kind = "salu"; return
        if mn.startswith("v_mfma"):
            self.kind = "mfma"; self.defs = set(R[0]); self.ab = set(R[1] + R[2]); self.c = set(R[3]); self.uses = self.ab | self.c
            self.passes = 8 if "32x32" in mn else 4
            self.dtok = ops[0]; self.ctok = ops[3]
        elif mn.startswith("v_"):
            self.kind = "valu"
            if mn.startswith("v_permlane"):
                self.defs = set(R[0] + R[1]); self.uses = set(R[0] + R[1])
            elif mn.startswith("v_nop"):
                pass
            else:
                self.defs = set(R[0]); self.uses = set(sum(R[1:], []))
                if mn.startswith(("v_fmac", "v_dot2c", "v_writelane")) or self.dpp: self.uses |= set(R[0])
                if mn.startswith("v_cndmask") and len(ops) == 3: self.uses |= {("s", 106), ("s", 107)}
                if mn.startswith("v_cmpx"): self.defs |= {("s", 126), ("s", 127)}
            self.trans = mn.replace("_e32", "").replace("_e64", "") in TRANS
            self.dot = mn.startswith("v_dot")
        elif mn.startswith("ds_"):
            self.kind = "ds"
            if mn.startswith(("ds_read", "ds_bpermute", "ds_permute", "ds_swizzle")) or "_rtn" in mn:
                self.defs = set(R[0]); self.uses = set(sum(R[1:], []))
            else: self.uses = set(sum(R, []))
        elif mn.startswith(("buffer_", "global_")):
            self.kind = "vmem"
            islds = re.search(r"\blds\b", mods) is not None or "_lds_" in mn
            if "load" in mn and not islds:
                self.defs = set(R[0]); self.uses = set(sum(R[1:], []))
            else:
                self.uses = set(sum(R, []))
                if islds: self.uses.add(("s", 124)); self.ldsdma = True
                if "store" in mn and ("x4" in mn or "x3" in mn):
                    self.data = set(R[0]) if mn.startswith("buffer_") else set(R[1])
        elif mn.startswith("s_"):
            self.kind = "salu"
            if mn.startswith(("s_cmp", "s_cbranch", "s_branch", "s_waitcnt", "s_barrier", "s_endpgm", "s_sleep", "s_setprio", "s_bitcmp")):
                self.uses = set(sum(R, []))
            else:
                self.defs = set(R[0]) if R else set(); self.uses = set(sum(R[1:], []))
                if "saveexec" in mn: self.defs |= {("s", 126), ("s", 127)}
        else:
            raise ValueError("unknown instr " + text)

def isv(r): return r[0] in "va"
def need(p, c):
    n = 0
    if p.kind == "valu":
        vd = {r for r in p.defs if isv(r)}; sd = {r for r in p.defs if r[0] == "s"}
        if c.kind == "mfma" and vd & c.uses: n = max(n, 3 if p.dot else 2)
        if c.kind == "mfma" and ("s", 126) in sd: n = max(n, 4)
        if c.kind == "valu":
            if c.mn.startswith("v_permlane") and vd & c.uses: n = max(n, 2)
            if c.dpp and vd & c.uses: n = max(n, 2)
            if c.dpp and ("s", 126) in sd: n = max(n, 5)
            if c.mn.startswith(("v_readlane", "v_readfirstlane")) and vd & c.uses: n = max(n, 1)
            if c.mn.startswith(("v_readlane", "v_readfirstlane", "v_writelane", "v_permlane")) and ("s", 126) in sd: n = max(n, 4)
            if p.trans and not c.trans and vd & c.uses: n = max(n, 1)
            if sd & c.uses: n = max(n, 4 if c.mn.startswith(("v_readlane", "v_writelane")) else 2)
            if p.dot and vd & (c.uses | c.defs):
                same = c.mn == p.mn
                if same:
                    srcab = set(sum([regs_of(o) for o in c.ops[1:3]], []))
                    if vd & srcab: n = max(n, 3)
                else: n = max(n, 3)
            if "sdwa" in p.mn and "dst_sel:DWORD" not in p.mods and vd & (c.uses | c.defs): n = max(n, 1)
        if c.kind in ("vmem", "ds") and p.dot and vd & c.uses: n = max(n, 3)
        if c.kind == "vmem" and sd & c.uses: n = max(n, 5)
    if p.kind == "mfma":
        big = {4: 8, 8: 12}[p.passes]
        if c.kind == "mfma":
            if p.defs & c.ab: n = max(n, big)
            if p.defs & c.c:
                if not (c.ctok == p.dtok and c.passes == p.passes): n = max(n, {4: 6, 8: 10}[p.passes])
            elif p.defs & c.defs: n = max(n, big)
        elif c.kind in ("valu", "vmem", "ds"):
            if p.defs & (c.uses | c.defs): n = max(n, big)
            if c.kind == "valu" and p.c & c.defs: n = max(n, {4: 3, 8: 7}[p.passes])
            if c.kind in ("vmem", "ds") and p.c & c.defs: n = max(n, {4: 3, 8: 7}[p.passes])
    if p.kind == "salu" and ("s", 124) in p.defs and getattr(c, "ldsdma", False): n = max(n, 1)
    if p.kind == "vmem" and p.data and (p.data & c.defs): n = max(n, 2 if c.kind == "valu" else 1)
    return n

def fix_hazards(lines, verbose=False):
    total = 0
    ins = [Ins(l) for l in lines]
    start = 0
    while True:
        lab = {x.name: i for i, x in enumerate(ins) if x.islabel}
        preds = [[] for _ in ins]
        for i, x in enumerate(ins):
            if i + 1 < len(ins) and x.mn not in ("s_branch", "s_endpgm", "s_setpc_b64"): preds[i + 1].append(i)
            if x.mn.startswith(("s_cbranch", "s_branch")):
                preds[lab[x.ops[0]]].append(i)
        fix = None
        for i in range(start, len(ins)):
            c = ins[i]
            if c.kind in ("none", "salu"): continue
            worst = 0; who = None
            stack = [(j, 0) for j in preds[i]]; seen = {}
            while stack:
                j, d = stack.pop()
                if d >= 12 or seen.get(j, 99) <= d: continue
                seen[j] = d
                p = ins[j]
                if p.kind != "none":
                    k = need(p, c) - d
                    if k > worst: worst = k; who = p
                for q in preds[j]: stack.append((q, d + p.states))
            if worst > 0:
                fix = (i, worst, who); break
        if not fix: break
        i, k, who = fix
        if verbose: print(f"hazard: +{k} before [{ins[i].text}] after [{who.text}]")
        ins.insert(i, Ins(f"s_nop {k-1}"))
        start = i
        total += k
    return [x.text for x in ins], total

class VM:
    def __init__(self): self.q = []
    def issue(self, tag, n=1): self.q += [tag] * n
    def cnt(self, *tags):
        last = max(i for i, t in enumerate(self.q) if t in tags)
        n = len(self.q) - 1 - last
        assert n <= 63
        return n
    def reset(self): self.q = []

class Alloc:
    def __init__(self, pfx, start, end): self.p = pfx; self.n = start; self.end = end
    def __call__(self, n=1, al=1):
        if n >= 2: al = max(al, 2)
        self.n = (self.n + al - 1) // al * al
        r = self.n; self.n += n
        assert self.n <= self.end, f"out of {self.p} regs"
        return r
def vr(b, n=1): return f"v{b}" if n == 1 else f"v[{b}:{b+n-1}]"
def ar(b, n=1): return f"a{b}" if n == 1 else f"a[{b}:{b+n-1}]"
def sr(b, n=1): return f"s{b}" if n == 1 else f"s[{b}:{b+n-1}]"

def autowait(lines):
    out = []; on = False; lq = []; vq = []
    for l in lines:
        if l.startswith(";@aw_on"): on = True; lq = []; vq = []; continue
        if l.startswith(";@aw_off"): on = False; continue
        if not on: out.append(l); continue
        x = Ins(l)
        assert not x.islabel and not x.mn.startswith(("s_cbranch", "s_branch", "s_load")), l
        if x.mn == "s_waitcnt":
            m = re.search(r"lgkmcnt\((\d+)\)", l)
            if m: n = int(m.group(1)); lq = lq[len(lq) - n:] if n else []
            m = re.search(r"vmcnt\((\d+)\)", l)
            if m: n = int(m.group(1)); vq = vq[len(vq) - n:] if n else []
            out.append(l); continue
        touch = x.uses | x.defs
        w = []
        for q, nm, mx in ((vq, "vmcnt", 63), (lq, "lgkmcnt", 15)):
            hit = [i for i, d in enumerate(q) if d & touch]
            if hit:
                n = min(len(q) - 1 - max(hit), mx)
                w.append(f"{nm}({n})")
                del q[:len(q) - n]
        if w: out.append("s_waitcnt " + " ".join(w))
        out.append(l)
        if x.kind == "ds": lq.append(set(x.defs))
        if x.kind == "vmem": vq.append(set(x.defs))
    return out

def weave(main, fill, per=1, start=0):
    out = []; k = 0; n = 0
    for l in main:
        out.append(l)
        if l.startswith("v_mfma"):
            if n >= start:
                out += fill[k:k + per]; k += per
            n += 1
    return out + fill[k:]
```

```python
import sys, os
sys.path.insert(0, os.path.dirname(os.path.abspath(__file__)))
from asmfw import *

KNAME = "interleave_layers__sliding_local_dilated__moe_arch_mod__prompt_kernel"

XSLOT, FLAGS, STATS, HST, CAND, CROW, YPART, HROW, OBUF, X1BUF, DBG = (
    0x10000, 0x20000, 0x40000, 0x80000, 0x90000, 0xA0000, 0xC0000, 0x100000, 0x200000, 0x400000, 0x600000)
OOB = 0x7FFF0000
XM, XH, WB, TB = 0, 65536, 73728, 147456
T_NM, T_SC, T_RS = TB + 64, TB + 384, TB + 704
T_KEY, T_PST, T_FFN, T_ROW = TB + 1024 + 16, TB + 1024 + 64, TB + 8192, TB + 9216
LDS_BYTES = 163840
PH_X, PH_O1, PH_S1, PH_X1, PH_O2, PH_S2 = 0, 1, 2, 3, 4, 5
EPS = 0x3727C5AC
NINF = 0xFF800000


def gen(opt=None):
    O = dict(stamps=0, dump=0, force_slow=0, ffn_after=1, touch=1, xpol="nt", wbl2=0, clean=0, ramp=3, ahead=6,
             pw_step=7, ft_step=14, fpol="nt", pwpol="nt", gate_early=1, kname=KNAME)
    O.update(opt or {})
    A = Asm(); vm = VM()
    D = 6
    WS_SIZE = 0x1000000 if (O["dump"] or O["stamps"]) else DBG
    SX, SW, SWO, SWS, SOUT, SWG, SWU, SWD, SWR = 4, 8, 12, 16, 20, 24, 28, 32, 36
    sa = Alloc("s", 40, 102)
    sG, sM, sS, sWV, sC, sTAG, sFAST, sF, sPREV, sSPIN, sSUMW, sLAY = [sa() for _ in range(12)]
    sROT = sa(8)
    sT = sa(8, 2)
    sMA, sMB, sMV = sa(2), sa(2), sa(2)
    sR, sW14, sXB, sW3K, sKEY, sRT, sI, sRET, sW10, sPB, sPS = [sa() for _ in range(11)]
    sST = sa(16, 2) if O["stamps"] else None
    t0, t1, t2, t3, t4, t5 = [f"s{sT+i}" for i in range(6)]
    S = lambda r, n=1: sr(r, n)
    va = Alloc("v", 1, 256)
    vL = 0
    vI, vGq = va(), va()
    vL16 = va()
    vA, vH = va(2), va(2)
    vWO = va(4)
    vOST, vOLD, vXST, vSTA, vSTL = va(), va(), va(), va(), va()
    vTI, vTG = va(), va()
    vAL = va(2)
    vMP, vMC, vMP1 = va(4), va(4), va(4)
    vPM = va(2)
    vONE = va(4)
    vCSQ, vCSK, vCSV = va(4), va(4), va(2)
    vWR = va(8)
    vFG = va(64)
    vP = va(0, 4)
    base = va.n
    accQ = [base + 12 * t for t in range(5)]; accK = [x + 4 for x in accQ]; accV = [x + 8 for x in accQ]
    gOWN, gSUM, gHAL = base + 60, base + 64, base + 68
    tmp = base + 72
    assert tmp + 56 <= 256, tmp
    vXD, vXD2, vWD, vOD, vWT, vSO = vFG, vFG + 1, vFG + 2, vFG + 3, vFG + 4, vFG + 6
    vXH, vWD2, vOD2, vFT = vFG + 5, vFG + 14, vFG + 15, vFG + 16
    vXS = vFG + 8
    aW = lambda ks, seg: 12 * ks + 4 * seg
    aX = lambda buf, t: 192 + 24 * buf + 4 * t
    aWDN = 224
    nst = [0]
    lab = [0]
    def newlab(n):
        lab[0] += 1; return f"L_{n}_{lab[0]}"
    names = []
    def stamp(name="?"):
        if O.get("amp") and O["amp"][0] == name:
            l_ = newlab("amp")
            A(f"s_cmp_eq_u32 {S(sLAY)}, {O['amp'][1]}\ns_cbranch_scc0 {l_}\ns_memrealtime s[90:91]\ns_waitcnt lgkmcnt(0)\n{l_}:")
        if O["stamps"]:
            k = nst[0]; nst[0] += 1; names.append(name)
            assert k < 32
            A(f"s_memtime s[{sST}:{sST+1}]\ns_lshl_b32 s{sST+2}, {S(sLAY)}, 5\ns_add_u32 s{sST+2}, s{sST+2}, {k}\ns_mov_b32 m0, s{sST+2}")
            A(f"s_waitcnt lgkmcnt(0)\nv_writelane_b32 v255, s{sST}, m0")
    def spin():
        A(f"s_sub_u32 {S(sSPIN)}, {S(sSPIN)}, 1\ns_cbranch_scc1 L_exit")
    def poll(name, loads, tagregs, tag, sleep=0):
        A.label(name)
        for x in loads: A(x)
        A(f"s_sub_u32 {S(sSPIN)}, {S(sSPIN)}, 1\ns_cbranch_scc1 L_exit\ns_waitcnt vmcnt(0)")
        if len(tagregs) == 1: A(f"v_cmp_ne_u32 vcc, {tag}, v{tagregs[0]}")
        else: A(f"v_cmp_ne_u32 vcc, {tag}, v{tagregs[0]}\nv_cmp_ne_u32 s[{sT+6}:{sT+7}], {tag}, v{tagregs[1]}\ns_or_b64 vcc, vcc, s[{sT+6}:{sT+7}]")
        if sleep:
            d = newlab("pd")
            A(f"s_and_b64 exec, exec, vcc\ns_cbranch_scc0 {d}\ns_sleep {sleep}\ns_branch {name}\n{d}:")
        else: A(f"s_and_b64 exec, exec, vcc\ns_cbranch_scc1 {name}")
        A("s_mov_b64 exec, -1")
    def dual_store(instrs):
        a, b = newlab("slow"), newlab("join")
        A(f"s_cmp_eq_u32 {S(sFAST)}, 1\ns_cbranch_scc0 {a}")
        for x in instrs: A(x.replace("@", ""))
        A(f"s_branch {b}"); A.label(a)
        for x in instrs: A(x.replace("@", "sc1"))
        A.label(b)
    def dump(slot, reg, n, acc=False):
        if O["dump"] != slot: return
        assert n <= 16
        t0, t1 = f"s{sT+6}", f"s{sT+7}"
        A(f"s_lshl_b32 {t0}, s2, 2\ns_add_u32 {t0}, {t0}, {S(sWV)}\ns_lshl_b32 {t0}, {t0}, 12\ns_lshl_b32 {t1}, {S(sLAY)}, 22\ns_add_u32 {t0}, {t0}, {t1}\ns_add_u32 {t0}, {t0}, {DBG}")
        A(f"v_lshlrev_b32 v254, 2, v{vL}")
        A("s_nop 7\ns_nop 7")
        for r in range(n):
            A(f"buffer_store_dword {'a' if acc else 'v'}{reg+r}, v254, {S(SWS,4)}, {t0} offen offset:{256*r}")
        A("s_waitcnt vmcnt(0)")

    if O.get("dbgtime") or O.get("amp"): A("s_memrealtime s[96:97]\ns_memtime s[98:99]")
    A(f"s_cmp_ge_u32 s2, 256\ns_cbranch_scc1 L_end")
    A(f"""s_load_dwordx2 {S(SX,2)}, s[0:1], 0
          s_load_dwordx2 {S(SW,2)}, s[0:1], 8
          s_load_dwordx2 {S(SWS,2)}, s[0:1], 80
          s_load_dwordx2 {S(SWO,2)}, s[0:1], 16
          s_load_dwordx2 {S(SWR,2)}, s[0:1], 32""")
    A(f"""s_getpc_b64 s[{sT}:{sT+1}]
          L_pc:
          s_lshr_b32 {t2}, s2, 3
          v_and_b32 v{tmp}, 7, v0
          v_lshl_add_u32 v{tmp}, v{tmp}, 5, {t2}
          v_lshlrev_b32 v{tmp}, 7, v{tmp}
          v_min_u32 v{tmp}, L_end-L_pc, v{tmp}
          s_mov_b64 exec, 0xFF
          global_load_dword v{tmp+8}, v{tmp}, s[{sT}:{sT+1}]
          s_mov_b64 exec, -1""")
    vm.issue("code")
    A(f"""v_lshrrev_b32 v{tmp}, 6, v0
          v_and_b32 v{vL}, 63, v0
          s_and_b32 {S(sG)}, s2, 7
          v_readfirstlane_b32 {S(sWV)}, v{tmp}
          s_bfe_u32 {S(sM)}, s2, 0x30003
          s_lshr_b32 {S(sS)}, s2, 6
          s_mov_b32 {S(sLAY)}, 0
          s_add_u32 {S(sR)}, {S(sG)}, {S(sM)}
          s_and_b32 {S(sR)}, {S(sR)}, 7""")
    if O["stamps"]: A("v_mov_b32 v255, 0")
    for r, n in ((SX, 2097152), (SW, 1572864), (SWS, WS_SIZE), (SWO, 524288), (SWR, 1024)):
        A(f"s_mov_b32 s{r+2}, {n}\ns_mov_b32 s{r+3}, 0x20000")
    A(f"s_lshl_b32 s{sROT}, {S(sR)}, 11")
    for p in range(1, 8): A(f"s_add_u32 s{sROT+p}, s{sROT+p-1}, 2048\ns_and_b32 s{sROT+p}, s{sROT+p}, 16383")
    A(f"""s_lshr_b32 {t0}, {S(sG)}, 1
          s_lshl_b32 {t0}, {t0}, 2
          s_add_u32 {t0}, {t0}, {S(sS)}
          s_lshl_b32 {t0}, {t0}, 17
          s_and_b32 {t1}, {S(sG)}, 1
          s_lshl_b32 {t1}, {t1}, 10
          s_add_u32 {S(sXB)}, {t0}, {t1}
          s_lshl_b32 {t1}, {S(sWV)}, 15
          s_add_u32 {t1}, {t1}, {S(sXB)}
          s_sub_u32 {t2}, {S(sXB)}, 16384
          s_cselect_b32 {t2}, {OOB}, {t2}
          s_mul_i32 {S(sW3K)}, {S(sWV)}, 3072
          s_lshl_b32 {S(sW14)}, {S(sWV)}, 14
          s_lshl_b32 {S(sW10)}, {S(sWV)}, 10""")
    A(f"""v_lshrrev_b32 v{tmp}, 3, v{vL}
          v_and_b32 v{tmp+1}, 7, v{vL}
          v_and_b32 v{tmp+2}, 6, v{tmp}
          v_xor_b32 v{tmp+2}, v{tmp+2}, v{tmp+1}
          v_lshlrev_b32 v{tmp+2}, 4, v{tmp+2}
          v_lshl_add_u32 v{tmp+2}, v{tmp}, 11, v{tmp+2}
          v_add_u32 v{vXD}, {t1}, v{tmp+2}
          v_add_u32 v{vXH}, {t2}, v{tmp+2}
          v_add_u32 v{vXD2}, {16384-1024}, v{vXD}""")
    A(f"""v_and_b32 v{tmp+2}, 2, v{tmp}
          v_xor_b32 v{tmp+2}, v{tmp+2}, v{tmp+1}
          s_and_b32 {t0}, {S(sWV)}, 1
          s_lshl_b32 {t0}, {t0}, 2
          v_xor_b32 v{tmp+2}, {t0}, v{tmp+2}
          s_lshl_b32 {t1}, {S(sM)}, 7
          v_lshl_add_u32 v{tmp+2}, v{tmp+2}, 4, {t1}
          s_lshl_b32 {t0}, {S(sWV)}, 3
          v_add_u32 v{tmp+3}, {t0}, v{tmp}
          v_lshl_add_u32 v{vOD}, v{tmp+3}, 10, v{tmp+2}
          v_mul_u32_u24 v{tmp+3}, 3072, v{tmp+3}
          v_add_u32 v{vWD}, v{tmp+3}, v{tmp+2}
          v_add_u32 v{vWD2}, 98304, v{vWD}
          v_add_u32 v{vOD2}, 32768, v{vOD}""")
    A(f"""s_add_u32 {t3}, {S(sWV)}, {S(sR)}
          s_and_b32 {t3}, {t3}, 7
          s_lshl_b32 {S(sPB)}, {t3}, 7""")
    A(f"""v_and_b32 v{vI}, 15, v{vL}
          v_lshrrev_b32 v{vGq}, 4, v{vL}
          v_lshlrev_b32 v{vL16}, 4, v{vL}
          v_and_b32 v{tmp}, 1, v{vGq}
          v_lshrrev_b32 v{tmp+1}, 1, v{vGq}
          v_lshl_add_u32 v{tmp+2}, v{tmp}, 1, v{tmp+1}
          v_lshl_add_u32 v{tmp+3}, v{tmp+2}, 4, {t1}""")
    tv = tmp + 4
    A(f"""s_lshr_b32 {t0}, s2, 3
          s_lshl_b32 {t0}, {t0}, 2
          s_add_u32 {t0}, {t0}, {S(sWV)}
          s_mul_i32 {t0}, {t0}, 12288
          s_add_u32 {t0}, {t0}, 384
          v_min_u32 v{tv}, 11, v{vL}
          v_lshl_add_u32 v{tv}, v{tv}, 10, {t0}
          s_lshl_b32 {t0}, s2, 11
          s_lshl_b32 {t1}, {S(sWV)}, 9
          s_add_u32 {t0}, {t0}, {t1}
          v_lshl_add_u32 v{tv+1}, v{vL}, 7, {t0}""")
    def dma_x(lp):
        return [(f"s_add_u32 m0, {S(sW14)}, {lp*2048}\ns_lshr_b32 {t0}, s{sROT+lp}, 4\nbuffer_load_dwordx4 v{vXD}, {S(SX,4)}, {t0} offen {O['xpol']} lds", f"c{2*lp}"),
                (f"buffer_load_dwordx4 v{vXD2}, {S(SX,4)}, {t0} offen offset:1024 {O['xpol']} lds", f"c{2*lp}")]
    def dma_w(ks):
        L = []
        for seg in range(3):
            pre = f"s_add_u32 m0, {S(sW3K)}, {WB + (ks % D) * 12288}\ns_mul_i32 {t0}, s{sROT+(ks>>1)}, 96\n" if seg == 0 else ""
            L.append((pre + f"buffer_load_dwordx4 v{vWD2 if ks & 1 else vWD}, {S(SW,4)}, {t0} offen offset:{seg*1024} lds", f"c{ks}"))
        return L
    def dma_wo(sl):
        L = []
        for t in range(3):
            o = 12 * sl + 4 * t
            if o >= 64: continue
            L.append((f"s_add_u32 m0, {S(sW10)}, {WB + o*1024}\ns_lshl_b32 {t0}, s{sROT+(o>>3)}, 5\nbuffer_load_dwordx4 v{vOD2 if o & 4 else vOD}, {S(SWO,4)}, {t0} offen lds", "wo"))
        return L
    def dma_h(k):
        return [(f"s_add_u32 m0, {S(sW10)}, {XH + k*4096}\ns_xor_b32 {t0}, {S(sPB)}, {k*512}\nbuffer_load_dwordx4 v{vXH}, {S(SX,4)}, {t0} offen lds", f"c{8*k}")]
    def chunk(j):
        if j >= 16: return dma_wo(j % D)
        return (dma_h(1) if j == 7 else []) + (dma_x(j // 2) if j % 2 == 0 else []) + dma_w(j)
    def put(L):
        for x, g in L: A(x); vm.issue(g)
    A(f"s_waitcnt lgkmcnt(0)")
    stamp("kernarg")
    A(f"""s_load_dword {S(sTAG)}, {S(SWS,2)}, 0
          buffer_load_dwordx4 {vr(tmp+12,4)}, v{vL16}, {S(SWR,4)}, 0 offen
          buffer_load_dwordx4 {vr(vWR,4)}, v{tmp+3}, {S(SWR,4)}, 0 offen
          buffer_load_dwordx4 {vr(vWR+4,4)}, v{tmp+3}, {S(SWR,4)}, 0 offen offset:64""")
    vm.issue("wr", 3)
    put(dma_h(0)); put(chunk(0)); put(chunk(1))
    if O["touch"]:
        A(f"""s_mov_b64 exec, 0xFFF
              buffer_load_dword v{tmp+8}, v{tv}, {S(SW,4)}, 0 offen
              s_mov_b64 exec, 0xF
              buffer_load_dword v{tmp+8}, v{tv+1}, {S(SWO,4)}, 0 offen
              s_mov_b64 exec, -1""")
        vm.issue("touch", 2)
    A(f"""s_load_dwordx2 {S(SOUT,2)}, s[0:1], 64
          s_load_dwordx2 {S(SWG,2)}, s[0:1], 40
          s_load_dwordx2 {S(SWU,2)}, s[0:1], 48
          s_load_dwordx2 {S(SWD,2)}, s[0:1], 56""")
    for r, n in ((SOUT, 2097152), (SWG, 1409024), (SWU, 1409024), (SWD, 1409024)):
        A(f"s_mov_b32 s{r+2}, {n}\ns_mov_b32 s{r+3}, 0x20000")
    A(f"""s_lshl_b32 {S(sC)}, {S(sG)}, 2
          s_add_u32 {S(sC)}, {S(sC)}, {S(sS)}
          s_sub_u32 {t0}, {S(sC)}, 1
          s_sub_u32 {t1}, {S(sC)}, 5
          s_cmp_lt_u32 {S(sG)}, 2
          s_cselect_b32 {t1}, 255, {t1}
          s_cmp_eq_u32 {S(sS)}, 0
          s_cselect_b32 {S(sPREV)}, {t1}, {t0}
          s_mov_b32 {S(sSPIN)}, 400000
          s_mov_b32 {S(sRET)}, 0
          s_mov_b32 {S(sRT)}, 99
          s_mov_b32 s{sMA}, 0xAAAAAAAA
          s_mov_b32 s{sMA+1}, 0xAAAAAAAA
          s_mov_b32 s{sMB}, 0xCCCCCCCC
          s_mov_b32 s{sMB+1}, 0xCCCCCCCC
          s_mov_b32 s{sMV}, 0x00F0000F
          s_mov_b32 s{sMV+1}, 0xF0000F00""")
    A(f"""s_sub_u32 {t0}, {S(sM)}, 4
          s_lshl_b32 {t0}, {t0}, 2
          s_add_u32 {t0}, {t0}, {S(sS)}
          s_mul_i32 {t1}, {S(sG)}, 6
          s_add_u32 {t1}, {t1}, {t0}
          s_cmp_lt_u32 {t0}, 6
          s_cselect_b32 {S(sF)}, {t1}, 255""")
    A(f"""s_lshl_b32 {t0}, {S(sC)}, 16
          s_lshl_b32 {t1}, {S(sM)}, 11
          s_lshl_b32 {t2}, {S(sWV)}, 9
          s_add_u32 {t3}, {t0}, {t1}
          s_add_u32 {t2}, {t2}, {t3}
          s_add_u32 {t2}, {t2}, {OBUF}
          v_lshlrev_b32 v{tmp+4}, 4, v{vI}
          v_lshl_add_u32 v{vOST}, v{tmp+1}, 8, v{tmp+4}
          v_lshl_add_u32 v{vOST}, v{tmp}, 14, v{vOST}
          v_add_u32 v{vOST}, {t2}, v{vOST}""")
    A(f"""s_lshl_b32 {t2}, {S(sWV)}, 14
          s_add_u32 {t4}, {t0}, {t2}
          s_add_u32 {t4}, {t4}, {OBUF}
          v_add_u32 v{vOLD}, {t4}, v{vL16}""")
    A(f"""s_add_u32 {t3}, {t3}, {t2}
          s_add_u32 {t3}, {t3}, {X1BUF}
          v_lshl_add_u32 v{vXST}, v{tmp+2}, 8, v{tmp+4}
          v_add_u32 v{vXST}, {t3}, v{vXST}""")
    A(f"""s_lshl_b32 {t0}, {S(sC)}, 13
          s_lshl_b32 {t1}, {S(sWV)}, 8
          s_add_u32 {t0}, {t0}, {t1}
          s_add_u32 {t0}, {t0}, {STATS}
          v_add_u32 v{vSTL}, {t0}, v{tmp+4}
          s_lshl_b32 {t1}, {S(sM)}, 10
          v_add_u32 v{vSTA}, {t1}, v{vSTL}
          v_lshl_add_u32 v{vSTL}, v{vGq}, 10, v{vSTL}""")
    A(f"""v_lshlrev_b32 v{vTI}, 2, v{vI}
          v_add_u32 v{vTI}, {T_NM}, v{vTI}
          v_lshlrev_b32 v{vTG}, 4, v{vGq}
          v_add_u32 v{vTG}, {T_NM}, v{vTG}""")
    A(f"""v_and_b32 v{tmp+5}, 7, v{vI}
          v_lshlrev_b32 v{tmp+5}, 7, v{tmp+5}
          v_and_b32 v{tmp+6}, 6, v{vI}
          v_xor_b32 v{tmp+6}, v{tmp+6}, v{vGq}
          v_lshl_add_u32 v{tmp+5}, v{tmp+6}, 4, v{tmp+5}
          v_xor_b32 v{tmp+6}, 64, v{tmp+5}
          v_lshrrev_b32 v{tmp+7}, 3, v{vI}
          v_lshl_add_u32 v{vA}, v{tmp+7}, 10, v{tmp+5}
          v_lshl_add_u32 v{vA+1}, v{tmp+7}, 10, v{tmp+6}
          v_add_u32 v{tmp+5}, {XH}, v{tmp+5}
          v_add_u32 v{tmp+6}, {XH}, v{tmp+6}
          v_mov_b32 v{tmp+9}, {TB}
          v_cmp_gt_u32 vcc, 8, v{vI}
          v_cndmask_b32 v{vH}, v{tmp+5}, v{tmp+9}, vcc
          v_cndmask_b32 v{vH+1}, v{tmp+6}, v{tmp+9}, vcc
          s_lshl_b32 {t0}, {S(sWV)}, 14
          v_add_u32 v{vSO}, {t0}, v{vA}
          v_add_u32 v{vSO+1}, {t0}, v{vA+1}""")
    A(f"""v_lshrrev_b32 v{tmp+5}, 2, v{vI}
          v_and_b32 v{tmp+6}, 3, v{vI}
          v_lshlrev_b32 v{tmp+6}, 3, v{tmp+6}
          v_lshl_add_u32 v{tmp+6}, v{tmp+5}, 7, v{tmp+6}
          v_lshl_or_b32 v{tmp+7}, v{tmp}, 1, v{tmp+7}
          v_lshlrev_b32 v{tmp+7}, 5, v{tmp+7}
          v_add_u32 v{tmp+6}, v{tmp+6}, v{tmp+7}
          s_lshl_b32 {t0}, {S(sWV)}, 5
          v_xor_b32 v{vWT}, {t0}, v{tmp+6}
          v_mul_u32_u24 v{tmp+5}, 3072, v{vGq}
          v_add_u32 v{vWT}, v{vWT}, v{tmp+5}
          v_add_u32 v{vWT}, {WB}, v{vWT}
          v_lshl_add_u32 v{tmp+6}, v{vGq}, 10, v{tmp+6}
          v_add_u32 v{vWO}, {WB}, v{tmp+6}""")
    for c in range(1, 4): A(f"v_xor_b32 v{vWO+c}, {32*c}, v{vWO}")
    for r in range(4): A(f"v_mov_b32 v{vONE+r}, 0x3F803F80")
    A(f"""v_and_b32 v{tmp+5}, 7, v{vL}
          v_lshlrev_b32 v{tmp+5}, 10, v{tmp+5}
          v_add_u32 v{tmp+5}, {TB}, v{tmp+5}
          ds_write_b128 v{tmp+5}, {vr(vONE,4)}
          v_lshlrev_b32 v{tmp+5}, 2, v{vGq}
          v_sub_u32 v{tmp+5}, v{tmp+5}, v{vI}
          v_mov_b32 v{tmp+6}, {NINF}
          s_cmp_eq_u32 {S(sPREV)}, 255
          s_cselect_b32 {t0}, {NINF}, 0""")
    for r in range(4):
        A(f"""v_cmp_le_i32 vcc, {9-r}, v{tmp+5}
              v_add_u32 v{tmp+7}, {r+7}, v{tmp+5}
              v_cndmask_b32 v{vMP+r}, v{tmp+6}, 0, vcc
              v_cmp_ge_u32 vcc, 7, v{tmp+7}
              v_or_b32 v{vMP1+r}, {t0}, v{vMP+r}
              v_cndmask_b32 v{vMC+r}, v{tmp+6}, 0, vcc""")
    for h in range(2):
        A(f"""v_ashrrev_i32 v{tmp+7}, 31, v{vMP+2*h}
              v_ashrrev_i32 v{tmp+9}, 31, v{vMP+2*h+1}
              v_and_b32 v{tmp+7}, 0xFFFF, v{tmp+7}
              v_and_b32 v{tmp+9}, 0xFFFF0000, v{tmp+9}
              v_or_b32 v{tmp+7}, v{tmp+7}, v{tmp+9}
              v_not_b32 v{vPM+h}, v{tmp+7}""")
    A(f"v_mov_b32 v{vAL}, 1.0\nv_mov_b32 v{vAL+1}, 0")
    A(f"""s_waitcnt lgkmcnt(0)
          s_lshr_b32 {S(sTAG)}, {S(sTAG)}, 3
          s_mul_i32 {S(sTAG)}, {S(sTAG)}, 1664525
          s_add_u32 {S(sTAG)}, {S(sTAG)}, 1013904223
          s_lshl_b32 {S(sTAG)}, {S(sTAG)}, 3
          s_getreg_b32 {S(sFAST)}, hwreg(HW_REG_XCC_ID)
          s_and_b32 {S(sFAST)}, {S(sFAST)}, 15""")
    pv = tmp + 16
    A(f"""s_lshl_b32 {t0}, {S(sC)}, 10
          s_lshl_b32 {t1}, {S(sM)}, 7
          s_add_u32 {t0}, {t0}, {t1}
          v_mov_b32 v{pv}, -1
          v_mov_b32 v{pv+1}, -1
          v_mov_b32 v{pv+2}, -1
          v_mov_b32 v{pv+3}, -1
          v_mov_b32 v{tmp+9}, {OOB}
          s_cmp_eq_u32 {S(sWV)}, 0
          s_cbranch_scc0 L_pf1
          v_and_b32 v{tmp+5}, 7, v{vL}
          v_lshlrev_b32 v{tmp+5}, 4, v{tmp+5}
          v_lshrrev_b32 v{tmp+7}, 3, v{vL}
          v_lshl_add_u32 v{tmp+5}, v{tmp+7}, 15, v{tmp+5}
          s_add_u32 {t1}, {t0}, {CROW}
          v_cmp_gt_u32 vcc, 16, v{vL}
          s_branch L_pfd
          L_pf1:
          s_cmp_eq_u32 {S(sWV)}, 3
          s_cbranch_scc1 L_pf3
          v_mov_b32 v{tmp+5}, v{vL16}
          s_lshl_b32 {t1}, {S(sWV)}, 16
          s_lshl_b32 {t2}, {S(sF)}, 10
          s_add_u32 {t1}, {t1}, {t2}
          s_add_u32 {t1}, {t1}, {YPART - 65536}
          s_cmp_lt_u32 {S(sF)}, 43
          s_cselect_b64 vcc, -1, 0
          s_branch L_pfd
          L_pf3:
          v_mov_b32 v{tmp+5}, 0
          v_mov_b32 v{pv}, {S(sTAG)}
          v_mov_b32 v{pv+1}, {S(sFAST)}
          s_add_u32 {t1}, {t0}, {XSLOT}
          s_mov_b64 vcc, 1
          L_pfd:
          v_cndmask_b32 v{tmp+5}, v{tmp+9}, v{tmp+5}, vcc
          buffer_store_dwordx4 {vr(pv,4)}, v{tmp+5}, {S(SWS,4)}, {t1} offen sc1""")
    vm.issue("pf")
    vPW = vFG + 10
    A(f"""s_lshl_b32 {t1}, {t0}, 6
          s_lshl_b32 {t3}, {S(sWV)}, 12
          s_add_u32 {t2}, {t1}, {t3}
          s_add_u32 {t2}, {t2}, {OBUF}
          s_lshl_b32 {t4}, {t0}, 3
          s_add_u32 {t4}, {t4}, {STATS}
          s_add_u32 {t5}, {t0}, {FLAGS}
          s_cmp_eq_u32 {S(sWV)}, 2
          s_cselect_b32 {t2}, {t4}, {t2}
          s_cselect_b32 {t3}, 7, 31
          s_cmp_eq_u32 {S(sWV)}, 3
          s_cselect_b32 {t2}, {t5}, {t2}
          s_cselect_b32 {t3}, 0, {t3}
          v_and_b32 v{vPW}, {t3}, v{vL}
          v_lshlrev_b32 v{vPW}, 7, v{vPW}
          v_add_u32 v{vPW}, {t2}, v{vPW}
          s_lshl_b32 {t0}, {S(sC)}, 10
          s_add_u32 {t0}, {t0}, {XSLOT}
          v_and_b32 v{vPW+1}, 7, v{vL}
          v_lshlrev_b32 v{vPW+1}, 7, v{vPW+1}
          v_add_u32 v{vPW+1}, {t0}, v{vPW+1}""")
    A(f"""s_lshr_b32 {t0}, s2, 3
          s_cmp_ge_u32 {S(sWV)}, 2
          s_cbranch_scc1 L_ft2
          s_cmp_eq_u32 {S(sWV)}, 0
          s_cselect_b32 s{SWR}, s{SWG}, s{SWU}
          s_cselect_b32 s{SWR+1}, s{SWG+1}, s{SWU+1}
          s_mov_b32 s{SWR+2}, 1409024
          s_mul_i32 {t0}, {t0}, {16*2752}
          s_mul_i32 {t2}, {S(sG)}, 384
          s_add_u32 {t0}, {t0}, {t2}
          v_lshrrev_b32 v{vFT}, 2, v{vL}
          v_mul_u32_u24 v{vFT}, 2752, v{vFT}
          v_and_b32 v{tmp+5}, 3, v{vL}
          v_lshlrev_b32 v{tmp+5}, 7, v{tmp+5}
          v_min_u32 v{tmp+5}, 380, v{tmp+5}
          v_add3_u32 v{vFT}, v{vFT}, v{tmp+5}, {t0}
          s_branch L_ftd
          L_ft2:
          s_mul_i32 {t0}, {t0}, 6144
          s_mul_i32 {t2}, {S(sG)}, {192*1024}
          s_add_u32 {t0}, {t0}, {t2}
          s_add_u32 {t1}, {t1}, {X1BUF}
          s_cmp_eq_u32 {S(sWV)}, 2
          s_cselect_b32 s{SWR}, s{SWD}, s{SWS}
          s_cselect_b32 s{SWR+1}, s{SWD+1}, s{SWS+1}
          s_cselect_b32 s{SWR+2}, s{SWD+2}, s{SWS+2}
          s_cselect_b32 {t0}, {t0}, {t1}
          s_cselect_b32 {t2}, 47, 63
          v_min_u32 v{vFT}, {t2}, v{vL}
          v_lshl_add_u32 v{vFT}, v{vFT}, 7, {t0}
          L_ftd:""")
    A(f"s_waitcnt vmcnt({vm.cnt('wr')})\nv_mov_b32 v{tmp}, 0")
    for r in range(4): A(f"v_dot2c_f32_bf16 v{tmp}, v{tmp+12+r}, v{vONE}")
    for sh in (8, 4, 2, 1): A(f"v_add_f32_dpp v{tmp}, v{tmp}, v{tmp} row_ror:{sh} row_mask:0xf bank_mask:0xf")
    A(f"""v_readlane_b32 {t0}, v{tmp}, 0
          v_readlane_b32 {t1}, v{tmp}, 16
          v_readlane_b32 {t2}, v{tmp}, 32
          v_readlane_b32 {t3}, v{tmp}, 48
          v_mov_b32 v{tmp}, {t0}
          v_add_f32 v{tmp}, {t1}, v{tmp}
          v_add_f32 v{tmp}, {t2}, v{tmp}
          v_add_f32 v{tmp}, {t3}, v{tmp}
          v_readfirstlane_b32 {S(sSUMW)}, v{tmp}""")
    for r in range(8):
        A(f"v_cndmask_b32 v{vWR+r}, v{vONE}, v{vWR+r}, {S(sMA,2)}\nv_cndmask_b32 v{vWR+r}, v{vWR+r}, 0, {S(sMB,2)}")

    def reads(ks):
        e = ks & 1; b = ks & 1; L = []
        for seg in range(3):
            for hf in range(2):
                L.append(f"ds_read_b64_tr_b16 {ar(aW(ks,seg)+2*hf,2)}, v{vWT} offset:{(ks%D)*12288 + seg*1024 + hf*512}")
        X = [f"ds_read_b128 {ar(aX(b,0),4)}, v{vH+e} offset:{(ks>>1)*1024}"]
        for t in range(1, 5): X.append(f"ds_read_b128 {ar(aX(b,t),4)}, v{vA+e} offset:{(t-1)*16384 + (ks>>1)*2048}")
        X.append(f"ds_read_b128 {ar(aX(b,5),4)}, v{vSO+e} offset:{(ks>>1)*2048}")
        return X + L
    def mf(d, a, b, c, shape="16x16x32"):
        return f"v_mfma_f32_{shape}_bf16 {vr(d,4)}, {a}, {b}, {c}"
    def mfmas(ks):
        b = ks & 1; L = []
        C = lambda d: "0" if ks == 0 else vr(d, 4)
        for t in range(5):
            x = ar(aX(b, t), 4)
            L.append(mf(accQ[t], ar(aW(ks, 0), 4), x, C(accQ[t])))
            L.append(mf(accK[t], ar(aW(ks, 1), 4), x, C(accK[t])))
            L.append(mf(accV[t], x, ar(aW(ks, 2), 4), C(accV[t])))
        xo = ar(aX(b, 5), 4); xh = ar(aX(b, 0), 4)
        L = [mf(gOWN, xo, xo, C(gOWN)), mf(gSUM, vr(vONE, 4), xo, C(gSUM)), mf(gHAL, xh, xh, C(gHAL))] + L
        return L
    for j in range(2, O["ramp"]): put(chunk(j))
    A(f"s_waitcnt vmcnt({vm.cnt('c0')}) lgkmcnt(0)\ns_barrier")
    stamp("c0_landed")
    for x in reads(0): A(x)
    nxt = O["ramp"]
    for ks in range(16):
        if ks < 15: A(f"s_waitcnt vmcnt({vm.cnt(f'c{ks+1}')}) lgkmcnt(0)")
        else: A("s_waitcnt lgkmcnt(0)")
        A("s_barrier")
        if O.get("amp") or (O.get("kst") and ks in O["kst"]): stamp(f"k{ks}")
        M = mfmas(ks); R = reads(ks + 1) if ks < 15 else []
        Dm = []
        for _ in range(2):
            lim = ks + (O["ahead"] if nxt < 16 else D)
            if nxt <= min(lim, 21): Dm += chunk(nxt); nxt += 1
        if ks == O["pw_step"]: Dm.append((f"buffer_load_dword v{vPW+2}, v{vPW}, {S(SWS,4)}, 0 offen {O['pwpol']}", "pw"))
        if ks == O.get("pw2_step", -1): Dm.append((f"buffer_load_dword v{vPW+2}, v{vPW}, {S(SWS,4)}, 0 offen sc1", "pw"))
        if ks == 8: Dm.append((f"buffer_load_dwordx2 {vr(vXS,2)}, v{vPW+1}, {S(SWS,4)}, 0 offen sc1", "xs"))
        if ks == O["ft_step"]: Dm.append((f"buffer_load_dword v{vPW+2}, v{vFT}, {S(SWR,4)}, 0 offen {O['fpol']}", "ft"))
        if ks == O.get("ft2_step", -1): Dm.append((f"buffer_load_dword v{vPW+2}, v{vFT}, {S(SWR,4)}, 0 offen sc1", "ft"))
        pos = [int(k * 17.0 / max(1, len(Dm))) for k in range(len(Dm))]
        for i, m_ in enumerate(M):
            A(m_)
            for k, d_ in enumerate(Dm):
                if pos[k] == i: put([d_])
            if i < len(R): A(R[i])
    assert nxt == 22
    if O.get("pad"):
        A(f"s_mov_b32 {t0}, {O['pad']}\nL_pad:")
        if O.get("padkind") == "mfma":
            for _ in range(4): A(mf(tmp + 40, ar(0, 4), ar(4, 4), vr(tmp + 40, 4)))
        else: A("s_sleep 1")
        A(f"s_sub_u32 {t0}, {t0}, 1\ns_cmp_lg_u32 {t0}, 0\ns_cbranch_scc1 L_pad")
    stamp("gemm1_end")
    q = tmp
    A(f"""v_cmp_eq_u32 vcc, {S(sTAG)}, v{vXS}
          v_cmp_eq_u32 s[{sT}:{sT+1}], {S(sFAST)}, v{vXS+1}
          s_and_b64 vcc, vcc, s[{sT}:{sT+1}]
          s_cmp_eq_u64 vcc, -1
          s_cselect_b32 {S(sFAST)}, {0 if O['force_slow'] else 1}, 0""")
    assert vm.cnt("xs") >= vm.cnt("c15")
    def diag(dst, g):
        A(f"""v_cndmask_b32 v{g}, v{g}, v{g+1}, {S(sMA,2)}
              v_cndmask_b32 v{g+2}, v{g+2}, v{g+3}, {S(sMA,2)}
              v_cndmask_b32 v{dst}, v{g}, v{g+2}, {S(sMB,2)}""")
    A(f"v_mov_b32 v{q}, v{gHAL}\nv_mov_b32 v{q+1}, v{gHAL}")
    diag(q + 2, gOWN)
    A(f"v_permlane32_swap_b32 v{q}, v{q+1}")
    diag(q + 3, gHAL)
    A(f"s_mov_b32 {t0}, 0xBB000000\ns_mov_b32 {t1}, 0x3B000000\nv_mov_b32 v{q+8}, {EPS}")
    for (s1, s2, d) in ((gSUM, q + 2, q + 4), (q, q + 3, q + 6)):
        A(f"""v_mul_f32 v{d}, {t0}, v{s1}
              v_mul_f32 v{s2}, {t1}, v{s2}
              v_fma_f32 v{s2}, -v{d}, v{d}, v{s2}
              v_max_f32 v{s2}, 0, v{s2}
              v_add_f32 v{s2}, v{q+8}, v{s2}
              v_rsq_f32 v{d+1}, v{s2}""")
    A(f"""s_lshl_b32 {t2}, {S(sWV)}, 6
          v_add_u32 v{q+9}, {t2}, v{vTI}
          s_mov_b64 exec, {S(sMV,2)}
          ds_write2_b32 v{q+9}, v{q+4}, v{q+5} offset0:16 offset1:96
          ds_write2_b32 v{vTI}, v{q+6}, v{q+7} offset0:0 offset1:80
          s_mov_b64 exec, -1""")
    for r in range(4):
        A(f"v_mov_b32_dpp v{vCSQ+r}, v{accQ[0]+r} row_newbcast:0 row_mask:0xf bank_mask:0xf")
        A(f"v_mov_b32_dpp v{vCSK+r}, v{accK[0]+r} row_newbcast:0 row_mask:0xf bank_mask:0xf")
    A(f"v_mov_b32 v{vCSV}, v{accV[0]}\nv_mov_b32 v{vCSV+1}, v{accV[0]}\nv_permlane32_swap_b32 v{vCSV}, v{vCSV+1}")
    vRA = tmp + 52
    A(f"""s_sub_u32 {t0}, {S(sM)}, {S(sR)}
          s_and_b32 {t0}, {t0}, 7
          s_lshl_b32 {t0}, {t0}, 11
          s_lshl_b32 {t1}, {S(sWV)}, 14
          s_add_u32 {S(sW3K)}, {t0}, {t1}
          v_lshrrev_b32 v{q}, 3, v{vI}
          v_and_b32 v{q+1}, 7, v{vI}
          v_lshlrev_b32 v{q+1}, 7, v{q+1}
          v_lshl_add_u32 v{q}, v{q}, 10, v{q+1}
          v_and_b32 v{q+1}, 6, v{vI}
          v_lshl_add_u32 v{q}, v{q+1}, 4, v{q}
          v_lshl_add_u32 v{q}, v{vGq}, 3, v{q}
          v_add_u32 v{vRA}, {S(sW3K)}, v{q}""")
    for c in range(1, 4): A(f"v_xor_b32 v{vRA+c}, {32*c}, v{vRA}")
    A("s_waitcnt lgkmcnt(0)\ns_barrier")

    A.label("L_attn")
    stamp("attn_start")
    tl = lambda t: tmp + 10 * t
    for t in range(5):
        A(f"ds_read2_b32 {vr(tl(t),2)}, v{vTI} offset0:{16*t} offset1:{80+16*t}")
        A(f"ds_read_b128 {vr(tl(t)+2,4)}, v{vTG} offset:{64*t}")
        A(f"ds_read_b128 {vr(tl(t)+6,4)}, v{vTG} offset:{320+64*t}")
    vV = gOWN
    for t in range(5):
        A(f"s_waitcnt lgkmcnt({3*(4-t)})")
        p = vr(tl(t), 2)
        for h in range(2):
            A(f"v_pk_fma_f32 {vr(accK[t]+2*h,2)}, {vr(vCSK+2*h,2)}, {p}, {vr(accK[t]+2*h,2)} op_sel_hi:[1,0,1]")
            A(f"v_pk_fma_f32 {vr(accV[t]+2*h,2)}, {vr(tl(t)+2+2*h,2)}, {vr(vCSV,2)}, {vr(accV[t]+2*h,2)} op_sel_hi:[1,0,1]")
            if t: A(f"v_pk_fma_f32 {vr(accQ[t]+2*h,2)}, {vr(vCSQ+2*h,2)}, {p}, {vr(accQ[t]+2*h,2)} op_sel_hi:[1,0,1]")
        for h in range(2):
            A(f"v_pk_mul_f32 {vr(accK[t]+2*h,2)}, {vr(accK[t]+2*h,2)}, {p} op_sel:[0,1] op_sel_hi:[1,1]")
            A(f"v_pk_mul_f32 {vr(accV[t]+2*h,2)}, {vr(accV[t]+2*h,2)}, {vr(tl(t)+6+2*h,2)}")
        for h in range(2):
            A(f"v_cvt_pk_bf16_f32 v{accK[t]+h}, v{accK[t]+2*h}, v{accK[t]+2*h+1}")
            if t: A(f"v_cvt_pk_bf16_f32 v{accQ[t]+h}, v{accQ[t]+2*h}, v{accQ[t]+2*h+1}")
            A(f"v_cvt_pk_bf16_f32 v{vV+2*t+h}, v{accV[t]+2*h}, v{accV[t]+2*h+1}")
        if t:
            A(f"v_mul_f32 v{tl(t)+1}, 0x3EB8AA3B, v{tl(t)+1}")
            A(mf(tl(t) + 2, vr(accK[t-1], 2), vr(accQ[t], 2), vr(vMP1 if t == 1 else vMP, 4), "16x16x16"))
            A(mf(tl(t) + 6, vr(accK[t], 2), vr(accQ[t], 2), vr(vMC, 4), "16x16x16"))
    dump(1, accQ[1], 12)
    vRX = tl(0)
    for c in range(4): A(f"ds_read_b64 {vr(vRX+2*c,2)}, v{vRA+c}")
    T = (1, 2, 3, 4)
    for t in T:
        for r in range(4): A(f"v_max_f32 v{tl(t)+2+r}, v{tl(t)+2+r}, v{tl(t)+6+r}")
        A(f"v_max3_f32 v{tl(t)}, v{tl(t)+2}, v{tl(t)+3}, v{tl(t)+4}\nv_max_f32 v{tl(t)}, v{tl(t)}, v{tl(t)+5}")
    a_, b_, c_, d_ = [tl(t) for t in T]
    A(f"""v_permlane32_swap_b32 v{a_}, v{b_}
          v_permlane32_swap_b32 v{c_}, v{d_}
          v_max_f32 v{a_}, v{a_}, v{b_}
          v_max_f32 v{c_}, v{c_}, v{d_}
          v_permlane16_swap_b32 v{a_}, v{c_}
          v_max_f32 v{a_}, v{a_}, v{c_}
          v_mov_b32 v{c_}, v{a_}
          v_permlane16_swap_b32 v{a_}, v{c_}
          v_mov_b32 v{b_}, v{a_}
          v_mov_b32 v{d_}, v{c_}
          v_permlane32_swap_b32 v{a_}, v{b_}
          v_permlane32_swap_b32 v{c_}, v{d_}""")
    for t in T: A(f"v_mul_f32 v{tl(t)}, v{tl(t)}, v{tl(t)+1}")
    for t in T:
        for r in range(4): A(f"v_fma_f32 v{tl(t)+2+r}, v{tl(t)+2+r}, v{tl(t)+1}, -v{tl(t)}")
        for r in range(4): A(f"v_exp_f32 v{tl(t)+2+r}, v{tl(t)+2+r}")
    for t in T:
        P = tl(t) + 6
        A(f"""v_cvt_pk_bf16_f32 v{tl(t)}, v{tl(t)+2}, v{tl(t)+3}
              v_cvt_pk_bf16_f32 v{tl(t)+1}, v{tl(t)+4}, v{tl(t)+5}
              v_and_b32 v{P}, v{vPM}, v{tl(t)}
              v_and_b32 v{P+1}, v{vPM+1}, v{tl(t)+1}
              v_bfi_b32 v{P+2}, v{vPM}, 0, v{tl(t)}
              v_bfi_b32 v{P+3}, v{vPM+1}, 0, v{tl(t)+1}""")
        A(mf(accK[t], vr(vONE, 2), vr(tl(t), 2), "0", "16x16x16"))
        A(mf(accV[t], vr(vV + 2 * (t - 1), 4), vr(P, 4), "0"))
    vO = accQ[0]
    for t in T: A(f"v_rcp_f32 v{accK[t]}, v{accK[t]}")
    for t in T:
        for h in range(2): A(f"v_pk_mul_f32 {vr(accV[t]+2*h,2)}, {vr(accV[t]+2*h,2)}, {vr(accK[t],2)} op_sel_hi:[1,0]")
        for h in range(2): A(f"v_cvt_pk_bf16_f32 v{vO+2*(t-1)+h}, v{accV[t]+2*h}, v{accV[t]+2*h+1}")
    for u in range(2):
        for h in range(2): A(f"v_permlane16_swap_b32 v{vO+4*u+h}, v{vO+4*u+2+h}")
    A(f"s_mov_b32 {t0}, 32768")
    dual_store([f"buffer_store_dwordx4 {vr(vO,4)}, v{vOST}, {S(SWS,4)}, 0 offen @",
                f"buffer_store_dwordx4 {vr(vO+4,4)}, v{vOST}, {S(SWS,4)}, {t0} offen @"])
    stamp("o_stored")
    accP = tmp + 12
    vOF = tmp + 28
    NOR = 8 if not (O["stamps"] or O["dump"]) else 7
    A("s_waitcnt lgkmcnt(0)")
    for c in range(4):
        for h in range(2):
            s_ = vRX + 2 * c + h; d = accP + 4 * c + 2 * h
            A(f"v_lshlrev_b32 v{d}, 16, v{s_}\nv_and_b32 v{d+1}, 0xFFFF0000, v{s_}")
            A(f"v_pk_fma_f32 {vr(d,2)}, {vr(d,2)}, {vr(vAL,2)}, {vr(vAL,2)} op_sel:[0,0,1] op_sel_hi:[1,0,1]")
    vFA, vFV, vFP = tmp + 8, tmp + 9, tmp + 10
    A(f"""s_lshl_b32 {t0}, {S(sC)}, 10
          s_add_u32 {t0}, {t0}, {FLAGS}
          s_lshl_b32 {t1}, {S(sM)}, 7
          s_lshl_b32 {t2}, {S(sWV)}, 2
          s_add_u32 {t1}, {t1}, {t2}
          v_mov_b32 v{vFA}, {t1}
          s_mul_i32 {t2}, {S(sLAY)}, {PH_O2-PH_O1}
          s_add_u32 {t2}, {t2}, {S(sTAG)}
          s_add_u32 {t2}, {t2}, {PH_O1}
          v_mov_b32 v{vFV}, {t2}
          v_bfe_u32 v{vFP}, v{vL}, 2, 3
          v_and_b32 v{vFP+1}, 3, v{vL}
          v_lshlrev_b32 v{vFP+1}, 2, v{vFP+1}
          v_lshl_add_u32 v{vFP}, v{vFP}, 7, v{vFP+1}
          s_waitcnt vmcnt(0)
          s_mov_b64 exec, 1""")
    dual_store([f"buffer_store_dword v{vFV}, v{vFA}, {S(SWS,4)}, {t0} offen @"])
    A("s_mov_b64 exec, -1\ns_barrier")
    if O.get("stop") == 1: A("s_branch L_exit")
    stamp("o_flagged")
    NP = 26
    def wof(f, n=4, off=0):
        k = f % NP
        return vr(base + 4 * k + off, n) if k < 18 else ar(192 + 4 * (k - 18) + off, n)
    def word(f): return [f"ds_read_b64_tr_b16 {wof(f,2,2*hf)}, v{vWO+(f&3)} offset:{(f>>2)*4096 + hf*512}" for hf in range(2)]
    for f in range(NP):
        for x in word(f): A(x)
    A("s_mov_b32 exec_hi, 0")
    poll("L_opoll", [f"buffer_load_dword v{vFP+1}, v{vFP}, {S(SWS,4)}, {t0} offen sc1"], [vFP + 1], t2)
    stamp("o_seen")
    old = lambda ks: f"buffer_load_dwordx4 {vr(vOF+4*(ks%NOR),4)}, v{vOLD}, {S(SWS,4)}, s{sROT+(ks>>1)} offen offset:{(ks&1)*1024} sc1"
    A(";@aw_on")
    NUP = O.get("nup", 6)
    for ks in range(NUP): A(old(ks))
    A("s_waitcnt lgkmcnt(0)")
    pend = []; acc_ = 0.0
    for f in range(64):
        ks, c = f >> 2, f & 3
        A(mf(accP + 4 * c, wof(f), vr(vOF + 4 * (ks % NOR), 4), vr(accP + 4 * c, 4)))
        if f + NP < 64: pend += word(f + NP)
        if c == 0 and ks + NUP < 16: A(old(ks + NUP))
        acc_ += O.get("p2rate", 1.45)
        while acc_ >= 1 and pend: A(pend.pop(0)); acc_ -= 1
    assert not pend and NUP < NOR
    A(";@aw_off")
    stamp("p2_end")
    vX = base
    A(f"s_add_u32 {t2}, {t2}, 1\ns_mov_b32 {t1}, 4096")
    for c in range(4):
        for h in range(2): A(f"v_cvt_pk_bf16_f32 v{vX+2*c+h}, v{accP+4*c+2*h}, v{accP+4*c+2*h+1}")
        if c & 1:
            if c == 3: A(mf(tmp + 4, vr(vX, 4), vr(vX, 4), "0")); A(mf(tmp, vr(vWR, 4), vr(vX, 4), "0"))
            for h in range(2): A(f"v_permlane16_swap_b32 v{vX+2*c-2+h}, v{vX+2*c+h}")
    gS, gG = tmp, tmp + 4
    A(mf(gG, vr(vX + 4, 4), vr(vX + 4, 4), vr(gG, 4))); A(mf(gS, vr(vWR + 4, 4), vr(vX + 4, 4), vr(gS, 4)))
    vXF = base + 8
    for d in range(4): A(f"v_lshlrev_b32 v{vXF+2*d}, 16, v{vX+d}\nv_and_b32 v{vXF+2*d+1}, 0xFFFF0000, v{vX+d}")
    diag(gS + 2, gG)
    A(f"v_mov_b32 v{gS+3}, {t2}\ns_mov_b64 exec, {S(sMV,2)}")
    dual_store([f"buffer_store_dwordx4 {vr(gS,4)}, v{vSTA}, {S(SWS,4)}, 0 offen @"])
    A(f"s_mov_b64 exec, -1\ns_cmp_eq_u32 {S(sLAY)}, 0\ns_cbranch_scc0 L_nox1")
    dual_store([f"buffer_store_dwordx4 {vr(vX,4)}, v{vXST}, {S(SWS,4)}, 0 offen @",
                f"buffer_store_dwordx4 {vr(vX+4,4)}, v{vXST}, {S(SWS,4)}, 0 offen offset:1024 @"])
    A.label("L_nox1")
    dump(2, vX, 8)
    stamp("stats_out")
    for d in range(4, 8): A(f"v_lshlrev_b32 v{vXF+2*d}, 16, v{vX+d}\nv_and_b32 v{vXF+2*d+1}, 0xFFFF0000, v{vX+d}")
    g0, g1 = tmp + 16, tmp + 20
    vU, vKA, vKB, vPI = tmp + 28, tmp + 29, tmp + 30, tmp + 26
    A(f"""s_lshl_b32 {t4}, {S(sC)}, 6
          s_lshl_b32 {t5}, {S(sWV)}, 4
          s_add_u32 {t4}, {t4}, {t5}
          v_add_u32 v{vU}, {t4}, v{vI}
          s_lshl_b32 {t4}, {S(sWV)}, 2
          s_add_u32 {t4}, {t4}, {T_KEY}
          v_mov_b32 v{vKA}, {t4}
          v_mov_b32 v{vKB}, {T_KEY}
          s_lshl_b32 {t3}, {S(sLAY)}, 5
          s_add_u32 {t3}, {t3}, {S(sC)}
          s_lshl_b32 {t5}, {t3}, 7
          s_add_u32 {t5}, {t5}, {CAND}
          s_lshl_b32 {t3}, {t3}, 10
          s_lshl_b32 {t4}, {S(sM)}, 7
          s_add_u32 {t3}, {t3}, {t4}
          s_add_u32 {t3}, {t3}, {CROW}
          s_add_u32 {t4}, {S(sM)}, {S(sWV)}""")
    poll("L_spoll", [f"buffer_load_dwordx4 {vr(g0,4)}, v{vSTL}, {S(SWS,4)}, 0 offen sc1",
                     f"buffer_load_dwordx4 {vr(g1,4)}, v{vSTL}, {S(SWS,4)}, {t1} offen sc1"], [g0 + 3, g1 + 3], t2)
    stamp("stats_seen")
    def red3(a, b, c, d):
        A(f"""v_permlane32_swap_b32 v{a}, v{b}
              v_permlane32_swap_b32 v{c}, v{d}
              v_add_f32 v{a}, v{a}, v{b}
              v_add_f32 v{c}, v{c}, v{d}
              v_permlane16_swap_b32 v{a}, v{c}
              v_add_f32 v{b}, v{a}, v{c}
              v_add_f32 v{c}, v{a}, v{c}
              v_permlane16_swap_b32 v{b}, v{c}
              v_mov_b32 v{a}, v{b}
              v_permlane32_swap_b32 v{a}, v{b}""")
    A(f"v_pk_add_f32 {vr(g0,2)}, {vr(g0,2)}, {vr(g1,2)}\nv_add_f32 v{g0+3}, v{g0+2}, v{g1+2}\nv_add_f32 v{g0+2}, v{g0+2}, v{g1+2}")
    red3(g0, g0 + 1, g0 + 2, g0 + 3)
    nm, rs, var, vk = g1, g1 + 1, g0 + 2, g1 + 2
    A(f"""v_mul_f32 v{nm}, 0xBB000000, v{g0}
          v_mul_f32 v{var}, 0x3B000000, v{var}
          v_fma_f32 v{var}, -v{nm}, v{nm}, v{var}
          v_max_f32 v{var}, 0, v{var}
          v_add_f32 v{rs}, {EPS}, v{var}
          v_rsq_f32 v{rs}, v{rs}
          v_fma_f32 v{vk}, v{nm}, {S(sSUMW)}, v{g0+1}
          v_mul_f32 v{vk}, v{vk}, v{rs}
          v_ashrrev_i32 v{g0+1}, 31, v{vk}
          v_or_b32 v{g0+1}, 0x80000000, v{g0+1}
          v_xor_b32 v{vk}, v{vk}, v{g0+1}
          v_and_b32 v{vk}, 0xFFFFF800, v{vk}
          v_or_b32 v{vk}, v{vk}, v{vU}
          v_add_f32 v{vAL}, 1.0, v{rs}
          v_mul_f32 v{vAL+1}, v{nm}, v{rs}
          v_max_u32_dpp v{g0}, v{vk}, v{vk} row_ror:8 row_mask:0xf bank_mask:0xf
          v_mul_f32 v{g0+3}, v{vAL}, v{vAL}
          v_mov_b32 v{g0+1}, {EPS}
          v_max_u32_dpp v{g0}, v{g0}, v{g0} row_ror:4 row_mask:0xf bank_mask:0xf
          v_fma_f32 v{g0+3}, v{var}, v{g0+3}, v{g0+1}
          v_mov_b32 v{tmp+25}, {t2}
          v_max_u32_dpp v{g0}, v{g0}, v{g0} row_ror:2 row_mask:0xf bank_mask:0xf
          v_rsq_f32 v{g0+3}, v{g0+3}
          v_bfe_u32 v{vPI}, v{vXST}, 8, 2
          v_max_u32_dpp v{g0}, v{g0}, v{g0} row_ror:1 row_mask:0xf bank_mask:0xf
          ds_write_b32 v{vKA}, v{g0}""")
    vXN = base + 24
    XN = [f"v_pk_fma_f32 {vr(vXN+8+2*d,2)}, {vr(vXF+2*d,2)}, {vr(nm,2)}, {vr(vAL,2)} op_sel:[0,1,1] op_sel_hi:[1,1,1]" for d in range(8)]
    for x in XN[:8]: A(x)
    A(f"""s_waitcnt lgkmcnt(0)
          s_barrier
          ds_read_b128 {vr(tmp+32,4)}, v{vKB}""")
    for d in range(8): A(f"v_cvt_pk_bf16_f32 v{vXN+d}, v{vXN+8+2*d}, v{vXN+9+2*d}")
    A(f"""v_lshlrev_b32 v{vPI}, 4, v{vPI}
          s_waitcnt lgkmcnt(0)
          v_max3_u32 v{tmp+24}, v{tmp+32}, v{tmp+33}, v{tmp+34}
          s_cmp_eq_u32 {t4}, 0
          v_max_u32 v{tmp+24}, v{tmp+24}, v{tmp+35}
          s_cbranch_scc0 L_nocand
          s_mov_b64 exec, 1
          buffer_store_dwordx2 {vr(tmp+24,2)}, v{vL}, {S(SWS,4)}, {t5} offen sc1
          s_mov_b64 exec, -1
          L_nocand:
          v_cmp_eq_u32 vcc, v{tmp+24}, v{vk}
          s_and_saveexec_b64 s[{sT+6}:{sT+7}], vcc
          s_cbranch_execz L_norow
          buffer_store_dwordx4 {vr(vXN,4)}, v{vPI}, {S(SWS,4)}, {t3} offen sc1
          buffer_store_dwordx4 {vr(vXN+4,4)}, v{vPI}, {S(SWS,4)}, {t3} offen offset:64 sc1
          L_norow:
          s_mov_b64 exec, -1""")
    stamp("cand_out")
    A(f"s_cmp_eq_u32 {S(sLAY)}, 0\ns_cbranch_scc0 L_final")

    A(f"""s_add_u32 {t4}, {S(sTAG)}, {PH_X1}
          v_mov_b32 v{vFV}, {t4}
          s_mov_b64 exec, 1""")
    dual_store([f"buffer_store_dword v{vFV}, v{vFA}, {S(SWS,4)}, {t0} offen offset:16 @"])
    A(f"""s_mov_b64 exec, -1
          s_lshl_b32 {t5}, {S(sWV)}, 6
          v_add_u32 v{g0+1}, {t5}, v{vTI}
          v_mul_f32 v{g0+3}, v{g0+3}, v{vAL}
          ds_write2_b32 v{g0+1}, v{nm}, v{g0+3} offset0:16 offset1:96
          ds_write_b32 v{g0+1}, v{rs} offset:{4*176}""")
    A(f"""v_and_b32 v{tmp+13}, 7, v{vI}
          v_lshlrev_b32 v{tmp+13}, 4, v{tmp+13}
          s_cmp_eq_u32 {S(sWV)}, 3
          s_cbranch_scc0 L_nohalo_st
          v_lshl_add_u32 v{tmp+12}, v{vPI}, 3, v{tmp+13}
          s_lshl_b32 {t3}, {S(sC)}, 13
          s_lshl_b32 {t5}, {S(sM)}, 10
          s_add_u32 {t3}, {t3}, {t5}
          s_add_u32 {t3}, {t3}, {HROW}
          s_mov_b32 exec_lo, 0xFF00FF00
          s_mov_b32 exec_hi, 0xFF00FF00
          buffer_store_dwordx4 {vr(vX,4)}, v{tmp+12}, {S(SWS,4)}, {t3} offen sc1
          buffer_store_dwordx4 {vr(vX+4,4)}, v{tmp+12}, {S(SWS,4)}, {t3} offen offset:512 sc1
          s_mov_b64 exec, -1
          L_nohalo_st:""")
    vWDR = tmp + 16
    fE = lambda t, mat, par: vFG + 16 * t + 8 * mat + 4 * par
    A(f"""s_cmp_lt_u32 {S(sF)}, 43
          s_cbranch_scc0 L_noffnld
          s_mul_i32 {t3}, {S(sWV)}, {128*2752}
          s_lshl_b32 {t5}, {S(sF)}, 6
          s_add_u32 {t3}, {t3}, {t5}
          v_lshrrev_b32 v{tmp+4}, 2, v{vL}
          v_mul_u32_u24 v{tmp+4}, 2752, v{tmp+4}
          v_and_b32 v{tmp+5}, 3, v{vL}
          v_and_b32 v{tmp+6}, 2, v{vGq}
          v_xor_b32 v{tmp+5}, v{tmp+5}, v{tmp+6}
          v_lshl_add_u32 v{tmp+4}, v{tmp+5}, 4, v{tmp+4}
          v_add_u32 v{tmp+4}, {t3}, v{tmp+4}""")
    for n in range(8):
        for mat, srd in ((0, SWG), (1, SWU)):
            A(f"s_add_u32 m0, {S(sW14)}, {mat*8192 + n*1024}\ns_mov_b32 {t3}, {n*16*2752}\nbuffer_load_dwordx4 v{tmp+4}, {S(srd,4)}, {t3} offen lds")
    A(f"""s_lshl_b32 {t3}, {S(sWV)}, 8
          s_lshl_b32 {t5}, {S(sF)}, 15
          s_add_u32 {t3}, {t3}, {t5}
          v_lshlrev_b32 v{tmp+5}, 12, v{vGq}
          v_lshl_add_u32 v{tmp+5}, v{vI}, 4, v{tmp+5}
          v_add_u32 v{tmp+5}, {t3}, v{tmp+5}
          s_mov_b32 {t5}, 16384
          s_waitcnt lgkmcnt(0)""")
    for e in range(8):
        A(f"buffer_load_dwordx4 {vr(vWDR+4*e,4)}, v{tmp+5}, {S(SWD,4)}, {t5 if e & 1 else 0} offen offset:{(e>>1)*1024}")
    A(f"""v_lshrrev_b32 v{tmp+4}, 2, v{vI}
          v_lshlrev_b32 v{tmp+4}, 6, v{tmp+4}
          v_lshl_add_u32 v{tmp+4}, v{vGq}, 9, v{tmp+4}
          v_and_b32 v{tmp+5}, 3, v{vI}
          v_lshl_add_u32 v{tmp+4}, v{tmp+5}, 3, v{tmp+4}
          v_and_b32 v{tmp+5}, 1, v{vGq}
          v_lshl_add_u32 v{tmp+4}, v{tmp+5}, 5, v{tmp+4}
          v_add_u32 v{tmp+4}, {S(sW14)}, v{tmp+4}
          v_xor_b32 v{tmp+5}, 32, v{tmp+4}
          s_waitcnt vmcnt(8)""")
    for t in range(4):
        for mat in range(2):
            for par in range(2):
                for hf in range(2):
                    A(f"ds_read_b64_tr_b16 {vr(fE(t,mat,par)+2*hf,2)}, v{tmp+4+par} offset:{mat*8192 + t*2048 + hf*256}")
    A.label("L_noffnld")
    stamp("ffn_staged")
    A(f"""v_and_b32 v{tmp+4}, 7, v{vL}
          v_lshlrev_b32 v{tmp+4}, 7, v{tmp+4}
          s_lshl_b32 {t5}, {S(sWV)}, 2
          v_add_u32 v{tmp+4}, {t5}, v{tmp+4}
          v_add_u32 v{tmp+6}, {X1BUF-OBUF}, v{vOLD}
          s_mov_b64 exec, 0xFF""")
    poll("L_xpoll", [f"buffer_load_dword v{tmp+5}, v{tmp+4}, {S(SWS,4)}, {t0} offen offset:16 sc1"], [tmp + 5], t4)
    A(f"""s_cmp_eq_u32 {S(sWV)}, 3
          s_cbranch_scc0 L_noflag
          s_lshl_b32 {t4}, {S(sC)}, 10
          s_lshl_b32 {t5}, {S(sM)}, 7
          s_add_u32 {t4}, {t4}, {t5}
          s_add_u32 {t4}, {t4}, {HST}
          s_mov_b32 exec_lo, 0
          s_mov_b32 exec_hi, s{sMV+1}
          buffer_store_dwordx4 {vr(gS,4)}, v{tmp+13}, {S(SWS,4)}, {t4} offen sc1
          s_mov_b64 exec, -1
          L_noflag:
          s_waitcnt lgkmcnt(0)""")
    for p in range(8):
        A(f"s_add_u32 m0, {S(sW14)}, {p*2048}\ns_nop 0")
        for e in range(2): A(f"buffer_load_dwordx4 v{tmp+6}, {S(SWS,4)}, s{sROT+p} offen offset:{e*1024} sc1 lds")
    A(f"""v_mov_b32 v{vA}, v{vL16}
          v_add_u32 v{vA+1}, 1024, v{vL16}
          v_lshl_add_u32 v{tmp+4}, v{vGq}, 7, v{tmp+13}
          v_add_u32 v{tmp+4}, {XH}, v{tmp+4}
          v_cmp_gt_u32 vcc, 8, v{vI}
          v_add_u32 v{tmp+5}, 512, v{tmp+4}
          v_lshrrev_b32 v{tmp+6}, 1, v{vGq}
          v_cndmask_b32 v{vH}, v{tmp+4}, v{vH}, vcc
          v_cndmask_b32 v{vH+1}, v{tmp+5}, v{vH+1}, vcc
          v_lshlrev_b32 v{tmp+6}, 8, v{tmp+6}
          v_lshl_add_u32 v{tmp+6}, v{vI}, 4, v{tmp+6}
          v_and_b32 v{tmp+5}, 1, v{vGq}
          v_lshl_add_u32 v{tmp+6}, v{tmp+5}, 3, v{tmp+6}
          v_add_u32 v{vRA}, {S(sW3K)}, v{tmp+6}""")
    for c in range(1, 4): A(f"v_add_u32 v{vRA+c}, {512*c}, v{vRA}")
    A(f"""s_cmp_lt_u32 {S(sF)}, 43
          s_cbranch_scc0 L_nowdp
          s_mov_b32 {t4}, 0x05040100
          s_mov_b32 {t5}, 0x07060302""")
    for n in range(8):
        for d in range(4):
            A(f"v_perm_b32 v{tmp+4+(d&1)}, v{vWDR+8*d+4+(n>>1)}, v{vWDR+8*d+(n>>1)}, {t5 if n & 1 else t4}")
            A(f"v_accvgpr_write_b32 a{aWDN+4*n+d}, v{tmp+4+(d&1)}")
    A.label("L_nowdp")
    A("s_waitcnt vmcnt(0)\ns_barrier")
    stamp("x1_landed")
    def gemm_tile(t):
        A(f"s_cmp_eq_u32 {S(sRT)}, {t}\ns_cbranch_scc1 L_tskip{t}")
        A.label(f"L_tile{t}")
        NB = 4
        fr = lambda ks: 192 + 4 * (ks % NB)
        def rd(ks):
            if t == 0: return f"ds_read_b128 {ar(fr(ks),4)}, v{vH+(ks&1)} offset:{(ks>>1)*1024}"
            return f"ds_read_b128 {ar(fr(ks),4)}, v{vA+(ks&1)} offset:{(t-1)*16384 + (ks>>1)*2048}"
        for ks in range(NB - 1): A(rd(ks))
        for ks in range(16):
            n = min(NB - 2, 15 - ks)
            A(f"s_waitcnt lgkmcnt({n})")
            x = ar(fr(ks), 4); C = lambda d: "0" if ks == 0 else vr(d, 4)
            A(mf(accK[t], ar(aW(ks, 1), 4), x, C(accK[t])))
            if ks + NB - 1 < 16: A(rd(ks + NB - 1))
            A(mf(accV[t], x, ar(aW(ks, 2), 4), C(accV[t])))
            if t: A(mf(accQ[t], ar(aW(ks, 0), 4), x, C(accQ[t])))
        A(f"s_cmp_eq_u32 {S(sRET)}, 0\ns_cbranch_scc0 L_patched")
        A.label(f"L_tskip{t}")
    bk = tmp
    def bpoll(name, sleep):
        A(f"""v_lshlrev_b32 v{bk+2}, 7, v{vL}
              s_lshl_b32 {t4}, {S(sLAY)}, 12
              s_add_u32 {t4}, {t4}, {CAND}
              s_mul_i32 {t5}, {S(sLAY)}, {PH_S2-PH_S1}
              s_add_u32 {t5}, {t5}, {S(sTAG)}
              s_add_u32 {t5}, {t5}, {PH_S1}
              s_mov_b32 exec_hi, 0""")
        poll(name, [f"buffer_load_dwordx2 {vr(bk,2)}, v{bk+2}, {S(SWS,4)}, {t4} offen sc1"], [bk + 1], t5, sleep)
        for sh in (8, 4, 2, 1): A(f"v_max_u32_dpp v{bk}, v{bk}, v{bk} row_ror:{sh} row_mask:0xf bank_mask:0xf")
        A(f"""v_readlane_b32 {t4}, v{bk}, 0
              v_readlane_b32 {t5}, v{bk}, 16
              s_max_u32 {S(sKEY)}, {t4}, {t5}""")
    def affected():
        d = newlab("aff")
        A(f"""s_bfe_u32 {t0}, {S(sKEY)}, 0x50006
              s_and_b32 {t1}, {S(sKEY)}, 63
              s_and_b32 {S(sI)}, {S(sKEY)}, 15
              s_lshr_b32 {t2}, {t1}, 4
              s_add_u32 {S(sRT)}, {t2}, 1
              s_lshl_b32 {t2}, {t2}, 14
              s_lshl_b32 {t3}, {S(sI)}, 4
              s_add_u32 {S(sPB)}, {t2}, {t3}
              s_mov_b32 {S(sPS)}, 8
              s_cmp_eq_u32 {t0}, {S(sC)}
              s_cbranch_scc1 {d}
              s_add_u32 {S(sPB)}, {t3}, {XH - 128}
              s_mov_b32 {S(sPS)}, 7
              s_cmp_ge_u32 {t1}, 57
              s_cselect_b32 {S(sRT)}, 0, 99
              s_cmp_eq_u32 {t0}, {S(sPREV)}
              s_cselect_b32 {S(sRT)}, {S(sRT)}, 99
              {d}:""")
    for t in range(1, O["ffn_after"] + 1): gemm_tile(t)
    A(f"s_cmp_lt_u32 {S(sF)}, 43\ns_cbranch_scc0 L_ffn_ret1")
    A.label("L_ffn")
    bpoll("L_bpoll", 0)
    stamp("b_seen")
    A(f"""s_bfe_u32 {t4}, {S(sKEY)}, 0x50006
          s_lshl_b32 {t5}, {S(sLAY)}, 5
          s_add_u32 {t4}, {t4}, {t5}
          s_lshl_b32 {t4}, {t4}, 10
          s_lshl_b32 {t5}, {S(sWV)}, 8
          s_add_u32 {t4}, {t4}, {t5}
          s_add_u32 {t4}, {t4}, {CROW}
          v_lshlrev_b32 v{bk}, 4, v{vGq}""")
    xr = tmp + 4; fa = tmp + 20
    A.label("L_rpoll")
    for t in range(4): A(f"buffer_load_dwordx4 {vr(xr+4*t,4)}, v{bk}, {S(SWS,4)}, {t4} offen offset:{64*t} sc1")
    A(f"v_mov_b32 v{bk+1}, 0\ns_waitcnt vmcnt(0)")
    for t in range(4): A(f"v_max3_u32 v{bk+1}, v{bk+1}, v{xr+4*t}, v{xr+4*t+1}\nv_max3_u32 v{bk+1}, v{bk+1}, v{xr+4*t+2}, v{xr+4*t+3}")
    A(f"v_cmp_eq_u32 vcc, -1, v{bk+1}")
    spin()
    A("s_cbranch_vccnz L_rpoll")
    stamp("row_in")
    for t in range(4):
        for k in range(4):
            A(mf(fa + 4 * k, vr(xr + 4 * t, 4), vr(fE(t, k >> 1, k & 1), 4), "0" if t == 0 else vr(fa + 4 * k, 4)))
    A(f"""s_lshl_b32 {t4}, {S(sWV)}, 8
          s_add_u32 {t4}, {t4}, {T_FFN}
          v_lshlrev_b32 v{bk}, 4, v{vI}
          v_add_u32 v{bk}, {t4}, v{bk}
          v_and_b32 v{bk+1}, 3, v{vI}
          v_lshl_add_u32 v{bk+1}, v{vGq}, 2, v{bk+1}
          v_lshlrev_b32 v{bk+1}, 4, v{bk+1}
          v_add_u32 v{bk+1}, {T_FFN}, v{bk+1}
          v_mov_b32 v{fa+1}, v{fa+4}
          v_mov_b32 v{fa+2}, v{fa+8}
          v_mov_b32 v{fa+3}, v{fa+12}
          s_mov_b64 exec, 0xFFFF
          ds_write_b128 v{bk}, {vr(fa,4)}
          s_mov_b64 exec, -1
          s_waitcnt lgkmcnt(0)
          s_barrier""")
    for w in range(4): A(f"ds_read_b128 {vr(xr+4*w,4)}, v{bk+1} offset:{256*w}")
    A(f"""s_lshl_b32 {t4}, {S(sLAY)}, 16
          s_lshl_b32 {t5}, {S(sF)}, 10
          s_add_u32 {t4}, {t4}, {t5}
          s_lshl_b32 {t5}, {S(sWV)}, 8
          s_add_u32 {t4}, {t4}, {t5}
          s_add_u32 {t4}, {t4}, {YPART}
          s_waitcnt lgkmcnt(0)""")
    for h in range(2):
        A(f"v_pk_add_f32 {vr(xr+2*h,2)}, {vr(xr+2*h,2)}, {vr(xr+4+2*h,2)}\nv_pk_add_f32 {vr(xr+8+2*h,2)}, {vr(xr+8+2*h,2)}, {vr(xr+12+2*h,2)}")
    for h in range(2): A(f"v_pk_add_f32 {vr(xr+2*h,2)}, {vr(xr+2*h,2)}, {vr(xr+8+2*h,2)}")
    A(f"""v_mul_f32 v{xr+4}, 0xBFB8AA3B, v{xr}
          v_mul_f32 v{xr+5}, 0xBFB8AA3B, v{xr+1}
          v_exp_f32 v{xr+4}, v{xr+4}
          v_exp_f32 v{xr+5}, v{xr+5}
          v_pk_mul_f32 {vr(xr,2)}, {vr(xr,2)}, {vr(xr+2,2)}
          v_add_f32 v{xr+4}, 1.0, v{xr+4}
          v_add_f32 v{xr+5}, 1.0, v{xr+5}
          v_rcp_f32 v{xr+4}, v{xr+4}
          v_rcp_f32 v{xr+5}, v{xr+5}
          s_nop 0
          v_pk_mul_f32 {vr(xr,2)}, {vr(xr,2)}, {vr(xr+4,2)}
          v_cvt_pk_bf16_f32 v{xr}, v{xr}, v{xr+1}""")
    for d in range(4): A(f"v_mov_b32_dpp v{xr+4+d}, v{xr} quad_perm:[{d},{d},{d},{d}] row_mask:0xf bank_mask:0xf")
    yo = tmp + 16
    for n in range(8): A(mf(yo + 4 * n, vr(xr + 4, 4), ar(aWDN + 4 * n, 4), "0"))
    for d in range(4): A(f"v_cvt_pk_bf16_f32 v{xr+d}, v{yo+8*d}, v{yo+8*d+4}")
    A(f"""s_mov_b64 exec, 0xFFFF
          buffer_store_dwordx4 {vr(xr,4)}, v{vL16}, {S(SWS,4)}, {t4} offen sc1
          s_mov_b64 exec, -1
          s_cmp_eq_u32 {S(sLAY)}, 0
          s_cbranch_scc0 L_ffn_done""")
    affected()
    A.label("L_ffn_ret1")
    stamp("ffn_ret1")
    for t in range(O["ffn_after"] + 1, 5): gemm_tile(t)
    stamp("tiles_done")
    A(f"""s_cmp_eq_u32 {S(sPREV)}, 255
          s_cbranch_scc1 L_nohalo
          s_lshl_b32 {t4}, {S(sPREV)}, 10
          s_add_u32 {t4}, {t4}, {HST}
          s_add_u32 {t5}, {S(sTAG)}, {PH_S1}""")
    poll("L_hpoll", [f"buffer_load_dwordx4 {vr(tmp,4)}, v{vL16}, {S(SWS,4)}, {t4} offen sc1"], [tmp + 3], t5)
    A(f"""s_lshl_b32 {t4}, {S(sPREV)}, 13
          s_add_u32 {t4}, {t4}, {HROW}
          s_lshl_b32 {t3}, {S(sWV)}, 1
          s_add_u32 {t3}, {t3}, {S(sR)}
          s_lshl_b32 {t5}, {S(sWV)}, 11""")
    for e in range(2):
        A(f"""s_add_u32 {t2}, {t3}, {e}
              s_and_b32 {t2}, {t2}, 7
              s_lshl_b32 {t2}, {t2}, 10
              s_add_u32 {t2}, {t2}, {t4}
              s_add_u32 m0, {t5}, {XH + e*1024}
              s_nop 0
              buffer_load_dwordx4 v{vL16}, {S(SWS,4)}, {t2} offen sc1 lds""")
    h1, h2 = tmp, tmp + 2
    for x in (h1, h2): A(f"v_add_f32_dpp v{x}, v{x}, v{x} row_ror:8 row_mask:0xf bank_mask:0xf")
    A(f"v_mov_b32 v{tmp+3}, v{h2}")
    red3(h1, tmp + 1, h2, tmp + 3)
    A(f"""v_mul_f32 v{tmp+4}, 0xBB000000, v{h1}
          v_mul_f32 v{h2}, 0x3B000000, v{h2}
          v_fma_f32 v{h2}, -v{tmp+4}, v{tmp+4}, v{h2}
          v_max_f32 v{h2}, 0, v{h2}
          v_add_f32 v{tmp+5}, {EPS}, v{h2}
          v_rsq_f32 v{tmp+5}, v{tmp+5}
          v_mov_b32 v{tmp+1}, {EPS}
          v_add_f32 v{tmp+6}, 1.0, v{tmp+5}
          v_mul_f32 v{tmp+7}, v{tmp+6}, v{tmp+6}
          v_fma_f32 v{tmp+7}, v{h2}, v{tmp+7}, v{tmp+1}
          v_rsq_f32 v{tmp+7}, v{tmp+7}
          s_nop 0
          v_mul_f32 v{tmp+7}, v{tmp+7}, v{tmp+6}
          ds_write2_b32 v{vTI}, v{tmp+4}, v{tmp+7} offset0:0 offset1:80
          ds_write_b32 v{vTI}, v{tmp+5} offset:{4*160}
          s_waitcnt vmcnt(0) lgkmcnt(0)
          s_barrier""")
    A.label("L_nohalo")
    stamp("halo_in")
    gemm_tile(0)
    stamp("halo_tile")
    A(f"s_cmp_lt_u32 {S(sF)}, 43\ns_cbranch_scc1 L_ffn_ret2")
    bpoll("L_bpoll2", 0)
    affected()
    A.label("L_ffn_ret2")
    stamp("winner_known")
    A(f"""s_cmp_eq_u32 s2, 0
          s_cbranch_scc0 L_noepoch
          v_mov_b32 v{tmp}, {S(sTAG)}
          s_mov_b64 exec, 1
          buffer_store_dword v{tmp}, v{vL}, {S(SWS,4)}, 0 offen sc1
          s_mov_b64 exec, -1
          L_noepoch:
          s_mov_b32 {S(sLAY)}, 1
          s_cmp_eq_u32 {S(sRT)}, 99
          s_cbranch_scc1 L_attn""")
    pa, px, pb, psel, pya, pyb, psig = tmp, tmp + 2, tmp + 4, tmp + 8, tmp + 12, tmp + 13, tmp + 14
    vY = tmp + 16
    yacc = tmp + 48
    def sigma(dst):
        A(f"""s_and_b32 {t4}, {S(sKEY)}, 0xFFFFF800
              s_ashr_i32 {t5}, {t4}, 31
              s_not_b32 {t5}, {t5}
              s_or_b32 {t5}, {t5}, 0x80000000
              s_xor_b32 {t4}, {t4}, {t5}
              v_mov_b32 v{dst}, 0xBFB8AA3B
              v_mul_f32 v{dst}, {t4}, v{dst}
              v_exp_f32 v{dst}, v{dst}
              s_nop 0
              v_add_f32 v{dst}, 1.0, v{dst}
              v_rcp_f32 v{dst}, v{dst}""")
    def selector(dst, scr):
        A(f"""v_and_b32 v{scr}, 1, v{vI}
              v_lshlrev_b32 v{scr}, 4, v{scr}
              v_mov_b32 v{scr+1}, 0x3F80
              v_lshlrev_b32 v{scr}, v{scr}, v{scr+1}
              v_bfe_u32 v{scr+1}, v{vI}, 1, 2""")
        for d in range(4): A(f"v_cmp_eq_u32 vcc, {d}, v{scr+1}\nv_cndmask_b32 v{dst+d}, 0, v{scr}, vcc")
    A(f"""s_lshl_b32 {t4}, {S(sWV)}, 4
          s_lshl_b32 {t5}, {S(sR)}, 3
          s_sub_u32 {t4}, {t4}, {t5}
          v_add_u32 v{pa}, {t4}, v{vI}
          v_and_b32 v{pa}, 63, v{pa}
          v_lshlrev_b32 v{pa}, {S(sPS)}, v{pa}
          v_and_b32 v{pa+1}, 1, v{vGq}
          v_lshl_add_u32 v{pa}, v{pa+1}, 3, v{pa}
          v_add_u32 v{pa}, {S(sPB)}, v{pa}
          s_lshl_b32 {t4}, {S(sRT)}, 4
          s_add_u32 {t4}, {t4}, {S(sI)}
          s_lshl_b32 {t4}, {t4}, 2
          s_add_u32 {t4}, {t4}, {T_NM}
          v_mov_b32 v{pa+1}, {t4}
          ds_read_b64 {vr(px,2)}, v{pa}
          ds_read2_b32 {vr(vY,2)}, v{pa+1} offset0:0 offset1:160""")
    selector(psel, pya)
    sigma(psig)
    A(f"""s_lshl_b32 {t4}, {S(sWV)}, 8
          s_add_u32 {t4}, {t4}, {YPART}
          v_lshlrev_b32 v{pya}, 10, v{vGq}
          v_lshl_add_u32 v{pya}, v{vI}, 4, v{pya}
          v_add_u32 v{pya}, {t4}, v{pya}
          v_mov_b32 v{pyb}, {OOB}
          v_cmp_gt_u32 vcc, 3, v{vGq}
          v_cndmask_b32 v{pyb}, v{pyb}, v{pya}, vcc
          s_waitcnt lgkmcnt(0)
          v_mul_f32 v{vY}, v{vY}, v{vY+1}
          v_add_f32 v{vY+1}, 1.0, v{vY+1}""")
    for h in range(2):
        A(f"v_lshlrev_b32 v{pb+2*h}, 16, v{px+h}\nv_and_b32 v{pb+2*h+1}, 0xFFFF0000, v{px+h}")
        A(f"v_pk_fma_f32 {vr(pb+2*h,2)}, {vr(pb+2*h,2)}, {vr(vY,2)}, {vr(vY,2)} op_sel:[0,1,0] op_sel_hi:[1,1,0]")
    A(f"""s_add_u32 {t4}, {S(sWV)}, 1
          s_cmp_eq_u32 {t4}, {S(sRT)}
          s_cselect_b32 {t4}, {S(sI)}, 99
          v_cmp_eq_u32 vcc, {t4}, v{vI}
          v_cndmask_b32 v{vAL}, v{vAL}, 1.0, vcc
          v_cndmask_b32 v{vAL+1}, v{vAL+1}, 0, vcc""")
    for bi, (lo, hi) in enumerate(((0, 8), (8, 11))):
        A.label(f"L_ypoll{bi}")
        for t in range(lo, hi):
            A(f"s_mov_b32 {t4}, {t*4096}\nbuffer_load_dwordx4 {vr(vY+4*(t-lo),4)}, v{pyb if t == 10 else pya}, {S(SWS,4)}, {t4} offen sc1")
        A(f"v_mov_b32 v{px}, 0")
        for t in range(lo, hi):
            y = vY + 4 * (t - lo)
            A(f"s_waitcnt vmcnt({hi-1-t})\nv_max3_u32 v{px}, v{px}, v{y}, v{y+1}\nv_max3_u32 v{px}, v{px}, v{y+2}, v{y+3}")
        A(f"v_cmp_eq_u32 vcc, -1, v{px}")
        spin()
        A(f"s_cbranch_vccnz L_ypoll{bi}")
        for t in range(lo, hi):
            A(mf(yacc, vr(psel, 4), vr(vY + 4 * (t - lo), 4), "0" if t == 0 else vr(yacc, 4)))
    stamp("y_in")
    for r in range(4): A(f"v_fma_f32 v{pb+r}, v{yacc+r}, v{psig}, v{pb+r}")
    A(f"""v_cvt_pk_bf16_f32 v{px}, v{pb}, v{pb+1}
          v_cvt_pk_bf16_f32 v{px+1}, v{pb+2}, v{pb+3}
          v_mov_b32 v{pb}, 0
          v_mov_b32 v{pb+1}, 0
          ds_write_b64 v{pa}, {vr(px,2)}
          v_dot2c_f32_bf16 v{pb}, v{px}, v{vONE}
          v_dot2c_f32_bf16 v{pb+1}, v{px}, v{px}
          v_dot2c_f32_bf16 v{pb}, v{px+1}, v{vONE}
          v_dot2c_f32_bf16 v{pb+1}, v{px+1}, v{px+1}""")
    for sh in (8, 4, 2, 1):
        for x in (pb, pb + 1): A(f"v_add_f32_dpp v{x}, v{x}, v{x} row_ror:{sh} row_mask:0xf bank_mask:0xf")
    A(f"""v_and_b32 v{pb+2}, 1, v{vGq}
          v_lshlrev_b32 v{pb+2}, 3, v{pb+2}
          s_lshl_b32 {t4}, {S(sWV)}, 4
          s_add_u32 {t4}, {t4}, {T_PST}
          v_add_u32 v{pb+2}, {t4}, v{pb+2}
          ds_write_b64 v{pb+2}, {vr(pb,2)}
          s_mov_b32 {S(sRET)}, 1
          s_waitcnt lgkmcnt(0)
          s_barrier""")
    for t in range(4): A(f"s_cmp_eq_u32 {S(sRT)}, {t}\ns_cbranch_scc1 L_tile{t}")
    A("s_branch L_tile4")
    A.label("L_patched")
    A(f"v_mov_b32 v{pb}, {T_PST}")
    for w in range(4): A(f"ds_read_b128 {vr(vY+4*w,4)}, v{pb} offset:{16*w}")
    A("s_waitcnt lgkmcnt(0)")
    for w in range(1, 8): A(f"v_pk_add_f32 {vr(vY,2)}, {vr(vY,2)}, {vr(vY+2*w,2)}")
    A(f"""v_mul_f32 v{vY}, 0xBB000000, v{vY}
          v_mul_f32 v{vY+1}, 0x3B000000, v{vY+1}
          v_fma_f32 v{vY+1}, -v{vY}, v{vY}, v{vY+1}
          v_max_f32 v{vY+1}, 0, v{vY+1}
          v_add_f32 v{vY+1}, {EPS}, v{vY+1}
          v_rsq_f32 v{vY+1}, v{vY+1}
          s_nop 0
          ds_write2_b32 v{pa+1}, v{vY}, v{vY+1} offset0:0 offset1:80
          s_branch L_attn""")

    A.label("L_final")
    vOUT = base + 24
    for d in range(8):
        A(f"v_pk_fma_f32 {vr(vXF+2*d,2)}, {vr(vXF+2*d,2)}, {vr(vAL,2)}, {vr(vAL,2)} op_sel:[0,0,1] op_sel_hi:[1,0,1]")
    A(f"""v_lshlrev_b32 v{tmp+27}, 1, v{vPI}
          v_add_u32 v{tmp+27}, {T_ROW}, v{tmp+27}
          s_mov_b64 s[{sT+6}:{sT+7}], vcc
          s_mov_b64 exec, vcc""")
    for k in range(4): A(f"ds_write_b128 v{tmp+27}, {vr(vXF+4*k,4)} offset:{(k>>1)*128 + (k&1)*16}")
    A("s_mov_b64 exec, -1")
    vPK = base + 48
    for d in range(8): A(f"v_cvt_pk_bf16_f32 v{vPK+d}, v{vXF+2*d}, v{vXF+2*d+1}")
    A(f"""v_and_b32 v{tmp+27}, 7, v{vI}
          v_lshlrev_b32 v{tmp+27}, 4, v{tmp+27}
          v_xor_b32 v{tmp+27}, v{tmp+27}, v{vPI}
          v_lshl_add_u32 v{tmp+27}, v{vI}, 7, v{tmp+27}
          v_add_u32 v{tmp+27}, {S(sW14)}, v{tmp+27}
          v_xor_b32 v{tmp+29}, 64, v{tmp+27}
          v_add_u32 v{tmp+28}, {S(sW14)}, v{vL16}
          ds_write_b128 v{tmp+27}, {vr(vPK,4)}
          ds_write_b128 v{tmp+29}, {vr(vPK+4,4)}
          ds_read_b128 {vr(vPK+8,4)}, v{tmp+28}
          ds_read_b128 {vr(vPK+12,4)}, v{tmp+28} offset:1024
          s_lshl_b32 {t1}, {S(sM)}, 7
          s_add_u32 {S(sXB)}, {S(sXB)}, {t1}
          s_lshl_b32 {t1}, {S(sWV)}, 15
          s_add_u32 {t0}, {S(sXB)}, {t1}
          s_add_u32 {t1}, {t0}, 16384
          v_lshrrev_b32 v{tmp+27}, 3, v{vL}
          v_and_b32 v{tmp+28}, 7, v{vL}
          v_xor_b32 v{tmp+28}, v{tmp+28}, v{tmp+27}
          v_lshlrev_b32 v{tmp+28}, 4, v{tmp+28}
          v_lshl_add_u32 v{tmp+27}, v{tmp+27}, 11, v{tmp+28}
          s_waitcnt lgkmcnt(0)
          buffer_store_dwordx4 {vr(vPK+8,4)}, v{tmp+27}, {S(SOUT,4)}, {t0} offen sc1
          buffer_store_dwordx4 {vr(vPK+12,4)}, v{tmp+27}, {S(SOUT,4)}, {t1} offen sc1""")
    if O["clean"]:
        A(f"""s_mov_b32 {t0}, 32768
              buffer_store_dwordx4 {vr(vPK,4)}, v{vOST}, {S(SWS,4)}, 0 offen sc1
              buffer_store_dwordx4 {vr(vPK,4)}, v{vOST}, {S(SWS,4)}, {t0} offen sc1
              buffer_store_dwordx4 {vr(vPK,4)}, v{vXST}, {S(SWS,4)}, 0 offen sc1
              buffer_store_dwordx4 {vr(vPK,4)}, v{vXST}, {S(SWS,4)}, 0 offen offset:1024 sc1""")
    if O["wbl2"]:
        A(f"""s_lshl_b32 {t4}, {S(sM)}, 2
              s_add_u32 {t4}, {t4}, {S(sWV)}
              s_cmp_eq_u32 {t4}, 31
              s_cbranch_scc0 L_nowb
              buffer_wbl2 sc1
              L_nowb:""")
    stamp("out_stored")
    A(f"""s_cmp_lt_u32 {S(sF)}, 43
          s_cbranch_scc1 L_ffn
          s_cmp_eq_u64 s[{sT+6}:{sT+7}], 0
          s_cbranch_scc1 L_exit""")
    bpoll("L_bpoll3", 6)
    A.label("L_ffn_done")
    stamp("ffn_done")
    A(f"""s_bfe_u32 {t0}, {S(sKEY)}, 0x70004
          s_lshl_b32 {t1}, {S(sC)}, 2
          s_add_u32 {t1}, {t1}, {S(sWV)}
          s_cmp_eq_u32 {t0}, {t1}
          s_cbranch_scc0 L_exit""")
    selector(psel, pya)
    sigma(psig)
    A(f"""v_lshrrev_b32 v{pa}, 3, v{vL}
          v_and_b32 v{pa+1}, 7, v{vL}
          v_lshlrev_b32 v{pya}, 4, v{pa+1}
          v_lshl_add_u32 v{pya}, v{pa}, 10, v{pya}
          s_lshl_b32 {t4}, {S(sM)}, 7
          s_add_u32 {t4}, {t4}, {YPART + 65536}
          v_add_u32 v{pya}, {t4}, v{pya}
          v_mov_b32 v{pyb}, {OOB}
          v_cmp_gt_u32 vcc, 3, v{pa}
          v_cndmask_b32 v{pyb}, v{pyb}, v{pya}, vcc
          v_and_b32 v{pa}, 1, v{vGq}
          v_lshl_add_u32 v{pa}, v{pa+1}, 1, v{pa}
          v_lshlrev_b32 v{pa+1}, 4, v{pa}
          v_add_u32 v{pa+1}, {T_ROW}, v{pa+1}
          ds_read_b128 {vr(pb,4)}, v{pa+1}
          v_lshlrev_b32 v{pa}, 3, v{pa}
          s_and_b32 {t0}, {S(sKEY)}, 63
          s_lshl_b32 {t0}, {t0}, 11
          s_add_u32 {t0}, {t0}, {S(sXB)}""")
    A.label("L_zpoll")
    for t in range(6):
        A(f"s_mov_b32 {t4}, {t*8192}\nbuffer_load_dwordx4 {vr(vY+4*t,4)}, v{pyb if t == 5 else pya}, {S(SWS,4)}, {t4} offen sc1")
    A(f"v_mov_b32 v{px}, 0")
    for t in range(6):
        y = vY + 4 * t
        A(f"s_waitcnt vmcnt({5-t})\nv_max3_u32 v{px}, v{px}, v{y}, v{y+1}\nv_max3_u32 v{px}, v{px}, v{y+2}, v{y+3}")
    A(f"v_cmp_eq_u32 vcc, -1, v{px}")
    spin()
    A("s_cbranch_vccnz L_zpoll")
    for t in range(6): A(mf(yacc, vr(psel, 4), vr(vY + 4 * t, 4), "0" if t == 0 else vr(yacc, 4)))
    A("s_waitcnt lgkmcnt(0)")
    for r in range(4): A(f"v_add_f32_dpp v{yacc+r}, v{yacc+r}, v{yacc+r} row_ror:8 row_mask:0xf bank_mask:0xf")
    for r in range(4): A(f"v_fma_f32 v{pb+r}, v{yacc+r}, v{psig}, v{pb+r}")
    A(f"""v_cvt_pk_bf16_f32 v{px}, v{pb}, v{pb+1}
          v_cvt_pk_bf16_f32 v{px+1}, v{pb+2}, v{pb+3}
          s_mov_b64 exec, 0x00FF00FF
          buffer_store_dwordx2 {vr(px,2)}, v{pa}, {S(SOUT,4)}, {t0} offen sc1
          s_mov_b64 exec, -1""")
    if O.get("dbgtime"):
        A(f"""s_mov_b64 exec, 1
              s_load_dwordx2 s[4:5], s[0:1], 72
              s_memrealtime s[92:93]
              s_memtime s[94:95]
              s_mov_b32 s6, 256
              s_waitcnt lgkmcnt(0)
              s_sub_u32 s92, s92, s96
              s_sub_u32 s94, s94, s98
              v_mov_b32 v2, s92
              v_mov_b32 v3, s94
              s_lshl_b32 s92, {S(sM)}, 3
              v_mov_b32 v4, s92
              buffer_store_dwordx2 v[2:3], v4, s[4:7], 0 offen""")
    if O.get("amp"):
        stamp("end")
        A(f"""s_memrealtime s[92:93]
              s_sub_u32 s90, s90, s96
              s_mul_i32 s90, s90, {O.get('ampk', 1)}
              s_min_u32 s90, s90, 20000
              s_waitcnt lgkmcnt(0)
              L_ampw:
              s_memrealtime s[94:95]
              s_waitcnt lgkmcnt(0)
              s_sub_u32 s94, s94, s92
              s_cmp_lt_u32 s94, s90
              s_cbranch_scc1 L_ampw""")
    A.label("L_exit")
    if O["stamps"]:
        stamp("exit")
        A(f"""s_mov_b64 exec, -1
              s_lshl_b32 {t0}, s2, 2
              s_add_u32 {t0}, {t0}, {S(sWV)}
              s_lshl_b32 {t0}, {t0}, 8
              s_add_u32 {t0}, {t0}, {DBG + 0x800000}
              v_lshlrev_b32 v254, 2, v{vL}
              buffer_store_dword v255, v254, {S(SWS,4)}, {t0} offen""")
    A.label("L_end")
    A("s_endpgm")

    lines, nn = fix_hazards(autowait(A.lines), verbose=O.get("verbose", False))
    kn = O["kname"]
    hdr = open("interleave_layers__sliding_local_dilated__moe_arch_mod__prompt.s.ref").read().split("; Override launch")[0]
    out = hdr + f"; @launch grid=(256,1,1) block=(256,1,1) lds={LDS_BYTES}\n"
    out += f'.amdgcn_target "amdgcn-amd-amdhsa--gfx950"\n.text\n.globl {kn}\n.p2align 8\n.type {kn},@function\n{kn}:\n'
    out += "".join((l + "\n") if l.endswith(":") else ("    " + l + "\n") for l in lines)
    out += f""".section .rodata,"a"
.p2align 6
.amdhsa_kernel {kn}
  .amdhsa_next_free_vgpr 512
  .amdhsa_next_free_sgpr 102
  .amdhsa_accum_offset 256
  .amdhsa_group_segment_fixed_size 0
  .amdhsa_kernarg_size 88
  .amdhsa_user_sgpr_count 2
  .amdhsa_user_sgpr_kernarg_segment_ptr 1
  .amdhsa_system_sgpr_workgroup_id_x 1
  .amdhsa_float_denorm_mode_32 3
.end_amdhsa_kernel
"""
    return out, dict(names=names, nops=nn, base=base, tmp=tmp, nstamps=nst[0], ninstr=len(lines))


if __name__ == "__main__":
    import json
    opt = json.loads(sys.argv[2]) if len(sys.argv) > 2 else {}
    s, info = gen(opt)
    open(sys.argv[1], "w").write(s)
    json.dump(info.pop("names"), open(sys.argv[1][:-2] + ".names.json", "w"))
    print(info)
```

```python
import re
class Asm:
    def __init__(self):
        self.lines = []
    def __call__(self, txt):
        for l in txt.split("\n"):
            l = l.strip()
            if l: self.lines.append(l)
    def label(self, n): self.lines.append(n + ":")

def regs_of(tok):
    tok = tok.strip()
    tok = tok.lstrip("-")
    if tok.startswith("abs("): tok = tok[4:-1]
    if tok.startswith("|"): tok = tok.strip("|")
    m = re.fullmatch(r"([vas])(\d+)", tok)
    if m: return [(m.group(1), int(m.group(2)))]
    m = re.fullmatch(r"([vas])\[(\d+):(\d+)\]", tok)
    if m: return [(m.group(1), i) for i in range(int(m.group(2)), int(m.group(3)) + 1)]
    if tok == "vcc": return [("s", 106), ("s", 107)]
    if tok == "vcc_lo": return [("s", 106)]
    if tok == "vcc_hi": return [("s", 107)]
    if tok == "exec": return [("s", 126), ("s", 127)]
    if tok == "exec_lo": return [("s", 126)]
    if tok == "exec_hi": return [("s", 127)]
    if tok == "m0": return [("s", 124)]
    return []

TRANS = ("v_exp_f32", "v_log_f32", "v_rcp_f32", "v_rsq_f32", "v_sqrt_f32", "v_sin_f32", "v_cos_f32")
class Ins:
    def __init__(self, text):
        self.text = text
        t = text.split(";")[0].strip()
        self.islabel = t.endswith(":")
        self.isdir = t.startswith(".")
        self.defs = set(); self.uses = set(); self.ab = set(); self.c = set(); self.data = set()
        self.mn = ""; self.kind = "other"; self.states = 1
        if self.islabel or self.isdir or not t:
            self.states = 0; self.kind = "none"; self.name = t[:-1] if self.islabel else None; return
        p = t.split(None, 1); self.mn = mn = p[0]
        rest = p[1] if len(p) > 1 else ""
        ops = []; cur = ""; d = 0
        for ch in rest:
            if ch in "[(": d += 1
            if ch in "])": d -= 1
            if ch == "," and d == 0: ops.append(cur.strip()); cur = ""
            else: cur += ch
        if cur.strip(): ops.append(cur.strip())
        mods = ""
        if ops:
            q = ops[-1].split(None, 1)
            ops[-1] = q[0]
            mods = q[1] if len(q) > 1 else ""
        self.ops = ops; self.mods = mods
        R = [regs_of(o) for o in ops]
        self.dpp = ("_dpp" in mn) or ("row_" in mods) or ("quad_perm" in mods)
        if mn == "s_nop": self.states = int(ops[0], 0) + 1; self.kind = "salu"; return
        if mn.startswith("v_mfma"):
            self.kind = "mfma"; self.defs = set(R[0]); self.ab = set(R[1] + R[2]); self.c = set(R[3]); self.uses = self.ab | self.c
            self.passes = 8 if "32x32" in mn else 4
            self.dtok = ops[0]; self.ctok = ops[3]
        elif mn.startswith("v_"):
            self.kind = "valu"
            if mn.startswith("v_permlane"):
                self.defs = set(R[0] + R[1]); self.uses = set(R[0] + R[1])
            elif mn.startswith("v_nop"):
                pass
            else:
                self.defs = set(R[0]); self.uses = set(sum(R[1:], []))
                if mn.startswith(("v_fmac", "v_dot2c", "v_writelane")) or self.dpp: self.uses |= set(R[0])
                if mn.startswith("v_cndmask") and len(ops) == 3: self.uses |= {("s", 106), ("s", 107)}
                if mn.startswith("v_cmpx"): self.defs |= {("s", 126), ("s", 127)}
            self.trans = mn.replace("_e32", "").replace("_e64", "") in TRANS
            self.dot = mn.startswith("v_dot")
        elif mn.startswith("ds_"):
            self.kind = "ds"
            if mn.startswith(("ds_read", "ds_bpermute", "ds_permute", "ds_swizzle")) or "_rtn" in mn:
                self.defs = set(R[0]); self.uses = set(sum(R[1:], []))
            else: self.uses = set(sum(R, []))
        elif mn.startswith(("buffer_", "global_")):
            self.kind = "vmem"
            islds = re.search(r"\blds\b", mods) is not None or "_lds_" in mn
            if "load" in mn and not islds:
                self.defs = set(R[0]); self.uses = set(sum(R[1:], []))
            else:
                self.uses = set(sum(R, []))
                if islds: self.uses.add(("s", 124)); self.ldsdma = True
                if "store" in mn and ("x4" in mn or "x3" in mn):
                    self.data = set(R[0]) if mn.startswith("buffer_") else set(R[1])
        elif mn.startswith("s_"):
            self.kind = "salu"
            if mn.startswith(("s_cmp", "s_cbranch", "s_branch", "s_waitcnt", "s_barrier", "s_endpgm", "s_sleep", "s_setprio", "s_bitcmp", "s_set_gpr")):
                self.uses = set(sum(R, []))
            else:
                self.defs = set(R[0]) if R else set(); self.uses = set(sum(R[1:], []))
                if "saveexec" in mn: self.defs |= {("s", 126), ("s", 127)}
        else:
            raise ValueError("unknown instr " + text)

def isv(r): return r[0] in "va"
def need(p, c):
    n = 0
    if p.kind == "valu":
        vd = {r for r in p.defs if isv(r)}; sd = {r for r in p.defs if r[0] == "s"}
        if c.kind == "mfma" and vd & c.uses: n = max(n, 3 if p.dot else 2)
        if c.kind == "mfma" and ("s", 126) in sd: n = max(n, 4)
        if c.kind == "valu":
            if c.mn.startswith("v_permlane") and vd & c.uses: n = max(n, 2)
            if c.dpp and vd & c.uses: n = max(n, 2)
            if c.dpp and ("s", 126) in sd: n = max(n, 5)
            if c.mn.startswith(("v_readlane", "v_readfirstlane")) and vd & c.uses: n = max(n, 1)
            if c.mn.startswith(("v_readlane", "v_readfirstlane", "v_writelane", "v_permlane")) and ("s", 126) in sd: n = max(n, 4)
            if p.trans and not c.trans and vd & c.uses: n = max(n, 1)
            if sd & c.uses: n = max(n, 4 if c.mn.startswith(("v_readlane", "v_writelane")) else 2)
            if p.dot and vd & (c.uses | c.defs):
                same = c.mn == p.mn
                if same:
                    srcab = set(sum([regs_of(o) for o in c.ops[1:3]], []))
                    if vd & srcab: n = max(n, 3)
                else: n = max(n, 3)
            if "sdwa" in p.mn and "dst_sel:DWORD" not in p.mods and vd & (c.uses | c.defs): n = max(n, 1)
        if c.kind in ("vmem", "ds") and p.dot and vd & c.uses: n = max(n, 3)
        if c.kind == "vmem" and sd & c.uses: n = max(n, 5)
    if p.kind == "mfma":
        big = {4: 8, 8: 12}[p.passes]
        if c.kind == "mfma":
            if p.defs & c.ab: n = max(n, big)
            if p.defs & c.c:
                if not (c.ctok == p.dtok and c.passes == p.passes): n = max(n, {4: 6, 8: 10}[p.passes])
            elif p.defs & c.defs: n = max(n, big)
        elif c.kind in ("valu", "vmem", "ds"):
            if p.defs & (c.uses | c.defs): n = max(n, big)
            if c.kind == "valu" and p.c & c.defs: n = max(n, {4: 3, 8: 7}[p.passes])
            if c.kind in ("vmem", "ds") and p.c & c.defs: n = max(n, {4: 3, 8: 7}[p.passes])
    if p.kind == "salu" and ("s", 124) in p.defs and getattr(c, "ldsdma", False): n = max(n, 1)
    if p.kind == "vmem" and p.data and (p.data & c.defs): n = max(n, 2 if c.kind == "valu" else 1)
    return n

def fix_hazards(lines, verbose=False):
    total = 0
    ins = [Ins(l) for l in lines]
    start = 0
    while True:
        lab = {x.name: i for i, x in enumerate(ins) if x.islabel}
        preds = [[] for _ in ins]
        for i, x in enumerate(ins):
            if i + 1 < len(ins) and x.mn not in ("s_branch", "s_endpgm", "s_setpc_b64"): preds[i + 1].append(i)
            if x.mn.startswith(("s_cbranch", "s_branch")):
                preds[lab[x.ops[0]]].append(i)
        fix = None
        for i in range(start, len(ins)):
            c = ins[i]
            if c.kind in ("none", "salu"): continue
            worst = 0; who = None
            stack = [(j, 0) for j in preds[i]]; seen = {}
            while stack:
                j, d = stack.pop()
                if d >= 12 or seen.get(j, 99) <= d: continue
                seen[j] = d
                p = ins[j]
                if p.kind != "none":
                    k = need(p, c) - d
                    if k > worst: worst = k; who = p
                for q in preds[j]: stack.append((q, d + p.states))
            if worst > 0:
                fix = (i, worst, who); break
        if not fix: break
        i, k, who = fix
        if verbose: print(f"hazard: +{k} before [{ins[i].text}] after [{who.text}]")
        ins.insert(i, Ins(f"s_nop {k-1}"))
        start = i
        total += k
    return [x.text for x in ins], total

class VM:
    def __init__(self): self.q = []
    def issue(self, tag, n=1): self.q += [tag] * n
    def cnt(self, *tags):
        last = max(i for i, t in enumerate(self.q) if t in tags)
        n = len(self.q) - 1 - last
        assert n <= 63
        return n
    def reset(self): self.q = []

class Alloc:
    def __init__(self, pfx, start, end): self.p = pfx; self.n = start; self.end = end
    def __call__(self, n=1, al=1):
        if n >= 2: al = max(al, 2)
        self.n = (self.n + al - 1) // al * al
        r = self.n; self.n += n
        assert self.n <= self.end, f"out of {self.p} regs"
        return r
def vr(b, n=1): return f"v{b}" if n == 1 else f"v[{b}:{b+n-1}]"
def ar(b, n=1): return f"a{b}" if n == 1 else f"a[{b}:{b+n-1}]"
def sr(b, n=1): return f"s{b}" if n == 1 else f"s[{b}:{b+n-1}]"

def autowait(lines):
    out = []; on = False; lq = []; vq = []; age = 10**9; pos = 0
    for l in lines:
        if l.startswith(";@aw_on"):
            on = True; lq = []; vq = []; p = l.split(); age = int(p[1]) if len(p) > 1 else 10**9; continue
        if l.startswith(";@aw_off"): on = False; continue
        if not on:
            assert not l.startswith(";@need"), l
            out.append(l); continue
        hint = l.startswith(";@need")
        if hint: l = "ds_nop " + l[7:]
        x = Ins(l); pos += 1
        if (x.islabel and x.name.startswith("L_join")) or (x.mn.startswith("s_cbranch") and x.ops[0].startswith("L_slow")):
            out.append(l); continue
        assert not x.islabel and not x.mn.startswith(("s_cbranch", "s_branch", "s_load")), l
        if x.mn == "s_waitcnt":
            m = re.search(r"lgkmcnt\((\d+)\)", l)
            if m: n = int(m.group(1)); del lq[:max(0, len(lq) - n)]
            m = re.search(r"vmcnt\((\d+)\)", l)
            if m: n = int(m.group(1)); del vq[:max(0, len(vq) - n)]
            out.append(l); continue
        touch = x.uses | x.defs
        w = []
        for q, nm, mx in ((vq, "vmcnt", 63), (lq, "lgkmcnt", 15)):
            hit = [i for i, d in enumerate(q) if d[0] & touch]
            if hit:
                n = min(len(q) - 1 - max(hit), mx)
                if q is lq:
                    while n > 0 and pos - q[len(q) - n][1] >= age: n -= 1
                w.append(f"{nm}({n})")
                del q[:len(q) - n]
        if w: out.append("s_waitcnt " + " ".join(w))
        if hint: continue
        out.append(l)
        if x.kind == "ds": lq.append((set(x.defs), pos))
        if x.kind == "vmem": vq.append((set(x.defs), pos))
    return out

def lines_of(txt):
    if isinstance(txt, str): txt = [txt]
    return [l.strip() for t in txt for l in t.split("\n") if l.strip()]

def wt(l):
    if l.endswith(":"): return 0
    return 2 if l.startswith(("v_exp", "v_rcp", "v_rsq", "v_dot2")) else 1

def weave(main, fill, start=0, cap=2, spread=False):
    gaps = []; head = []
    for l in main:
        if l.startswith("v_mfma"): gaps.append([l])
        elif gaps: gaps[-1].append(l)
        else: head.append(l)
    out = list(head); k = 0; debt = 0
    free_tot = sum(max(0, cap - sum(map(wt, g[1:]))) for g in gaps[start:])
    need = sum(wt(x) for f in fill for x in lines_of(f) if not x.startswith("v_mfma"))
    duty = min(1.0, need / max(1, free_tot) * 1.15) if spread else 1.0; credit = 0.0
    for n, g in enumerate(gaps):
        pre = [x for x in g[1:] if not x.startswith(";@need")]; post_ = [x for x in g[1:] if x.startswith(";@need")]
        out += [g[0]] + pre
        free = cap - sum(map(wt, g[1:])) - debt; debt = 0
        if n >= start:
            credit += max(0, free) * duty
            while k < len(fill):
                it = lines_of(fill[k])
                if it[0].startswith("v_mfma"):
                    out += it; k += 1; free = cap - len(post_); credit += free * duty; continue
                w = sum(map(wt, it))
                if credit < 1 or free <= 0 or (w > free and w <= cap and free < cap): break
                out += it; k += 1; free -= w; credit -= w
            if free < 0: debt = 0
        out += post_
    return out, fill[k:]

def interleave(lines, items, gap, first=0):
    ins = [Ins(l) for l in lines]
    n = len(ins); safe = [True] * (n + 1)
    lab = {x.name: i for i, x in enumerate(ins) if x.islabel}
    for i, x in enumerate(ins):
        if x.mn.startswith(("s_cbranch", "s_branch")):
            for k in range(i + 1, lab[x.ops[0]] + 1): safe[k] = False
    live = False
    for i in range(n - 1, -1, -1):
        x = ins[i]
        if x.mn.startswith(("s_cselect", "s_cbranch_scc", "s_addc", "s_subb")): live = True
        elif x.mn.startswith("s_") and not x.mn.startswith(("s_mov", "s_mul_i32", "s_waitcnt", "s_nop", "s_load", "s_getreg", "s_branch", "s_barrier")): live = False
        if live: safe[i] = False
    ex = False
    for i, x in enumerate(ins):
        if ex: safe[i] = False
        if ("s", 126) in x.defs or ("s", 127) in x.defs: ex = not x.text.replace(" ", "").endswith("exec,-1")
    out = []; k = 0; since = gap - first
    for i, l in enumerate(lines):
        if k < len(items) and since >= gap and safe[i]:
            out += lines_of(items[k]); k += 1; since = 0
        out.append(l); since += 1
    return out, items[k:]
```

```python
import sys, os
sys.path.insert(0, os.path.dirname(os.path.abspath(__file__)))
from asmfw import *

KNAME = "interleave_layers__sliding_local_dilated__moe_arch_mod__prompt_kernel"

XSLOT, HST, CAND, SENT, LOC, DBG = 0x10000, 0x20000, 0x30000, 0x80000, 0x200000, 0xA00000
S_HROW, S_CROW, S_Y = 0, 8192, 10240
OBUF, STATS, FLAGS, X1BUF = 0, 0x10000, 0x12000, 0x20000
OOB = 0x7FFF0000
XM, XH, WB, TB = 0, 65536, 73728, 147456
T_NM, T_SC, T_RS = TB + 64, TB + 384, TB + 704
T_KEY, T_PST, T_FFN, T_ROW = TB + 1024 + 16, TB + 1024 + 64, TB + 8192, TB + 9216
LDS_BYTES = 163840
PH_X, PH_O1, PH_S1, PH_X1, PH_O2, PH_S2 = 0, 1, 2, 3, 4, 5
EPS = 0x3727C5AC
NINF = 0xFF800000


def gen(opt=None):
    O = dict(stamps=0, dump=0, force_slow=0, touch=1, xpol="", ramp=3, ahead=5, fl0=0, pf_step=-1, xw_step=1, xs_step=9,
             lf_step=4, pw_step=10, ft_step=10, fpol="", pwpol="", wo_defer=4, nup=6, kname=KNAME)
    O.update(opt or {})
    A = Asm(); vm = VM()
    D = 6
    WS_SIZE = 0x2000000 if (O["dump"] or O["stamps"]) else DBG
    SX, SW, SWO, SWS, SOUT, SWG, SWU, SWD, SWR, SL = 4, 8, 12, 16, 20, 24, 28, 32, 36, 40
    sa = Alloc("s", 44, 102)
    sG, sM, sS, sWV, sC, sTAG, sFAST, sF, sPREV, sSPIN, sSUMW, sLAY = [sa() for _ in range(12)]
    sROT = sa(8)
    sT = sa(8, 2)
    sMA, sMB, sMV = sa(2), sa(2), sa(2)
    sR, sW14, sXB, sW3K, sKEY, sRT, sI, sRB, sW10, sPB, sPS, sHOK = [sa() for _ in range(12)]
    sDM = 3
    sST = sa(4, 2) if O["stamps"] else None
    t0, t1, t2, t3, t4, t5 = [f"s{sT+i}" for i in range(6)]
    S = lambda r, n=1: sr(r, n)
    va = Alloc("v", 1, 256)
    vL = 0
    vI, vGq = va(), va()
    vL16 = va()
    vA, vH = va(2), va(2)
    vWO = va(4)
    vOST, vOLD, vXST, vSTA, vSTL = va(), va(), va(), va(), va()
    vTI, vTG = va(), va()
    vAL = va(2)
    vMP, vMC, vMP1 = va(4), va(4), va(4)
    vPM = va(2)
    vONE = va(4)
    vCSQ, vCSK, vCSV = va(4), va(4), va(2)
    vWR = va(8)
    vFG = va(64)
    vP = va(0, 4)
    base = va.n
    accQ = [base + 12 * t for t in range(5)]; accK = [x + 4 for x in accQ]; accV = [x + 8 for x in accQ]
    gOWN, gSUM, gHAL = base + 60, base + 64, base + 68
    tmp = base + 72
    assert tmp + 56 <= 256, tmp
    vXD, vXD2, vWD, vOD, vWT, vSO = vFG, vFG + 1, vFG + 2, vFG + 3, vFG + 4, vFG + 6
    vXH, vWD2, vOD2, vFT = vFG + 5, vFG + 14, vFG + 15, vFG + 16
    vXS = vFG + 8
    aW = lambda ks, seg: 12 * ks + 4 * seg
    aX = lambda buf, t: 192 + 24 * buf + 4 * t
    aWDN = 224
    nst = [0]
    lab = [0]
    def newlab(n):
        lab[0] += 1; return f"L_{n}_{lab[0]}"
    names = []
    def stamp(name="?"):
        if O.get("amp") and O["amp"][0] == name:
            l_ = newlab("amp")
            A(f"s_cmp_eq_u32 {S(sLAY)}, {O['amp'][1]}\ns_cbranch_scc0 {l_}\ns_memrealtime s[90:91]\ns_waitcnt lgkmcnt(0)\n{l_}:")
        if O["stamps"]:
            k = nst[0]; nst[0] += 1; names.append(name)
            assert k < 32
            A(f"s_memtime s[{sST}:{sST+1}]\ns_lshl_b32 s{sST+2}, {S(sLAY)}, 5\ns_add_u32 s{sST+2}, s{sST+2}, {k}\ns_mov_b32 m0, s{sST+2}")
            A(f"s_waitcnt lgkmcnt(0)\nv_writelane_b32 v255, s{sST}, m0")
    def spin():
        A(f"s_sub_u32 {S(sSPIN)}, {S(sSPIN)}, 1\ns_cbranch_scc1 L_exit")
    def poll(name, loads, tagregs, tag, sleep=0):
        A.label(name)
        for x in loads: A(x)
        A(f"s_sub_u32 {S(sSPIN)}, {S(sSPIN)}, 1\ns_cbranch_scc1 L_exit\ns_waitcnt vmcnt(0)")
        if len(tagregs) == 1: A(f"v_cmp_ne_u32 vcc, {tag}, v{tagregs[0]}")
        else: A(f"v_cmp_ne_u32 vcc, {tag}, v{tagregs[0]}\nv_cmp_ne_u32 s[{sT+6}:{sT+7}], {tag}, v{tagregs[1]}\ns_or_b64 vcc, vcc, s[{sT+6}:{sT+7}]")
        if sleep:
            d = newlab("pd")
            A(f"s_and_b64 exec, exec, vcc\ns_cbranch_scc0 {d}\ns_sleep {sleep}\ns_branch {name}\n{d}:")
        else: A(f"s_and_b64 exec, exec, vcc\ns_cbranch_scc1 {name}")
        A("s_mov_b64 exec, -1")
    cold = []
    def dual(instrs):
        a, b = newlab("slow"), newlab("join")
        cold.append(f"{a}:\n" + "\n".join(x.replace("@", "sc1") for x in instrs) + f"\ns_branch {b}")
        return f"s_cmp_eq_u32 {S(sFAST)}, 1\ns_cbranch_scc0 {a}\n" + "\n".join(x.replace("@", "") for x in instrs) + f"\n{b}:"
    def dual_store(instrs): A(dual(instrs))
    def dump(slot, reg, n, acc=False):
        if O["dump"] != slot: return
        assert n <= 16
        t0, t1 = f"s{sT+6}", f"s{sT+7}"
        A(f"s_lshl_b32 {t0}, s2, 2\ns_add_u32 {t0}, {t0}, {S(sWV)}\ns_lshl_b32 {t0}, {t0}, 12\ns_lshl_b32 {t1}, {S(sLAY)}, 22\ns_add_u32 {t0}, {t0}, {t1}\ns_add_u32 {t0}, {t0}, {DBG}")
        A(f"v_lshlrev_b32 v254, 2, v{vL}")
        A("s_nop 7\ns_nop 7")
        for r in range(n):
            A(f"buffer_store_dword {'a' if acc else 'v'}{reg+r}, v254, {S(SWS,4)}, {t0} offen offset:{256*r}")
        A("s_waitcnt vmcnt(0)")

    if O.get("dbgtime") or O.get("amp"): A("s_memrealtime s[96:97]\ns_memtime s[98:99]")
    A(f"s_cmp_ge_u32 s2, 256\ns_cbranch_scc1 L_end")
    A(f"""s_load_dwordx2 {S(SX,2)}, s[0:1], 0
          s_load_dwordx2 {S(SW,2)}, s[0:1], 8
          s_load_dwordx2 {S(SWS,2)}, s[0:1], 80
          s_load_dwordx2 {S(SWO,2)}, s[0:1], 16
          s_load_dwordx2 {S(SWR,2)}, s[0:1], 32""")
    vT0 = vFG + 20
    A(f"""s_getpc_b64 s[{sT}:{sT+1}]
          L_pc:
          s_lshr_b32 {t2}, s2, 3
          v_and_b32 v{tmp}, 7, v0
          v_lshl_add_u32 v{tmp}, v{tmp}, 5, {t2}
          v_lshlrev_b32 v{tmp}, 7, v{tmp}
          v_min_u32 v{tmp}, L_last-L_pc, v{tmp}
          s_mov_b64 exec, 0xFF
          global_load_dword v{tmp+8}, v{tmp}, s[{sT}:{sT+1}]
          s_mov_b64 exec, -1""")
    vm.issue("code")
    A(f"""v_lshrrev_b32 v{tmp}, 6, v0
          v_min_u32 v{vT0}, 1, v0
          v_and_b32 v{vL}, 63, v0
          s_and_b32 {S(sG)}, s2, 7
          v_readfirstlane_b32 {S(sWV)}, v{tmp}
          s_bfe_u32 {S(sM)}, s2, 0x30003
          s_lshr_b32 {S(sS)}, s2, 6
          s_mov_b32 {S(sLAY)}, 0
          s_add_u32 {S(sR)}, {S(sG)}, {S(sM)}
          s_and_b32 {S(sR)}, {S(sR)}, 7
          s_lshl_b32 s{sROT}, {S(sR)}, 11""")
    if O["stamps"]: A("v_mov_b32 v255, 0")
    for r, n in ((SX, 2097152), (SW, 1572864), (SWR, 1024)):
        A(f"s_mov_b32 s{r+2}, {n}\ns_mov_b32 s{r+3}, 0x20000")
    A(f"""s_lshr_b32 {t0}, {S(sG)}, 1
          s_lshl_b32 {t0}, {t0}, 2
          s_add_u32 {t0}, {t0}, {S(sS)}
          s_lshl_b32 {t0}, {t0}, 17
          s_and_b32 {t1}, {S(sG)}, 1
          s_lshl_b32 {t1}, {t1}, 10
          s_add_u32 {S(sXB)}, {t0}, {t1}
          s_lshl_b32 {t1}, {S(sWV)}, 15
          s_add_u32 {t1}, {t1}, {S(sXB)}
          s_sub_u32 {t2}, {S(sXB)}, 16384
          s_cselect_b32 {t2}, {OOB}, {t2}
          s_mul_i32 {S(sW3K)}, {S(sWV)}, 3072
          s_lshl_b32 {S(sW14)}, {S(sWV)}, 14
          s_lshl_b32 {S(sW10)}, {S(sWV)}, 10""")
    A(f"""v_lshrrev_b32 v{tmp}, 3, v{vL}
          v_and_b32 v{tmp+1}, 7, v{vL}
          v_and_b32 v{tmp+2}, 6, v{tmp}
          v_xor_b32 v{tmp+2}, v{tmp+2}, v{tmp+1}
          v_lshlrev_b32 v{tmp+2}, 4, v{tmp+2}
          v_lshl_add_u32 v{tmp+2}, v{tmp}, 11, v{tmp+2}
          v_add_u32 v{vXD}, {t1}, v{tmp+2}
          v_add_u32 v{vXH}, {t2}, v{tmp+2}
          v_add_u32 v{vXD2}, {16384-1024}, v{vXD}""")
    A(f"""v_and_b32 v{tmp+2}, 2, v{tmp}
          v_xor_b32 v{tmp+2}, v{tmp+2}, v{tmp+1}
          s_and_b32 {t0}, {S(sWV)}, 1
          s_lshl_b32 {t0}, {t0}, 2
          v_xor_b32 v{tmp+2}, {t0}, v{tmp+2}
          s_lshl_b32 {t1}, {S(sM)}, 7
          v_lshl_add_u32 v{tmp+2}, v{tmp+2}, 4, {t1}
          s_lshl_b32 {t0}, {S(sWV)}, 3
          v_add_u32 v{tmp+3}, {t0}, v{tmp}
          v_lshl_add_u32 v{vOD}, v{tmp+3}, 10, v{tmp+2}
          v_mul_u32_u24 v{tmp+3}, 3072, v{tmp+3}
          v_add_u32 v{vWD}, v{tmp+3}, v{tmp+2}
          v_add_u32 v{vWD2}, 98304, v{vWD}""")
    A(f"""s_add_u32 {t3}, {S(sWV)}, {S(sR)}
          s_and_b32 {t3}, {t3}, 7
          s_lshl_b32 {S(sPB)}, {t3}, 7""")
    gA, gH, gP, gI = tmp + 20, tmp + 21, tmp + 22, tmp + 23
    A(f"""v_and_b32 v{vI}, 15, v{vL}
          v_lshrrev_b32 v{vGq}, 4, v{vL}
          v_lshlrev_b32 v{vL16}, 4, v{vL}
          v_and_b32 v{gA}, 1, v{vGq}
          v_lshrrev_b32 v{gH}, 1, v{vGq}
          v_lshl_add_u32 v{gP}, v{gA}, 1, v{gH}
          v_lshl_add_u32 v{tmp+3}, v{gP}, 4, {t1}""")
    dm = f"s{sDM}"
    def dma_x(lp):
        return [(f"s_add_u32 m0, {S(sW14)}, {lp*2048}\ns_lshr_b32 {dm}, s{sROT+lp}, 4\nbuffer_load_dwordx4 v{vXD}, {S(SX,4)}, {dm} offen {O['xpol']} lds", f"c{2*lp}"),
                (f"buffer_load_dwordx4 v{vXD2}, {S(SX,4)}, {dm} offen offset:1024 {O['xpol']} lds", f"c{2*lp}")]
    def dma_w(ks):
        L = []
        for seg in range(3):
            pre = f"s_add_u32 m0, {S(sW3K)}, {WB + (ks % D) * 12288}\ns_mul_i32 {dm}, s{sROT+(ks>>1)}, 96\n" if seg == 0 else ""
            L.append((pre + f"buffer_load_dwordx4 v{vWD2 if ks & 1 else vWD}, {S(SW,4)}, {dm} offen offset:{seg*1024} lds", f"c{ks}"))
        return L
    def dma_wo(sl):
        L = []
        for t in range(3):
            o = 12 * sl + 4 * t
            if o >= 64: continue
            L.append((f"s_add_u32 m0, {S(sW10)}, {WB + o*1024}\ns_lshl_b32 {dm}, s{sROT+(o>>3)}, 5\nbuffer_load_dwordx4 v{vOD2 if o & 4 else vOD}, {S(SWO,4)}, {dm} offen lds", "wo"))
        return L
    def dma_h(k):
        return [(f"s_add_u32 m0, {S(sW10)}, {XH + k*4096}\ns_xor_b32 {dm}, {S(sPB)}, {k*512}\nbuffer_load_dwordx4 v{vXH}, {S(SX,4)}, {dm} offen lds", f"c{8*k}")]
    def chunk(j):
        if j >= 16: return dma_wo(j % D)
        return (dma_h(1) if j == 7 else []) + (dma_x(7) if j == 11 else []) + (dma_x(j // 2) if j % 2 == 0 and j < 14 else []) + dma_w(j)
    def put(L):
        for x, g in L: A(x); vm.issue(g)
    A(f"s_waitcnt lgkmcnt(0)")
    stamp("kernarg")
    tv, pv = tmp + 4, tmp + 16
    first = chunk(0) + dma_h(0) + chunk(1) + [
        (f"buffer_load_dwordx4 {vr(tmp+12,4)}, v{vL16}, {S(SWR,4)}, 0 offen", "wr"),
        (f"buffer_load_dwordx4 {vr(vWR,4)}, v{tmp+3}, {S(SWR,4)}, 0 offen\nbuffer_load_dwordx4 {vr(vWR+4,4)}, v{tmp+3}, {S(SWR,4)}, 0 offen offset:64", "wr")]
    B = Asm()
    B(f"""s_load_dword {S(sTAG)}, {S(SWS,2)}, 0
          s_load_dwordx2 {S(SOUT,2)}, s[0:1], 64
          s_load_dwordx2 {S(SWG,2)}, s[0:1], 40
          s_load_dwordx2 {S(SWU,2)}, s[0:1], 48
          s_load_dwordx2 {S(SWD,2)}, s[0:1], 56""")
    for p in range(1, 8): B(f"s_add_u32 s{sROT+p}, s{sROT+p-1}, 2048\ns_and_b32 s{sROT+p}, s{sROT+p}, 16383")
    for r, n in ((SWS, WS_SIZE), (SWO, 524288), (SL, 0x30000), (SOUT, 2097152), (SWG, 1409024), (SWU, 1409024), (SWD, 1409024)):
        B(f"s_mov_b32 s{r+2}, {n}\ns_mov_b32 s{r+3}, 0x20000")
    B(f"""s_lshr_b32 {t0}, s2, 3
          s_lshl_b32 {t0}, {t0}, 2
          s_add_u32 {t0}, {t0}, {S(sWV)}
          s_mul_i32 {t0}, {t0}, 12288
          s_add_u32 {t0}, {t0}, 384
          v_lshl_add_u32 v{tv}, v{vL}, 10, {t0}
          s_lshl_b32 {t0}, s2, 11
          s_lshl_b32 {t1}, {S(sWV)}, 9
          s_add_u32 {t0}, {t0}, {t1}
          v_lshl_add_u32 v{tv+1}, v{vL}, 7, {t0}""")
    B(f"""s_lshl_b32 {S(sC)}, {S(sG)}, 2
          s_add_u32 {S(sC)}, {S(sC)}, {S(sS)}
          s_lshl_b32 {t0}, {S(sC)}, 18
          s_add_u32 {t0}, {t0}, {LOC}
          s_add_u32 s{SL}, s{SWS}, {t0}
          s_addc_u32 s{SL+1}, s{SWS+1}, 0
          s_lshl_b32 {t5}, {S(sM)}, 2
          s_add_u32 {t5}, {t5}, {S(sWV)}
          s_lshl_b32 {t0}, {S(sC)}, 5
          s_add_u32 {t0}, {t0}, {t5}
          s_lshl_b32 {t0}, {t0}, 9
          s_add_u32 {t0}, {t0}, {SENT}
          v_lshl_add_u32 v{tv+2}, v{gH}, 30, {t0}
          v_add_u32 v{tv+2}, v{tv+2}, v{vL16}
          v_mov_b32 v{pv}, -1
          v_mov_b32 v{pv+1}, -1
          v_mov_b32 v{pv+2}, -1
          v_mov_b32 v{pv+3}, -1""")
    u = tmp + 24
    B(f"""v_and_b32 v{u}, 7, v{vI}
          v_lshlrev_b32 v{u}, 7, v{u}
          v_and_b32 v{u+1}, 6, v{vI}
          v_xor_b32 v{u+1}, v{u+1}, v{vGq}
          v_lshl_add_u32 v{u}, v{u+1}, 4, v{u}
          v_xor_b32 v{u+1}, 64, v{u}
          v_lshrrev_b32 v{u+2}, 3, v{vI}
          v_cmp_gt_u32 vcc, 8, v{vI}
          v_lshl_add_u32 v{vA}, v{u+2}, 10, v{u}
          v_lshl_add_u32 v{vA+1}, v{u+2}, 10, v{u+1}
          v_add_u32 v{u}, {XH}, v{u}
          v_add_u32 v{u+1}, {XH}, v{u+1}
          v_mov_b32 v{u+3}, {TB}
          v_cndmask_b32 v{vH}, v{u}, v{u+3}, vcc
          v_cndmask_b32 v{vH+1}, v{u+1}, v{u+3}, vcc
          v_add_u32 v{vSO}, {S(sW14)}, v{vA}
          v_add_u32 v{vSO+1}, {S(sW14)}, v{vA+1}""")
    B(f"""v_lshrrev_b32 v{u}, 2, v{vI}
          v_and_b32 v{u+1}, 3, v{vI}
          v_lshlrev_b32 v{u+1}, 3, v{u+1}
          v_lshl_add_u32 v{u+1}, v{u}, 7, v{u+1}
          v_lshl_or_b32 v{u+2}, v{gA}, 1, v{u+2}
          v_lshl_add_u32 v{u+1}, v{u+2}, 5, v{u+1}
          v_add_u32 v{u+1}, {WB}, v{u+1}
          s_lshl_b32 {t0}, {S(sWV)}, 5
          v_xor_b32 v{vWT}, {t0}, v{u+1}
          v_mul_u32_u24 v{u}, 3072, v{vGq}
          v_add_u32 v{vWT}, v{vWT}, v{u}
          v_lshl_add_u32 v{vWO}, v{vGq}, 10, v{u+1}""")
    for r in range(4): B(f"v_mov_b32 v{vONE+r}, 0x3F803F80")
    B(f"""v_and_b32 v{u}, 7, v{vL}
          v_lshl_add_u32 v{u}, v{u}, 10, v{u+3}
          ds_write_b128 v{u}, {vr(vONE,4)}""")
    n1 = len(B.lines)
    B(f"""s_sub_u32 {t0}, {S(sC)}, 1
          s_sub_u32 {t1}, {S(sC)}, 5
          s_cmp_lt_u32 {S(sG)}, 2
          s_cselect_b32 {t1}, 255, {t1}
          s_cmp_eq_u32 {S(sS)}, 0
          s_cselect_b32 {S(sPREV)}, {t1}, {t0}
          s_mov_b32 {S(sSPIN)}, 400000
          s_mov_b32 s{sMA}, 0xAAAAAAAA
          s_mov_b32 s{sMA+1}, 0xAAAAAAAA
          s_mov_b32 s{sMB}, 0xCCCCCCCC
          s_mov_b32 s{sMB+1}, 0xCCCCCCCC
          s_mov_b32 s{sMV}, 0x00F0000F
          s_mov_b32 s{sMV+1}, 0xF0000F00""")
    B(f"""s_sub_u32 {t0}, {S(sM)}, 4
          s_lshl_b32 {t0}, {t0}, 2
          s_add_u32 {t0}, {t0}, {S(sS)}
          s_mul_i32 {t1}, {S(sG)}, 6
          s_add_u32 {t1}, {t1}, {t0}
          s_cmp_lt_u32 {t0}, 6
          s_cselect_b32 {S(sF)}, {t1}, 255""")
    vPW, vXW, vSF = vFG + 10, vFG + 22, vFG + 24
    B(f"""s_mov_b32 {S(sI)}, 32768
          s_min_u32 {t1}, {S(sPREV)}, {S(sC)}
          s_lshl_b32 {t0}, {S(sC)}, 3
          s_lshl_b32 {t1}, {t1}, 3
          s_sub_u32 {t1}, {t1}, 8
          v_mov_b32 v{u}, {t0}
          v_mov_b32 v{u+1}, {t1}
          v_cndmask_b32 v{u}, v{u+1}, v{u}, vcc
          v_add_lshl_u32 v{vPW+1}, v{u}, v{vI}, 7
          s_add_u32 {t0}, {t0}, {S(sM)}
          s_lshl_b32 {t0}, {t0}, 7
          v_lshl_add_u32 v{vT0}, v{vT0}, 30, {t0}
          s_sub_u32 {t0}, {S(sM)}, {S(sR)}
          s_and_b32 {t0}, {t0}, 7
          s_lshl_b32 {t0}, {t0}, 11
          s_add_u32 {S(sRB)}, {t0}, {S(sW14)}
          s_cmp_eq_u32 {S(sPREV)}, 255
          s_cselect_b32 {S(sPS)}, {NINF}, 0
          s_getreg_b32 {S(sFAST)}, hwreg(HW_REG_XCC_ID)
          s_and_b32 {S(sFAST)}, {S(sFAST)}, 15
          v_mov_b32 v{vXW+1}, {S(sFAST)}""")
    B(f"""s_waitcnt lgkmcnt(0)
          s_lshr_b32 {S(sTAG)}, {S(sTAG)}, 3
          s_mul_i32 {S(sTAG)}, {S(sTAG)}, 1664525
          s_add_u32 {S(sTAG)}, {S(sTAG)}, 1013904223
          s_lshl_b32 {S(sTAG)}, {S(sTAG)}, 3
          v_mov_b32 v{vXW}, {S(sTAG)}
          s_lshr_b32 {t0}, s2, 3
          s_cmp_ge_u32 {S(sWV)}, 2
          s_cbranch_scc1 L_ft2
          s_cmp_eq_u32 {S(sWV)}, 0
          s_cselect_b32 s{SWR}, s{SWG}, s{SWU}
          s_cselect_b32 s{SWR+1}, s{SWG+1}, s{SWU+1}
          s_mov_b32 s{SWR+2}, 1409024
          s_mul_i32 {t0}, {t0}, {16*2752}
          s_mul_i32 {t2}, {S(sG)}, 384
          s_add_u32 {t0}, {t0}, {t2}
          v_lshrrev_b32 v{vFT}, 2, v{vL}
          v_mul_u32_u24 v{vFT}, 2752, v{vFT}
          v_and_b32 v{u}, 3, v{vL}
          v_lshlrev_b32 v{u}, 7, v{u}
          v_min_u32 v{u}, 380, v{u}
          v_add3_u32 v{vFT}, v{vFT}, v{u}, {t0}
          s_branch L_ftd
          L_ft2:
          s_mul_i32 {t0}, {t0}, 6144
          s_mul_i32 {t2}, {S(sG)}, {192*1024}
          s_add_u32 {t0}, {t0}, {t2}
          s_add_u32 {t0}, {t0}, {S(sW3K)}
          s_sub_u32 {t0}, {t0}, 6144
          s_mov_b32 s{SWR}, s{SWD}
          s_mov_b32 s{SWR+1}, s{SWD+1}
          s_mov_b32 s{SWR+2}, 1409024
          v_min_u32 v{vFT}, 23, v{vL}
          v_lshl_add_u32 v{vFT}, v{vFT}, 7, {t0}
          L_ftd:""")
    B(f"""s_lshl_b32 {t1}, {t5}, 9
          s_lshl_b32 {t2}, {S(sM)}, 11
          s_add_u32 {t2}, {t2}, {S(sW14)}
          s_add_u32 {t2}, {t2}, {X1BUF}
          s_lshl_b32 {t3}, {S(sWV)}, 8
          s_add_u32 {t3}, {t3}, {STATS}
          s_lshl_b32 {t4}, {S(sM)}, 10
          s_lshl_b32 {S(sRT)}, {S(sM)}, 7
          s_add_u32 {S(sRT)}, {S(sRT)}, {FLAGS}
          s_lshl_b32 {t5}, {S(sWV)}, 6""")
    L1_, rest = interleave(B.lines[:n1], [x for x, g in first], O.get("gap", 8))
    assert not rest
    for x in L1_: A(x)
    for x, g in first: vm.issue(g, x.count("buffer_load"))
    if O["touch"]:
        A(f"""s_mov_b64 exec, 0xFFF
              buffer_load_dword v{tmp+8}, v{tv}, {S(SW,4)}, 0 offen
              s_mov_b64 exec, 0xF
              buffer_load_dword v{tmp+8}, v{tv+1}, {S(SWO,4)}, 0 offen
              s_mov_b64 exec, -1""")
        vm.issue("touch", 2)
    pfst = (f"buffer_store_dwordx4 {vr(pv,4)}, v{tv+2}, {S(SWS,4)}, 0 offen sc1", "pf")
    if O["pf_step"] < 0: put([pfst])
    for x in B.lines[n1:]: A(x)
    vRA = tmp + 52
    vTW = vFG + 18
    q = tmp
    FL = lines_of(f"""v_lshlrev_b32 v{gI}, 4, v{vI}
          v_lshl_add_u32 v{vOST}, v{gH}, 8, v{gI}
          v_lshl_add_u32 v{vOST}, v{gA}, 14, v{vOST}
          v_add_u32 v{vOST}, {t1}, v{vOST}
          v_add_u32 v{vOLD}, {S(sW14)}, v{vL16}
          v_lshl_add_u32 v{vXST}, v{gP}, 8, v{gI}
          v_add_u32 v{vXST}, {t2}, v{vXST}
          v_add_u32 v{vSTL}, {t3}, v{gI}
          v_add_u32 v{vSTA}, {t4}, v{vSTL}
          v_lshl_add_u32 v{vSTL}, v{vGq}, 10, v{vSTL}
          v_and_b32 v{vSF}, 112, v{gI}
          v_add_u32 v{vSF}, {S(sRT)}, v{vSF}
          v_cmp_eq_u32 vcc, 0, v{vGq}
          v_lshlrev_b32 v{vTI}, 2, v{vI}
          v_cndmask_b32 v{vSF}, v{vSF}, v{vSTA}, vcc
          v_add_u32 v{vTI}, {T_NM}, v{vTI}
          v_lshlrev_b32 v{vTG}, 4, v{vGq}
          v_add_u32 v{vTG}, {T_NM}, v{vTG}
          v_add_u32 v{vOD2}, 32768, v{vOD}
          v_add_u32 v{u}, {t5}, v{vTI}
          v_add_u32 v{u+1}, 2048, v{vTI}
          v_cndmask_b32 v{vTW}, v{u+1}, v{u}, {S(sMV,2)}
          v_cndmask_b32 v{vTW+1}, v{u+1}, v{vTI}, {S(sMV,2)}
          v_lshrrev_b32 v{u}, 3, v{vI}
          v_and_b32 v{u+1}, 7, v{vI}
          v_lshlrev_b32 v{u+1}, 7, v{u+1}
          v_lshl_add_u32 v{u}, v{u}, 10, v{u+1}
          v_and_b32 v{u+1}, 6, v{vI}
          v_lshl_add_u32 v{u}, v{u+1}, 4, v{u}
          v_lshl_add_u32 v{u}, v{vGq}, 3, v{u}
          v_add_u32 v{vRA}, {S(sRB)}, v{u}""")
    FL += [f"v_xor_b32 v{vRA+c}, {32*c}, v{vRA}" for c in range(1, 4)] + [f"v_xor_b32 v{vWO+c}, {32*c}, v{vWO}" for c in range(1, 4)]
    FL += lines_of(f"""v_lshlrev_b32 v{u}, 2, v{vGq}
          v_sub_u32 v{u}, v{u}, v{vI}
          v_mov_b32 v{u+1}, {NINF}""")
    for r in range(4):
        FL += lines_of(f"""v_cmp_le_i32 vcc, {9-r}, v{u}
              v_add_u32 v{u+2}, {r+7}, v{u}
              v_cndmask_b32 v{vMP+r}, v{u+1}, 0, vcc
              v_cmp_ge_u32 vcc, 7, v{u+2}
              v_or_b32 v{vMP1+r}, {S(sPS)}, v{vMP+r}
              v_cndmask_b32 v{vMC+r}, v{u+1}, 0, vcc""")
    FL += [f"v_mov_b32 v{u}, 0x0B0B0909"]
    for h in range(2): FL += [f"v_perm_b32 v{u+2}, v{vMP+2*h+1}, v{vMP+2*h}, v{u}", f"v_not_b32 v{vPM+h}, v{u+2}"]
    FL += [f"v_mov_b32 v{vAL}, 1.0", f"v_mov_b32 v{vAL+1}, 0", f"v_mov_b32 v{u}, 0"]
    FL += [f"v_dot2c_f32_bf16 v{u}, v{tmp+12+r}, v{vONE}" for r in range(4)]
    CM = sum(([f"v_cndmask_b32 v{vWR+r}, v{vONE}, v{vWR+r}, {S(sMA,2)}", f"v_cndmask_b32 v{vWR+r}, v{vWR+r}, 0, {S(sMB,2)}"] for r in range(8)), [])
    RD = [f"v_add_f32_dpp v{u}, v{u}, v{u} row_ror:{sh} row_mask:0xf bank_mask:0xf" for sh in (8, 4, 2, 1)]
    RD += [f"v_mov_b32 v{u+1}, v{u}", f"v_permlane32_swap_b32 v{u}, v{u+1}", f"v_add_f32 v{u}, v{u}, v{u+1}", f"v_mov_b32 v{u+1}, v{u}",
           f"v_permlane16_swap_b32 v{u}, v{u+1}", f"v_add_f32 v{u}, v{u}, v{u+1}", f"v_readfirstlane_b32 {S(sSUMW)}, v{u}"]
    for k in range(16): FL += [CM[k]] + RD[k:k + 1]

    def mf(d, a, b, c, shape="16x16x32"):
        return f"v_mfma_f32_{shape}_bf16 {vr(d,4)}, {a}, {b}, {c}"
    def diag(dst, g):
        return [f"v_cndmask_b32 v{g}, v{g}, v{g+1}, {S(sMA,2)}",
                f"v_cndmask_b32 v{g+2}, v{g+2}, v{g+3}, {S(sMA,2)}",
                f"v_cndmask_b32 v{dst}, v{g}, v{g+2}, {S(sMB,2)}"]
    def tbread(t, tb):
        return [f"ds_read2_b32 {vr(tb,2)}, v{vTI} offset0:{16*t} offset1:{80+16*t}",
                f"ds_read_b128 {vr(tb+2,4)}, v{vTG} offset:{64*t}",
                f"ds_read_b128 {vr(tb+6,4)}, v{vTG} offset:{320+64*t}"]
    def post(t, aq, ak, av, tb, dq, dk, dv, dc, pk):
        L = []; p = vr(tb, 2)
        if pk:
            for h in range(2):
                L.append(f"v_pk_fma_f32 {vr(ak+2*h,2)}, {vr(vCSK+2*h,2)}, {p}, {vr(ak+2*h,2)} op_sel_hi:[1,0,1]")
                if t: L.append(f"v_pk_fma_f32 {vr(aq+2*h,2)}, {vr(vCSQ+2*h,2)}, {p}, {vr(aq+2*h,2)} op_sel_hi:[1,0,1]")
            for h in range(2): L.append(f"v_pk_mul_f32 {vr(ak+2*h,2)}, {vr(ak+2*h,2)}, {p} op_sel:[0,1] op_sel_hi:[1,1]")
        else:
            for r in range(4):
                L.append(f"v_fmac_f32 v{ak+r}, v{vCSK+r}, v{tb}")
                if t: L.append(f"v_fmac_f32 v{aq+r}, v{vCSQ+r}, v{tb}")
            for r in range(4): L.append(f"v_mul_f32 v{ak+r}, v{ak+r}, v{tb+1}")
        for h in range(2):
            if t: L.append(f"v_cvt_pk_bf16_f32 v{dq+h}, v{aq+2*h}, v{aq+2*h+1}")
            L.append(f"v_cvt_pk_bf16_f32 v{dk+h}, v{ak+2*h}, v{ak+2*h+1}")
        if t: L.append(f"v_mul_f32 v{dc}, 0x3EB8AA3B, v{tb+1}")
        V = []
        if pk:
            for h in range(2): V.append(f"v_pk_fma_f32 {vr(av+2*h,2)}, {vr(tb+2+2*h,2)}, {vr(vCSV,2)}, {vr(av+2*h,2)} op_sel_hi:[1,0,1]")
            for h in range(2): V.append(f"v_pk_mul_f32 {vr(av+2*h,2)}, {vr(av+2*h,2)}, {vr(tb+6+2*h,2)}")
        else:
            for r in range(4): V.append(f"v_fmac_f32 v{av+r}, v{tb+2+r}, v{vCSV}")
            for r in range(4): V.append(f"v_mul_f32 v{av+r}, v{av+r}, v{tb+6+r}")
        for h in range(2): V.append(f"v_cvt_pk_bf16_f32 v{dv+h}, v{av+2*h}, v{av+2*h+1}")
        return L, V
    def attS(x): return [mf(x["T"] + 2, vr(x["Kp"], 2), vr(x["Q"], 2), vr(x["mp"], 4), "16x16x16"),
                         mf(x["T"] + 6, vr(x["Kc"], 2), vr(x["Q"], 2), vr(vMC, 4), "16x16x16")]
    def attM(x):
        T = x["T"]
        return [f"v_max_f32 v{T+2+r}, v{T+2+r}, v{T+6+r}" for r in range(4)] + \
               [f"v_max3_f32 v{T}, v{T+2}, v{T+3}, v{T+4}", f"v_max_f32 v{T}, v{T}, v{T+5}"]
    def attX2(a, b):
        a, b = a["T"], b["T"]
        return [f"v_permlane32_swap_b32 v{a}, v{b}", f"v_max_f32 v{a+1}, v{a}, v{b}", f"v_max_f32 v{b+1}, v{a}, v{b}",
                f"v_permlane16_swap_b32 v{a+1}, v{b+1}", f"v_max_f32 v{a}, v{a+1}, v{b+1}", f"v_max_f32 v{b}, v{a+1}, v{b+1}",
                f"v_permlane32_swap_b32 v{a}, v{b}"]
    def attX1(x):
        T = x["T"]
        return [f"v_mov_b32 v{T+1}, v{T}", f"v_permlane32_swap_b32 v{T}, v{T+1}", f"v_max_f32 v{T+6}, v{T}, v{T+1}", f"v_max_f32 v{T+7}, v{T}, v{T+1}",
                f"v_permlane16_swap_b32 v{T+6}, v{T+7}", f"v_max_f32 v{T}, v{T+6}, v{T+7}"]
    def attE(x, pk):
        T, c = x["T"], x["c"]; P = T + 6
        L = [f"v_mul_f32 v{T}, v{T}, v{c}"]
        if pk: L += [f"v_pk_fma_f32 {vr(T+2+2*h,2)}, {vr(T+2+2*h,2)}, {vr(c & ~1,2)}, {vr(T,2)} op_sel:[0,{c&1},0] op_sel_hi:[1,{c&1},0] neg_lo:[0,0,1] neg_hi:[0,0,1]" for h in range(2)]
        else: L += [f"v_fma_f32 v{T+2+r}, v{T+2+r}, v{c}, -v{T}" for r in range(4)]
        L += [f"v_exp_f32 v{T+2+r}, v{T+2+r}" for r in range(4)]
        L += [f"v_cvt_pk_bf16_f32 v{T}, v{T+2}, v{T+3}", f"v_cvt_pk_bf16_f32 v{T+1}, v{T+4}, v{T+5}",
              f"v_and_b32 v{P}, v{vPM}, v{T}", f"v_and_b32 v{P+1}, v{vPM+1}, v{T+1}",
              f"v_bfi_b32 v{P+2}, v{vPM}, 0, v{T}", f"v_bfi_b32 v{P+3}, v{vPM+1}, 0, v{T+1}"]
        return L
    def attP(x): return [mf(x["R"], vr(vONE, 2), vr(x["T"], 2), "0", "16x16x16"), mf(x["O"], vr(x["V"], 4), vr(x["T"] + 6, 4), "0")]
    def attF(x, dst, pk):
        Or, R = x["O"], x["R"]
        L = [f"v_rcp_f32 v{R}, v{R}"]
        if pk: L += [f"v_pk_mul_f32 {vr(Or+2*h,2)}, {vr(Or+2*h,2)}, {vr(R,2)} op_sel_hi:[1,0]" for h in range(2)]
        else: L += [f"v_mul_f32 v{Or+r}, v{Or+r}, v{R}" for r in range(4)]
        return L + [f"v_cvt_pk_bf16_f32 v{dst+h}, v{Or+2*h}, v{Or+2*h+1}" for h in range(2)]
    def zipl(*Ls):
        out = []
        for k in range(max(map(len, Ls))):
            for L in Ls:
                if k < len(L): out.append(L[k])
        return out
    def swaps(d): return [f"v_permlane16_swap_b32 v{d+h}, v{d+2+h}" for h in range(2)]

    aE = lambda b, j: 240 + 8 * b + 4 * j
    def reads(ks):
        e = ks & 1; b = ks & 1; L = []
        for seg in range(3):
            for hf in range(2):
                L.append(f"ds_read_b64_tr_b16 {ar(aW(ks,seg)+2*hf,2)}, v{vWT} offset:{(ks%D)*12288 + seg*1024 + hf*512}")
        X = [f"ds_read_b128 {ar(aX(b,0),4)}, v{vH+e} offset:{(ks>>1)*1024}"]
        for t in range(1, 5): X.append(f"ds_read_b128 {ar(aX(b,t),4)}, v{vA+e} offset:{(t-1)*16384 + (ks>>1)*2048}")
        if ks < 14: X.append(f"ds_read_b128 {ar(aX(b,5),4)}, v{vSO+e} offset:{(ks>>1)*2048}")
        if ks in (12, 13):
            X.append(f"ds_read_b128 {ar(aE(b,0),4)}, v{vSO+e} offset:{7*2048}")
            X.append(f"ds_read_b128 {ar(aE(b,1),4)}, v{vH+e} offset:{7*1024}")
        return X + L
    def mfmas(ks):
        b = ks & 1; L = []
        C = lambda d: "0" if ks == 0 else vr(d, 4)
        st = lambda xo, xh: [mf(gOWN, xo, xo, C(gOWN)), mf(gSUM, vr(vONE, 4), xo, C(gSUM)), mf(gHAL, xh, xh, C(gHAL))]
        if ks < 14: L += st(ar(aX(b, 5), 4), ar(aX(b, 0), 4))
        if ks in (12, 13): L += st(ar(aE(b, 0), 4), ar(aE(b, 1), 4))
        QK, V = [], []
        for t in range(5):
            x = ar(aX(b, t), 4)
            QK += [mf(accQ[t], ar(aW(ks, 0), 4), x, C(accQ[t])), mf(accK[t], ar(aW(ks, 1), 4), x, C(accK[t]))]
            V.append(mf(accV[t], x, ar(aW(ks, 2), 4), C(accV[t])))
        return L + QK + V
    tl = lambda t: tmp + 10 * t
    F14 = [f"v_mov_b32 v{q}, v{gHAL}", f"v_mov_b32 v{q+1}, v{gHAL}"] + diag(q + 2, gOWN) + [f"v_permlane32_swap_b32 v{q}, v{q+1}"] + diag(q + 3, gHAL)
    F14 += zipl(*[[f"v_mul_f32 v{d}, 0xBB000000, v{s1}", f"v_mul_f32 v{s2}, 0x3B000000, v{s2}", f"v_fma_f32 v{s2}, -v{d}, v{d}, v{s2}",
                   f"v_max_f32 v{s2}, 0, v{s2}", f"v_add_f32 v{s2}, {EPS}, v{s2}", f"v_rsq_f32 v{d+1}, v{s2}"]
                  for (s1, s2, d) in ((gSUM, q + 2, q + 4), (q, q + 3, q + 6))])
    F14 += [f"v_cmp_eq_u32 vcc, {S(sTAG)}, v{vXS}",
            f"ds_write2_b32 v{vTW}, v{q+4}, v{q+5} offset0:16 offset1:96", f"ds_write2_b32 v{vTW+1}, v{q+6}, v{q+7} offset0:0 offset1:80",
            f"v_cmp_eq_u32 s[{sT+6}:{sT+7}], {S(sFAST)}, v{vXS+1}",
            f"s_and_b32 {S(sHOK)}, vcc_lo, 0xFF00\ns_and_b32 {t0}, vcc_lo, s{sT+6}\ns_and_b32 {t0}, {t0}, 0xFF\ns_cmp_eq_u32 {t0}, 0xFF\ns_cselect_b32 {S(sFAST)}, {0 if O['force_slow'] else 1}, 0"]
    F15 = sum((tbread(t, tl(t)) for t in range(5)), [])
    F15 += sum(([f"v_mov_b32_dpp v{vCSK+r}, v{accK[0]+r} row_newbcast:0 row_mask:0xf bank_mask:0xf",
                 f"v_mov_b32_dpp v{vCSQ+r}, v{accQ[0]+r} row_newbcast:0 row_mask:0xf bank_mask:0xf"] for r in range(4)), [])
    for j in range(2, O["ramp"]): put(chunk(j))
    A(f"s_waitcnt vmcnt({vm.cnt('c0')}) lgkmcnt(0)\ns_barrier")
    stamp("c0_landed")
    for x in reads(0): A(x)
    nxt = O["ramp"]; last = 21 - O["wo_defer"]
    for ks in range(16):
        if ks < 15: waited = vm.cnt(f'c{ks+1}'); A(f"s_waitcnt vmcnt({waited}) lgkmcnt(0)")
        else: A("s_waitcnt lgkmcnt(0)")
        A("s_barrier")
        if O.get("amp") or (O.get("kst") and ks in O["kst"]): stamp(f"k{ks}")
        if ks == 14: assert vm.cnt("xs") >= vm.cnt("c15")
        if ks == 15: A(";@aw_on")
        M = mfmas(ks); R = reads(ks + 1) if ks < 15 else []
        Dm = []
        for _ in range(2):
            lim = ks + (O["ahead"] if nxt < 16 else D)
            if nxt <= min(lim, last): Dm += chunk(nxt); nxt += 1
        own = [(vOST, "0", ""), (vOST, S(sI), ""), (vXST, "0", ""), (vXST, "0", "offset:1024"), (vSF, "0", "")]
        lf = ks - O["lf_step"]
        if 0 <= lf < 3 and O["lf_step"] >= 0: Dm += [(f"buffer_store_dwordx4 {vr(pv,4)}, v{a_}, {S(SL,4)}, {b_} offen {c_} sc1", f"lf{lf}") for a_, b_, c_ in own[2*lf:2*lf+2]]
        lf = ks - O["pw_step"]
        if 0 <= lf < 3 and O["pw_step"] >= 0:
            assert O["lf_step"] < 0 or waited <= vm.cnt(f"lf{lf}")
            Dm += [(f"buffer_load_dword v{vPW+2}, v{a_}, {S(SL,4)}, {b_} offen {c_} {O['pwpol']}", "pw") for a_, b_, c_ in own[2*lf:2*lf+2]]
        if ks == O["pf_step"]: Dm.insert(0, pfst)
        if ks == O["xw_step"]:
            assert waited <= vm.cnt("pf")
            Dm.append((f"s_mov_b32 {t0}, {XSLOT}\nbuffer_store_dwordx2 {vr(vXW,2)}, v{vT0}, {S(SWS,4)}, {t0} offen sc1", "xw"))
        if ks == O["xs_step"]: Dm.insert(0, (f"buffer_load_dwordx2 {vr(vXS,2)}, v{vPW+1}, {S(SWS,4)}, {t0} offen sc1", "xs"))
        if ks == O["ft_step"]: Dm.append((f"buffer_load_dword v{vPW+2}, v{vFT}, {S(SWR,4)}, 0 offen {O['fpol']}", "ft"))
        if ks == O.get("ft2_step", -1): Dm.append((f"buffer_load_dword v{vPW+2}, v{vFT}, {S(SWR,4)}, 0 offen sc1", "ft"))
        F = {14: F14, 15: F15}.get(ks, [])
        G = [[] for _ in M]; head = []
        for k, (x, g_) in enumerate(Dm):
            p_ = int(k * (len(M) - 1.0) / len(Dm)) + (1 if len(Dm) < 9 else 0); ls = lines_of(x)
            (G[p_ - 1] if p_ else head).extend(ls[:-1]); G[p_].append(ls[-1]); vm.issue(g_)
        R = zipl([y for y in R if "b128" in y], [y for y in R if "b128" not in y]); ri = 0
        lastg = len(G) - O.get("rdgap", 5)
        for n_, g_ in enumerate(G[:lastg]):
            room = sum(1 for h_ in G[n_ + 1:lastg] if len(h_) < 2)
            while ri < len(R) and (len(g_) < 2 and (not any(y.startswith("ds_") for y in g_) or len(R) - ri > room) or n_ == lastg - 1): g_.append(R[ri]); ri += 1
        if ks < 15: G[-1] += [";@slot", ";@slot"]
        main = head + sum(([m_] + g_ for m_, g_ in zip(M, G)), [])
        if O["fl0"] <= ks < 12: F = FL
        W_, rest = weave([y for y in main], F)
        if F is FL: FL = rest; rest = FL if ks == 11 else []
        for x in W_ + rest:
            if x != ";@slot": A(x)
    late = []
    while nxt <= 21: late += [x for x, g in chunk(nxt)]; nxt += 1
    vV = gOWN
    X1 = {t: dict(Q=accQ[t], Kp=accK[t-1], Kc=accK[t], V=vV + 2 * (t - 1), c=accQ[t] + 2, mp=vMP1 if t == 1 else vMP,
                  T=tl(t), O=accV[t], R=accK[t]) for t in range(1, 5)}
    PL = [post(t, accQ[t], accK[t], accV[t], tl(t), accQ[t], accK[t], vV + 2 * t, accQ[t] + 2, True) for t in range(5)]
    L = PL[0][0] + [f"v_mov_b32 v{vCSV}, v{accV[0]}", f"v_mov_b32 v{vCSV+1}, v{accV[0]}"] + PL[1][0] + [f"v_permlane32_swap_b32 v{vCSV}, v{vCSV+1}"]
    L += PL[1][1] + attS(X1[1])
    for t in (2, 3, 4): L += PL[t][0] + PL[t][1] + attS(X1[t])
    L += PL[0][1]
    for t in (1, 2, 3, 4): L += attM(X1[t])
    L += zipl(attX2(X1[1], X1[2]), attX2(X1[3], X1[4]))
    E = [attE(X1[t], True) for t in (1, 2, 3, 4)]
    vO = accQ[0]
    L += zipl(E[0], E[1]) + E[2][:3] + attP(X1[1]) + attP(X1[2]) + zipl(E[2][3:], E[3]) + zipl(attF(X1[1], vO, True), attF(X1[2], vO + 2, True))[:2]
    L += attP(X1[3]) + attP(X1[4]) + zipl(attF(X1[1], vO, True), attF(X1[2], vO + 2, True))[2:]
    L += [f"s_mov_b32 {t1}, 32768"] + swaps(vO) + [dual([f"buffer_store_dwordx4 {vr(vO,4)}, v{vOST}, {S(SL,4)}, 0 offen @"])]
    L += zipl(attF(X1[3], vO + 4, True), attF(X1[4], vO + 6, True)) + swaps(vO + 4)
    L += [dual([f"buffer_store_dwordx4 {vr(vO+4,4)}, v{vOST}, {S(SL,4)}, {t1} offen @"])]
    if O["stamps"]: A(";@aw_off"); stamp("gemm1_end"); A(";@aw_on")
    gap = max(1, 150 // (len(late) + 1))
    for k, x in enumerate(L):
        A(x)
        if late and k % gap == gap - 1: A(late.pop(0))
    assert not late
    A(";@aw_off")

    A.label("L_oh")
    stamp("o_stored")
    vRX = tmp
    for c in range(4): A(f"ds_read_b64 {vr(vRX+2*c,2)}, v{vRA+c}")
    accP = tmp + 12
    vOF = tmp + 28
    NOR = 8 if not (O["stamps"] or O["dump"]) else 7
    vFA, vFV, vFP = tmp + 8, tmp + 9, tmp + 10
    A(f"""s_mov_b32 {t0}, {FLAGS}
          s_lshl_b32 {t1}, {S(sM)}, 7
          s_lshl_b32 {t2}, {S(sWV)}, 2
          s_add_u32 {t1}, {t1}, {t2}
          v_mov_b32 v{vFA}, {t1}
          s_mul_i32 {t2}, {S(sLAY)}, {PH_O2-PH_O1}
          s_add_u32 {t2}, {t2}, {S(sTAG)}
          s_add_u32 {t2}, {t2}, {PH_O1}
          v_mov_b32 v{vFV}, {t2}
          v_bfe_u32 v{vFP}, v{vL}, 2, 3
          v_and_b32 v{vFP+1}, 3, v{vL}
          v_lshlrev_b32 v{vFP+1}, 2, v{vFP+1}
          v_lshl_add_u32 v{vFP}, v{vFP}, 7, v{vFP+1}
          s_waitcnt lgkmcnt(0)""")
    for c in range(4):
        for h in range(2):
            s_ = vRX + 2 * c + h; d = accP + 4 * c + 2 * h
            A(f"v_lshlrev_b32 v{d}, 16, v{s_}\nv_and_b32 v{d+1}, 0xFFFF0000, v{s_}")
            A(f"v_pk_fma_f32 {vr(d,2)}, {vr(d,2)}, {vr(vAL,2)}, {vr(vAL,2)} op_sel:[0,0,1] op_sel_hi:[1,0,1]")
    A("s_waitcnt vmcnt(0)\ns_mov_b64 exec, 1")
    dual_store([f"buffer_store_dword v{vFV}, v{vFA}, {S(SL,4)}, {t0} offen @"])
    A("s_mov_b64 exec, -1\ns_barrier")
    if O.get("stop") == 1: A("s_branch L_exit")
    stamp("o_flagged")
    NP = 26
    def wof(f, n=4, off=0):
        k = f % NP
        return vr(base + 4 * k + off, n) if k < 18 else ar(192 + 4 * (k - 18) + off, n)
    def word(f): return [f"ds_read_b64_tr_b16 {wof(f,2,2*hf)}, v{vWO+(f&3)} offset:{(f>>2)*4096 + hf*512}" for hf in range(2)]
    for f in range(NP):
        for x in word(f): A(x)
    A("s_mov_b32 exec_hi, 0")
    poll("L_opoll", [f"buffer_load_dword v{vFP+1}, v{vFP}, {S(SL,4)}, {t0} offen sc1"], [vFP + 1], t2)
    stamp("o_seen")
    old = lambda ks: f"buffer_load_dwordx4 {vr(vOF+4*(ks%NOR),4)}, v{vOLD}, {S(SL,4)}, s{sROT+(ks>>1)} offen offset:{(ks&1)*1024} sc1"
    A(";@aw_on")
    NUP = O["nup"]
    for ks in range(NUP): A(old(ks))
    A("s_waitcnt lgkmcnt(0)")
    pend = []
    for f in range(64):
        ks, c = f >> 2, f & 3
        if c == 0: A(f";@need {vr(vOF + 4 * (ks % NOR), 4)}, " + ", ".join(wof(f + k) for k in range(4)))
        A(mf(accP + 4 * c, wof(f), vr(vOF + 4 * (ks % NOR), 4), vr(accP + 4 * c, 4)))
        if f + NP < 64: pend += word(f + NP)
        n = 2
        if c == 0 and ks + NUP < 16: A(old(ks + NUP)); n = O.get("p2a", 1)
        if c == 3: n = 1
        for _ in range(n):
            if pend: A(pend.pop(0))
    assert not pend and NUP < NOR
    A(";@aw_off")
    stamp("p2_end")
    vX = base
    gS, gG = tmp, tmp + 4
    A(f"s_add_u32 {t2}, {t2}, 1\ns_mov_b32 {t1}, 4096")
    for c in range(4):
        for h in range(2): A(f"v_cvt_pk_bf16_f32 v{vX+2*c+h}, v{accP+4*c+2*h}, v{accP+4*c+2*h+1}")
        if c & 1:
            if c == 3: A(mf(gG, vr(vX, 4), vr(vX, 4), "0")); A(mf(gS, vr(vWR, 4), vr(vX, 4), "0"))
            for x in swaps(vX + 2 * c - 2): A(x)
    A(mf(gG, vr(vX + 4, 4), vr(vX + 4, 4), vr(gG, 4))); A(mf(gS, vr(vWR + 4, 4), vr(vX + 4, 4), vr(gS, 4)))
    g0, g1 = tmp + 16, tmp + 20
    vU, vKA, vKB, vPI = tmp + 28, tmp + 29, tmp + 30, tmp + 26
    A(f"""s_lshl_b32 {t4}, {S(sC)}, 6
          s_lshl_b32 {t5}, {S(sWV)}, 4
          s_add_u32 {t4}, {t4}, {t5}
          v_add_u32 v{vU}, {t4}, v{vI}
          s_lshl_b32 {t4}, {S(sWV)}, 2
          s_add_u32 {t4}, {t4}, {T_KEY}
          v_mov_b32 v{vKA}, {t4}
          v_mov_b32 v{vKB}, {T_KEY}""")
    for x in diag(gS + 2, gG): A(x)
    A(f"v_mov_b32 v{gS+3}, {t2}\ns_mov_b64 exec, {S(sMV,2)}")
    dual_store([f"buffer_store_dwordx4 {vr(gS,4)}, v{vSTA}, {S(SL,4)}, 0 offen @"])
    A(f"s_mov_b64 exec, -1\ns_cmp_eq_u32 {S(sLAY)}, 0\ns_cbranch_scc0 L_nox1")
    dual_store([f"buffer_store_dwordx4 {vr(vX,4)}, v{vXST}, {S(SL,4)}, 0 offen @",
                f"buffer_store_dwordx4 {vr(vX+4,4)}, v{vXST}, {S(SL,4)}, 0 offen offset:1024 @"])
    vWDR = base + 24
    fE = lambda t, mat, par: vFG + 16 * t + 8 * mat + 4 * par
    vXA = tmp + 50
    A(f"""s_add_u32 {t4}, {S(sTAG)}, {PH_X1}
          v_mov_b32 v{vFV}, {t4}
          v_add_u32 v{vXA}, {X1BUF}, v{vL16}
          s_mul_i32 {t3}, {S(sWV)}, {128*2752}
          s_lshl_b32 {t5}, {S(sF)}, 6
          s_add_u32 {t3}, {t3}, {t5}
          v_lshrrev_b32 v{tmp+4}, 2, v{vL}
          v_mul_u32_u24 v{tmp+4}, 2752, v{tmp+4}
          v_and_b32 v{tmp+5}, 3, v{vL}
          v_and_b32 v{tmp+6}, 2, v{vGq}
          v_xor_b32 v{tmp+5}, v{tmp+5}, v{tmp+6}
          v_lshl_add_u32 v{tmp+4}, v{tmp+5}, 4, v{tmp+4}
          v_add_u32 v{tmp+4}, {t3}, v{tmp+4}
          s_lshl_b32 {t3}, {S(sWV)}, 8
          s_lshl_b32 {t5}, {S(sF)}, 15
          s_add_u32 {t3}, {t3}, {t5}
          v_lshlrev_b32 v{tmp+5}, 12, v{vGq}
          v_lshl_add_u32 v{tmp+5}, v{vI}, 4, v{tmp+5}
          v_add_u32 v{tmp+5}, {t3}, v{tmp+5}
          s_waitcnt vmcnt(0)
          s_mov_b64 exec, 1""")
    dual_store([f"buffer_store_dword v{vFV}, v{vFA}, {S(SL,4)}, {t0} offen offset:16 @"])
    A(f"s_mov_b64 exec, -1\ns_cmp_lt_u32 {S(sF)}, 43\ns_cbranch_scc0 L_nox1")
    for n in range(8):
        for mat, srd in ((0, SWG), (1, SWU)):
            A(f"s_add_u32 m0, {S(sW14)}, {mat*8192 + n*1024}\ns_mov_b32 {t3}, {n*16*2752}\nbuffer_load_dwordx4 v{tmp+4}, {S(srd,4)}, {t3} offen lds")
    A(f"s_mov_b32 {t5}, 16384")
    for e in range(8):
        A(f"buffer_load_dwordx4 {vr(vWDR+4*e,4)}, v{tmp+5}, {S(SWD,4)}, {t5 if e & 1 else 0} offen offset:{(e>>1)*1024}")
    A(f"""v_lshrrev_b32 v{tmp+4}, 2, v{vI}
          v_lshlrev_b32 v{tmp+4}, 6, v{tmp+4}
          v_lshl_add_u32 v{tmp+4}, v{vGq}, 9, v{tmp+4}
          v_and_b32 v{tmp+5}, 3, v{vI}
          v_lshl_add_u32 v{tmp+4}, v{tmp+5}, 3, v{tmp+4}
          v_and_b32 v{tmp+5}, 1, v{vGq}
          v_lshl_add_u32 v{tmp+4}, v{tmp+5}, 5, v{tmp+4}
          v_add_u32 v{tmp+4}, {S(sW14)}, v{tmp+4}
          v_xor_b32 v{tmp+5}, 32, v{tmp+4}
          s_waitcnt vmcnt(8)""")
    for t in range(4):
        for mat in range(2):
            for par in range(2):
                for hf in range(2):
                    A(f"ds_read_b64_tr_b16 {vr(fE(t,mat,par)+2*hf,2)}, v{tmp+4+par} offset:{mat*8192 + t*2048 + hf*256}")
    A.label("L_nox1")
    stamp("stats_out")
    A(f"""s_lshl_b32 {t3}, {S(sLAY)}, 5
          s_add_u32 {t3}, {t3}, {S(sC)}
          s_lshl_b32 {t5}, {t3}, 7
          s_add_u32 {t5}, {t5}, {CAND}
          s_lshl_b32 {t3}, {S(sC)}, 4
          s_add_u32 {t3}, {t3}, {S(sLAY)}
          s_lshl_b32 {t3}, {t3}, 10
          s_add_u32 {t3}, {t3}, {SENT + S_CROW}""")
    poll("L_spoll", [f"buffer_load_dwordx4 {vr(g0,4)}, v{vSTL}, {S(SL,4)}, 0 offen sc1",
                     f"buffer_load_dwordx4 {vr(g1,4)}, v{vSTL}, {S(SL,4)}, {t1} offen sc1"], [g0 + 3, g1 + 3], t2)
    stamp("stats_seen")
    def red3(a, b, c, d):
        A(f"""v_permlane32_swap_b32 v{a}, v{b}
              v_permlane32_swap_b32 v{c}, v{d}
              v_add_f32 v{a}, v{a}, v{b}
              v_add_f32 v{c}, v{c}, v{d}
              v_permlane16_swap_b32 v{a}, v{c}
              v_add_f32 v{b}, v{a}, v{c}
              v_add_f32 v{c}, v{a}, v{c}
              v_permlane16_swap_b32 v{b}, v{c}
              v_mov_b32 v{a}, v{b}
              v_permlane32_swap_b32 v{a}, v{b}""")
    A(f"v_pk_add_f32 {vr(g0,2)}, {vr(g0,2)}, {vr(g1,2)}\nv_add_f32 v{g0+3}, v{g0+2}, v{g1+2}\nv_add_f32 v{g0+2}, v{g0+2}, v{g1+2}")
    red3(g0, g0 + 1, g0 + 2, g0 + 3)
    nm, sc2, rs, var, vk = g1, g1 + 1, g1 + 2, g0 + 2, tmp + 27
    A(f"""v_mul_f32 v{nm}, 0xBB000000, v{g0}
          v_mul_f32 v{var}, 0x3B000000, v{var}
          v_fma_f32 v{var}, -v{nm}, v{nm}, v{var}
          v_max_f32 v{var}, 0, v{var}
          v_add_f32 v{rs}, {EPS}, v{var}
          v_rsq_f32 v{rs}, v{rs}
          v_fma_f32 v{vk}, v{nm}, {S(sSUMW)}, v{g0+1}
          v_mul_f32 v{vk}, v{vk}, v{rs}
          v_ashrrev_i32 v{g0+1}, 31, v{vk}
          v_or_b32 v{g0+1}, 0x80000000, v{g0+1}
          v_xor_b32 v{vk}, v{vk}, v{g0+1}
          v_and_b32 v{vk}, 0xFFFFF800, v{vk}
          v_or_b32 v{vk}, v{vk}, v{vU}
          v_add_f32 v{vAL}, 1.0, v{rs}
          v_mul_f32 v{vAL+1}, v{nm}, v{rs}
          v_max_u32_dpp v{g0}, v{vk}, v{vk} row_ror:8 row_mask:0xf bank_mask:0xf
          v_mul_f32 v{sc2}, v{vAL}, v{vAL}
          v_mov_b32 v{g0+1}, {EPS}
          v_max_u32_dpp v{g0}, v{g0}, v{g0} row_ror:4 row_mask:0xf bank_mask:0xf
          v_fma_f32 v{sc2}, v{var}, v{sc2}, v{g0+1}
          v_mov_b32 v{tmp+25}, {t2}
          v_max_u32_dpp v{g0}, v{g0}, v{g0} row_ror:2 row_mask:0xf bank_mask:0xf
          v_rsq_f32 v{sc2}, v{sc2}
          v_bfe_u32 v{vPI}, v{vXST}, 8, 2
          v_max_u32_dpp v{g0}, v{g0}, v{g0} row_ror:1 row_mask:0xf bank_mask:0xf
          ds_write_b32 v{vKA}, v{g0}
          buffer_load_dword v{vFP+1}, v{vFP}, {S(SL,4)}, {t0} offen offset:16 sc1
          v_mul_f32 v{sc2}, v{sc2}, v{vAL}
          s_add_u32 {t1}, {S(sM)}, {S(sWV)}
          s_lshl_b32 {t1}, {t1}, 26
          v_mov_b32 v{vU}, {t1}""")
    vXF = base + 8
    for d in range(4): A(f"v_lshlrev_b32 v{vXF+2*d}, 16, v{vX+d}\nv_and_b32 v{vXF+2*d+1}, 0xFFFF0000, v{vX+d}")
    A(f"""s_waitcnt lgkmcnt(0)
          s_barrier
          ds_read_b128 {vr(tmp+32,4)}, v{vKB}""")
    for d in range(4, 8): A(f"v_lshlrev_b32 v{vXF+2*d}, 16, v{vX+d}\nv_and_b32 v{vXF+2*d+1}, 0xFFFF0000, v{vX+d}")
    A(f"""v_lshlrev_b32 v{vPI}, 4, v{vPI}
          s_waitcnt lgkmcnt(0)
          v_max3_u32 v{tmp+24}, v{tmp+32}, v{tmp+33}, v{tmp+34}
          v_max_u32 v{tmp+24}, v{tmp+24}, v{tmp+35}
          s_mov_b64 exec, 1
          buffer_store_dwordx2 {vr(tmp+24,2)}, v{vU}, {S(SWS,4)}, {t5} offen sc1
          s_mov_b64 exec, -1""")
    stamp("cand_out")
    A(f"s_cmp_eq_u32 {S(sLAY)}, 0\ns_cbranch_scc0 L_final")

    sH0, sH1 = sW3K, sW10
    A(f"""s_lshl_b32 {t1}, {S(sWV)}, 1
          s_add_u32 {t1}, {t1}, {S(sR)}
          s_add_u32 {t5}, {t1}, 1
          s_and_b32 {t1}, {t1}, 7
          s_and_b32 {t5}, {t5}, 7
          s_lshl_b32 {S(sH0)}, {t1}, 10
          s_lshl_b32 {S(sH1)}, {t5}, 10
          s_lshl_b32 {S(sPB)}, {S(sWV)}, 12
          v_readfirstlane_b32 {S(sKEY)}, v{tmp+24}
          v_and_b32 v{tmp+13}, 112, v{vL16}
          s_waitcnt vmcnt(1)
          v_cmp_ne_u32 vcc, {t4}, v{vFP+1}
          s_cbranch_vccnz L_xslow
          L_xok:""")
    cold.append(f"""L_xslow:
          buffer_load_dword v{vFP+1}, v{vFP}, {S(SL,4)}, {t0} offen offset:16 sc1
          s_sub_u32 {S(sSPIN)}, {S(sSPIN)}, 1
          s_cbranch_scc1 L_exit
          s_waitcnt vmcnt(0)
          v_cmp_ne_u32 vcc, {t4}, v{vFP+1}
          s_cbranch_vccnz L_xslow
          s_branch L_xok""")
    stamp("x_seen")
    A(f"""s_bfe_u32 {t1}, {S(sKEY)}, 0x20004
          s_cmp_eq_u32 {t1}, {S(sWV)}
          s_cselect_b32 {t1}, 1, 99
          s_cmp_eq_u32 {S(sM)}, {t1}
          s_cbranch_scc1 L_pub1
          s_cmp_eq_u32 {S(sM)}, 2
          s_cbranch_scc1 L_pub2
          L_pubr:""")
    cold.append(f"""L_pub1:
          s_and_b32 {t4}, {S(sKEY)}, 15
          s_lshl_b32 {t5}, {t4}, 4
          s_add_u32 {t5}, {t5}, {S(sW14)}
          s_add_u32 {t5}, {t5}, {X1BUF}
          v_lshlrev_b32 v{tmp+4}, 8, v{vL}
          buffer_load_dwordx4 {vr(tmp+32,4)}, v{tmp+4}, {S(SL,4)}, {t5} offen sc1
          v_readlane_b32 {t5}, v{vAL+1}, {t4}
          v_readlane_b32 {t4}, v{rs}, {t4}
          s_branch L_pubr
          L_pub2:
          v_lshrrev_b32 v{tmp+4}, 3, v{vL}
          v_lshl_add_u32 v{tmp+4}, v{tmp+4}, 8, v{tmp+13}
          s_add_u32 {t5}, {S(sPB)}, {X1BUF + 49152 + 128}
          buffer_load_dwordx4 {vr(tmp+32,4)}, v{tmp+4}, {S(SL,4)}, {t5} offen sc1
          buffer_load_dwordx4 {vr(tmp+36,4)}, v{tmp+4}, {S(SL,4)}, {t5} offen offset:2048 sc1
          s_branch L_pubr""")
    def xdma(t):
        L = []
        for e, sh in enumerate((sH0, sH1)):
            L.append(f"s_add_u32 m0, {S(sPB)}, {(t-1)*16384 + e*2048}\ns_lshl1_add_u32 {dm}, {S(sh)}, {(t-1)*16384}\nbuffer_load_dwordx4 v{vXA}, {S(SL,4)}, {dm} offen sc1 lds")
            L.append(f"buffer_load_dwordx4 v{vXA}, {S(SL,4)}, {dm} offen offset:1024 sc1 lds")
        return L
    B = lines_of(f"""s_lshl_b32 {t2}, {S(sWV)}, 6
          v_add_u32 v{g0+1}, {t2}, v{vTI}
          ds_write2_b32 v{g0+1}, v{nm}, v{sc2} offset0:16 offset1:96
          ds_write_b32 v{g0+1}, v{rs} offset:{4*176}
          v_mov_b32 v{vA}, v{vL16}
          v_add_u32 v{vA+1}, 1024, v{vL16}
          v_lshl_add_u32 v{tmp+6}, v{vGq}, 7, v{tmp+13}
          v_cmp_gt_u32 vcc, 8, v{vI}
          v_add_u32 v{tmp+6}, {XH}, v{tmp+6}
          v_add_u32 v{tmp+7}, 512, v{tmp+6}
          v_cndmask_b32 v{vH}, v{tmp+6}, v{vH}, vcc
          v_cndmask_b32 v{vH+1}, v{tmp+7}, v{vH+1}, vcc""")
    L_, rest = interleave(B, xdma(1) + xdma(2), 2)
    for x in L_ + rest: A(x)
    A(f"""s_cmp_lt_u32 {S(sF)}, 43
          s_cbranch_scc1 L_wdp
          L_wdpr:
          s_waitcnt vmcnt(4) lgkmcnt(0)
          s_cmp_eq_u32 {S(sM)}, {t1}
          s_cbranch_scc1 L_pub3
          s_cmp_eq_u32 {S(sM)}, 2
          s_cbranch_scc1 L_pub4
          L_pubs:
          s_barrier""")
    wdp = f"s_mov_b32 {t4}, 0x05040100\ns_mov_b32 {t5}, 0x07060302\n"
    for n in range(8):
        for d in range(4):
            wdp += f"v_perm_b32 v{tmp+4+(d&1)}, v{vWDR+8*d+4+(n>>1)}, v{vWDR+8*d+(n>>1)}, {t5 if n & 1 else t4}\nv_accvgpr_write_b32 a{aWDN+4*n+d}, v{tmp+4+(d&1)}\n"
    cold.append("L_wdp:\n" + wdp + "s_branch L_wdpr")
    cold.append(f"L_pub3:\nv_mov_b32 v{tmp+4}, {t5}\n" + "".join(f"""v_lshlrev_b32 v{tmp+36}, 16, v{tmp+32+d}
              v_and_b32 v{tmp+37}, 0xFFFF0000, v{tmp+32+d}
              v_fma_f32 v{tmp+36}, v{tmp+36}, {t4}, v{tmp+4}
              v_fma_f32 v{tmp+37}, v{tmp+37}, {t4}, v{tmp+4}
              v_cvt_pk_bf16_f32 v{tmp+32+d}, v{tmp+36}, v{tmp+37}
              """ for d in range(4)) + f"""buffer_store_dwordx4 {vr(tmp+32,4)}, v{vL16}, {S(SWS,4)}, {t3} offen sc1
          s_branch L_pubs
          L_pub4:
          s_lshl_b32 {t4}, {S(sWV)}, 11
          s_add_u32 {t4}, {t4}, {t3}
          s_sub_u32 {t4}, {t4}, {S_CROW - S_HROW}
          buffer_store_dwordx4 {vr(tmp+32,4)}, v{vL16}, {S(SWS,4)}, {t4} offen sc1
          buffer_store_dwordx4 {vr(tmp+36,4)}, v{vL16}, {S(SWS,4)}, {t4} offen offset:1024 sc1
          s_cmp_eq_u32 {S(sWV)}, 3
          s_cbranch_scc0 L_pubs
          s_lshl_b32 {t4}, {S(sC)}, 7
          s_add_u32 {t4}, {t4}, {HST}
          s_mov_b64 exec, 0xFF00
          buffer_store_dwordx4 {vr(g1,4)}, v{tmp+13}, {S(SWS,4)}, {t4} offen sc1
          s_mov_b64 exec, -1
          s_branch L_pubs""")
    stamp("x1_landed")
    pQ = lambda t: base + 2 * (t - 1); pK = lambda t: base + 8 + 2 * t; pV = lambda t: base + 18 + 2 * t
    cS = lambda t: base + 28 + (t - 1)
    order = [1, 2, 3, 0, 4]
    aS = lambda t: base + 32 + 12 * (order.index(t) & 1)
    tB = lambda t: base + 56 + 10 * (order.index(t) & 1)
    TA, TBt, vO2, vHS, vHR = base + 76, base + 94, base + 112, base + 116, base + 120
    vHA, vHB, vO3 = base + 128, base + 129, base + 130
    NB, LA = 8, 6
    def tile_stream(tiles, rdf=None, acc=None, hasq=None):
        seq = [(t, ks) for t in tiles for ks in range(16)]
        fr = lambda n: 192 + 4 * (n % NB)
        def rd(n):
            t, ks = seq[n]
            if rdf: return rdf(fr(n), ks)
            if t == 0: return f"ds_read_b128 {ar(fr(n),4)}, v{vH+(ks&1)} offset:{(ks>>1)*1024}"
            return f"ds_read_b128 {ar(fr(n),4)}, v{vA+(ks&1)} offset:{(t-1)*16384 + (ks>>1)*2048}"
        out = {t: [] for t in tiles}
        out[tiles[0]] += [rd(n) for n in range(LA)]
        for n, (t, ks) in enumerate(seq):
            a = acc if acc else aS(t); x = ar(fr(n), 4); C = lambda d: "0" if ks == 0 else vr(d, 4)
            L = out[t]
            if n % 2 == 0: (out[seq[n-1][0]] if n else L).append(f";@need {x}, {ar(fr(n+1),4)}" if n else f";@need {x}")
            L.append(mf(a + 4, ar(aW(ks, 1), 4), x, C(a + 4)))
            if n + LA < len(seq): L.append(rd(n + LA))
            if t or hasq: L.append(mf(a, ar(aW(ks, 0), 4), x, C(a)))
            L.append(mf(a + 8, x, ar(aW(ks, 2), 4), C(a + 8)))
        return out
    def post2(t, pk): return post(t, aS(t), aS(t) + 4, aS(t) + 8, tB(t), pQ(t) if t else None, pK(t), pV(t), cS(t) if t else None, pk)
    def X2(t, T): return dict(Q=pQ(t), Kp=pK(t - 1), Kc=pK(t), V=pV(t - 1), c=cS(t), mp=vMP1 if t == 1 else vMP, T=T, O=T + 10, R=T + 14)
    bk = tmp
    def bpoll(name, sleep):
        A(f"""v_lshlrev_b32 v{bk+2}, 7, v{vL}
              s_lshl_b32 {t4}, {S(sLAY)}, 12
              s_add_u32 {t4}, {t4}, {CAND}
              s_mul_i32 {t5}, {S(sLAY)}, {PH_S2-PH_S1}
              s_add_u32 {t5}, {t5}, {S(sTAG)}
              s_add_u32 {t5}, {t5}, {PH_S1}
              s_mov_b32 exec_hi, 0""")
        poll(name, [f"buffer_load_dwordx2 {vr(bk,2)}, v{bk+2}, {S(SWS,4)}, {t4} offen sc1"], [bk + 1], t5, sleep)
        for sh in (8, 4, 2, 1): A(f"v_max_u32_dpp v{bk}, v{bk}, v{bk} row_ror:{sh} row_mask:0xf bank_mask:0xf")
        A(f"""v_readlane_b32 {t4}, v{bk}, 0
              v_readlane_b32 {t5}, v{bk}, 16
              s_max_u32 {S(sKEY)}, {t4}, {t5}""")
    xr = tmp + 4; fa = tmp + 20
    rowld = [f"buffer_load_dwordx4 {vr(xr+4*t,4)}, v{bk}, {S(SWS,4)}, {t4} offen offset:{64*t} sc1" for t in range(4)]
    A(f"s_cmp_lt_u32 {S(sF)}, 43\ns_cbranch_scc0 L_t1")
    A.label("L_ffn")
    bpoll("L_bpoll", 0)
    stamp("b_seen")
    A(f"""s_bfe_u32 {t4}, {S(sKEY)}, 0x50006
          s_lshl4_add_u32 {t4}, {t4}, {S(sLAY)}
          s_lshl2_add_u32 {t4}, {t4}, {S(sWV)}
          s_lshl_b32 {t4}, {t4}, 8
          s_add_u32 {t4}, {t4}, {SENT + S_CROW}
          v_lshlrev_b32 v{bk}, 4, v{vGq}""")
    for x in rowld: A(x)
    A(f"s_cmp_eq_u32 {S(sLAY)}, 0\ns_cbranch_scc0 L_rchk")
    A.label("L_t1")
    A(";@aw_on")
    def emit(wv_):
        for x in wv_[0] + wv_[1]: A(x)
    emit(weave(tile_stream([1])[1], lines_of(xdma(3) + xdma(4)), spread=True))
    A(";@aw_off")
    A(f"s_waitcnt vmcnt(0)\ns_cmp_lt_u32 {S(sF)}, 43\ns_cbranch_scc0 L_t2")
    A.label("L_rchk")
    A(f"v_mov_b32 v{bk+1}, 0\ns_waitcnt vmcnt(0)")
    for t in range(4): A(f"v_max3_u32 v{bk+1}, v{bk+1}, v{xr+4*t}, v{xr+4*t+1}\nv_max3_u32 v{bk+1}, v{bk+1}, v{xr+4*t+2}, v{xr+4*t+3}")
    A(f"v_cmp_eq_u32 vcc, -1, v{bk+1}\ns_cbranch_vccnz L_rretry")
    cold.append("L_rretry:\n" + "\n".join(rowld) + f"\ns_sub_u32 {S(sSPIN)}, {S(sSPIN)}, 1\ns_cbranch_scc1 L_exit\ns_branch L_rchk")
    stamp("row_in")
    for t in range(4):
        for k in range(4):
            A(mf(fa + 4 * k, vr(xr + 4 * t, 4), vr(fE(t, k >> 1, k & 1), 4), "0" if t == 0 else vr(fa + 4 * k, 4)))
    A(f"""s_lshl_b32 {t4}, {S(sWV)}, 8
          s_add_u32 {t4}, {t4}, {T_FFN}
          v_lshlrev_b32 v{bk}, 4, v{vI}
          v_add_u32 v{bk}, {t4}, v{bk}
          v_and_b32 v{bk+1}, 3, v{vI}
          v_lshl_add_u32 v{bk+1}, v{vGq}, 2, v{bk+1}
          v_lshlrev_b32 v{bk+1}, 4, v{bk+1}
          v_add_u32 v{bk+1}, {T_FFN}, v{bk+1}
          v_mov_b32 v{fa+1}, v{fa+4}
          v_mov_b32 v{fa+2}, v{fa+8}
          v_mov_b32 v{fa+3}, v{fa+12}
          s_mov_b64 exec, 0xFFFF
          ds_write_b128 v{bk}, {vr(fa,4)}
          s_mov_b64 exec, -1
          s_waitcnt lgkmcnt(0)
          s_barrier""")
    for w in range(4): A(f"ds_read_b128 {vr(xr+4*w,4)}, v{bk+1} offset:{256*w}")
    A(f"""s_and_b32 {t4}, {S(sF)}, 31
          s_lshl3_add_u32 {t4}, {t4}, {S(sLAY)}
          s_lshr_b32 {t5}, {S(sF)}, 5
          s_lshl1_add_u32 {t4}, {t4}, {t5}
          s_lshl2_add_u32 {t4}, {t4}, {S(sWV)}
          s_lshl_b32 {t4}, {t4}, 8
          s_add_u32 {t4}, {t4}, {SENT + S_Y}
          s_waitcnt lgkmcnt(0)""")
    for h in range(2):
        A(f"v_pk_add_f32 {vr(xr+2*h,2)}, {vr(xr+2*h,2)}, {vr(xr+4+2*h,2)}\nv_pk_add_f32 {vr(xr+8+2*h,2)}, {vr(xr+8+2*h,2)}, {vr(xr+12+2*h,2)}")
    for h in range(2): A(f"v_pk_add_f32 {vr(xr+2*h,2)}, {vr(xr+2*h,2)}, {vr(xr+8+2*h,2)}")
    A(f"""v_mul_f32 v{xr+4}, 0xBFB8AA3B, v{xr}
          v_mul_f32 v{xr+5}, 0xBFB8AA3B, v{xr+1}
          v_exp_f32 v{xr+4}, v{xr+4}
          v_exp_f32 v{xr+5}, v{xr+5}
          v_pk_mul_f32 {vr(xr,2)}, {vr(xr,2)}, {vr(xr+2,2)}
          v_add_f32 v{xr+4}, 1.0, v{xr+4}
          v_add_f32 v{xr+5}, 1.0, v{xr+5}
          v_rcp_f32 v{xr+4}, v{xr+4}
          v_rcp_f32 v{xr+5}, v{xr+5}
          s_nop 0
          v_pk_mul_f32 {vr(xr,2)}, {vr(xr,2)}, {vr(xr+4,2)}
          v_cvt_pk_bf16_f32 v{xr}, v{xr}, v{xr+1}""")
    for d in range(4): A(f"v_mov_b32_dpp v{xr+4+d}, v{xr} quad_perm:[{d},{d},{d},{d}] row_mask:0xf bank_mask:0xf")
    yo = tmp + 16
    for n in range(8): A(mf(yo + 4 * n, vr(xr + 4, 4), ar(aWDN + 4 * n, 4), "0"))
    for d in range(4): A(f"v_cvt_pk_bf16_f32 v{xr+d}, v{yo+8*d}, v{yo+8*d+4}")
    A(f"""s_mov_b64 exec, 0xFFFF
          buffer_store_dwordx4 {vr(xr,4)}, v{vL16}, {S(SWS,4)}, {t4} offen sc1
          s_mov_b64 exec, -1
          s_cmp_eq_u32 {S(sLAY)}, 0
          s_cbranch_scc0 L_ffn_done
          L_t2:
          s_barrier""")
    stamp("ffn_ret1")
    x2, x3, x4, x1 = X2(2, TA), X2(3, TBt), X2(4, TA), X2(1, TBt)
    hsld = f"buffer_load_dwordx4 {vr(vHS,4)}, v{vHA}, {S(SWS,4)}, 0 offen sc1"
    hrld = [f"buffer_load_dwordx4 {vr(vHR,4)}, v{vHB}, {S(SWS,4)}, {S(sH0)} offen sc1", f"buffer_load_dwordx4 {vr(vHR+4,4)}, v{vHB}, {S(SWS,4)}, {S(sH1)} offen sc1"]
    hset = [f"s_min_u32 {t4}, {S(sPREV)}, {S(sC)}\ns_lshl_b32 {t5}, {t4}, 7\ns_add_u32 {t5}, {t5}, {HST}",
            f"v_and_b32 v{vHA}, 112, v{vL16}", f"v_add_u32 v{vHA}, {t5}, v{vHA}",
            f"s_lshl_b32 {t4}, {t4}, 14\ns_add_u32 {t4}, {t4}, {SENT + S_HROW}", f"v_add_u32 v{vHB}, {t4}, v{vL16}",
            f"s_add_u32 {t5}, {S(sTAG)}, {PH_S1}\ns_mov_b32 {t1}, 16384",
            f"v_and_b32 v{vO3}, 1, v{vGq}", f"v_lshlrev_b32 v{vO3}, 16, v{vO3}", f"v_sub_u32 v{vO3}, v{vOST}, v{vO3}", f"v_add_u32 v{vO3}, 49152, v{vO3}",
            f"s_lshl_b32 {t4}, {S(sWV)}, 11\ns_add_u32 {t4}, {t4}, {XH}"]
    st = tile_stream([2, 3])
    p0, p1, p2, p3 = [post2(t, False) for t in (0, 1, 2, 3)]
    A(";@aw_on")
    emit(weave(st[2], tbread(1, tB(1)) + lines_of(hset) + p1[0] + p1[1] + tbread(2, tB(2))))
    W_, rest3 = weave(st[3], [hsld] + hrld + p2[0] + attS(x2) + p2[1] + tbread(3, tB(3)) + attM(x2) + attX1(x2) + attE(x2, False) + attP(x2), start=1)
    for x in W_: A(x)
    assert not any(y.startswith("ds_") for y in rest3)
    A("s_waitcnt lgkmcnt(0)\n;@aw_off")
    stamp("tiles_done")
    A(f"""s_cmp_eq_u32 {S(sPREV)}, 255
          s_cbranch_scc1 L_nohalo
          s_cmp_eq_u32 {S(sHOK)}, 0xFF00
          s_cbranch_scc0 L_hslow
          s_waitcnt vmcnt(0)
          v_cmp_ne_u32 vcc, {t5}, v{vHS+3}
          s_cbranch_vccnz L_hslow
          L_hchk:
          v_max3_u32 v{vHA}, v{vHR}, v{vHR+1}, v{vHR+2}
          v_max3_u32 v{vHA}, v{vHA}, v{vHR+3}, v{vHR+4}
          v_max3_u32 v{vHA}, v{vHA}, v{vHR+5}, v{vHR+6}
          v_max_u32 v{vHA}, v{vHA}, v{vHR+7}
          v_cmp_eq_u32 vcc, -1, v{vHA}
          v_add_u32 v{vHA}, {t4}, v{vL16}
          s_cbranch_vccnz L_hretry
          ds_write_b128 v{vHA}, {vr(vHR,4)}
          ds_write_b128 v{vHA}, {vr(vHR+4,4)} offset:1024
          ds_write2_b32 v{vTI}, v{vHS}, v{vHS+1} offset0:0 offset1:80
          ds_write_b32 v{vTI}, v{vHS+2} offset:{4*160}
          L_nohalo:""")
    pre0 = rest3 + p3[0]
    for x in pre0[:14]: A(x)
    A("s_waitcnt vmcnt(0) lgkmcnt(0)\ns_barrier")
    cold.append(f"""L_hslow:
          {hsld}
          s_sub_u32 {S(sSPIN)}, {S(sSPIN)}, 1
          s_cbranch_scc1 L_exit
          s_waitcnt vmcnt(0)
          v_cmp_ne_u32 vcc, {t5}, v{vHS+3}
          s_cbranch_vccnz L_hslow
          L_hretry:
          {hrld[0]}
          {hrld[1]}
          s_sub_u32 {S(sSPIN)}, {S(sSPIN)}, 1
          s_cbranch_scc1 L_exit
          s_waitcnt vmcnt(0)
          s_branch L_hchk""")
    stamp("halo_in")
    st = tile_stream([0, 4])
    b2 = vHS
    Bq = [f"v_and_b32 v{b2+2}, 31, v{vL}", f"v_lshlrev_b32 v{b2+2}, 7, v{b2+2}",
          f"s_mov_b32 {t4}, {CAND}\nbuffer_load_dwordx2 {vr(b2,2)}, v{b2+2}, {S(SWS,4)}, {t4} offen sc1"]
    Br = [f"v_cmp_ne_u32 s[{sT+6}:{sT+7}], {t5}, v{b2+1}"] + [f"v_max_u32_dpp v{b2}, v{b2}, v{b2} row_ror:{sh} row_mask:0xf bank_mask:0xf" for sh in (8, 4, 2, 1)]
    Br += [f"v_readlane_b32 {t2}, v{b2}, 0", f"v_readlane_b32 {t3}, v{b2}, 16"]
    RA = lines_of(f"""v_lshrrev_b32 v{vRA}, 1, v{vGq}
          v_lshlrev_b32 v{vRA}, 8, v{vRA}
          v_lshl_add_u32 v{vRA}, v{vI}, 4, v{vRA}
          v_and_b32 v{vRA+1}, 1, v{vGq}
          v_lshl_add_u32 v{vRA}, v{vRA+1}, 3, v{vRA}
          v_add_u32 v{vRA}, {S(sRB)}, v{vRA}""") + [f"v_add_u32 v{vRA+c}, {512*c}, v{vRA}" for c in range(1, 4)]
    A(";@aw_on")
    for x in st[0][:LA] + tbread(0, tB(0)) + pre0[14:24]: A(x)
    F = pre0[24:] + attS(x3) + p3[1]; n0 = len(F)
    F += tbread(4, tB(4)) + attF(x2, vO2, False) + attM(x3) + zipl(attX1(x3), Bq) + attE(x3, False) + attP(x3); n1 = len(F)
    W_, rest = weave(st[0][LA:], F)
    assert len(F) - len(rest) >= n0
    for x in W_: A(x)
    x1 = X2(1, TA); x4 = X2(4, TBt)
    F = rest + p0[0] + attS(x1) + attF(x3, vO2 + 2, False) + p0[1][:4] + swaps(vO2)
    F += [dual([f"buffer_store_dwordx4 {vr(vO2,4)}, v{vOST}, {S(SL,4)}, {t1} offen @"])] + attM(x1) + zipl(attX1(x1), p0[1][4:]) + attE(x1, False)
    W_, rest = weave(st[4], F, start=(0 if len(rest) > 6 else 3))
    for x in W_: A(x)
    info_rest = len(rest)
    p4 = post2(4, True)
    rest += Br[:1] + attP(x1)
    L = rest[:8] + p4[0] + rest[8:10] + attS(x4) + rest[10:] + p4[1] + attM(x4) + zipl(attX1(x4), Br[1:], RA[:6]) + attE(x4, True) + RA[6:8] + attP(x4)
    L += RA[8:] + attF(x1, vO2 + 2, False) + attF(x4, vO2, True) + swaps(vO2)
    L += [dual([f"buffer_store_dwordx4 {vr(vO2,4)}, v{vO3}, {S(SL,4)}, 0 offen @"])]
    for x in L: A(x)
    A(";@aw_off")
    stamp("bulk_done")
    A(f"""s_max_u32 {S(sKEY)}, {t2}, {t3}
          s_cmp_eq_u64 s[{sT+6}:{sT+7}], 0
          s_cbranch_scc0 L_bslow
          L_bok:""")
    hot = A.lines; A.lines = []
    A.label("L_bslow"); bpoll("L_bpoll2", 0); A("s_branch L_bok")
    cold.append("\n".join(A.lines)); A.lines = hot
    A(f"""s_mov_b32 {S(sLAY)}, 1
          s_bfe_u32 {t0}, {S(sKEY)}, 0x50006
          s_and_b32 {t1}, {S(sKEY)}, 63
          s_cmp_ge_u32 {t1}, 57
          s_cselect_b32 {t2}, {S(sPREV)}, {S(sC)}
          s_cmp_eq_u32 {t0}, {t2}
          s_cbranch_scc1 L_patch
          s_cmp_eq_u32 {t0}, {S(sC)}
          s_cbranch_scc0 L_oh
          L_patch:
          s_and_b32 {S(sI)}, {S(sKEY)}, 15
          s_lshr_b32 {t2}, {t1}, 4
          s_add_u32 {S(sRT)}, {t2}, 1
          s_lshl_b32 {t2}, {t2}, 14
          s_lshl_b32 {t3}, {S(sI)}, 4
          s_add_u32 {t2}, {t2}, {t3}
          s_add_u32 {t3}, {t3}, {XH - 128}
          s_cmp_eq_u32 {t0}, {S(sC)}
          s_cselect_b32 {S(sRT)}, {S(sRT)}, 0
          s_cselect_b32 {S(sPB)}, {t2}, {t3}
          s_cselect_b32 {S(sPS)}, 8, 7""")
    pa, px, pb, psel, psig, pvm, pst, prd = base, base + 2, base + 4, base + 8, base + 14, base + 16, base + 18, base + 19
    pya, pyb, ptm = base + 116, base + 117, base + 24
    yacc, racc = base + 20, base + 56
    vY = base + 68
    def yloads(offs, regs):
        n = len(offs)
        return [f"s_mov_b32 {dm}, {o}\nbuffer_load_dwordx4 {vr(regs+4*t,4)}, v{pyb if t == n-1 else pya}, {S(SWS,4)}, {dm} offen sc1" for t, o in enumerate(offs)]
    def ycheck(name, lds_, regs):
        n = len(lds_)
        A.label(name)
        A(f"v_mov_b32 v{px}, 0")
        for t in range(n):
            y = regs + 4 * t
            A(f"s_waitcnt vmcnt({n-1-t})")
            A(mf(yacc, vr(psel, 4), vr(y, 4), "0" if t == 0 else vr(yacc, 4)))
            A(f"v_max3_u32 v{px}, v{px}, v{y}, v{y+1}\nv_max3_u32 v{px}, v{px}, v{y+2}, v{y+3}")
        A(f"v_cmp_eq_u32 vcc, -1, v{px}\ns_cbranch_vccz {name}_ok")
        for x in lds_: A(x)
        A(f"s_sub_u32 {S(sSPIN)}, {S(sSPIN)}, 1\ns_cbranch_scc0 {name}\ns_branch L_exit\n{name}_ok:")
    A(f"""s_lshl_b32 {t4}, {S(sWV)}, 8
          s_add_u32 {t4}, {t4}, {SENT + S_Y}
          v_lshlrev_b32 v{pya}, 14, v{vGq}
          v_cmp_gt_u32 vcc, 3, v{vGq}
          v_lshl_add_u32 v{pya}, v{vI}, 4, v{pya}
          v_add_u32 v{pya}, {t4}, v{pya}
          v_mov_b32 v{pyb}, {OOB}
          v_cndmask_b32 v{pyb}, v{pyb}, v{pya}, vcc""")
    YL = yloads([(t & 7) * 65536 + (t >> 3) * 1024 for t in range(11)], vY)
    for x in YL[:3]: A(x)
    n_patch = len(A.lines)
    gen_ = base + 32
    gK0, gK1, gK2, gQ1, gQ2, gV, gC, gMP = gen_, gen_ + 2, gen_ + 4, gen_ + 6, gen_ + 8, gen_ + 10, gen_ + 16, gen_ + 18
    A(f"s_lshl_b32 {t4}, {S(sRT)}, 1\ns_set_gpr_idx_on {t4}, gpr_idx(SRC0)")
    for d, s_, n in ((gK0, pK(-1), 6), (gQ1, pQ(0), 4), (gV, pV(-1), 6)):
        for k in range(n): A(f"v_mov_b32 v{d+k}, v{s_+k}")
    A(f"""s_set_gpr_idx_off
          s_set_gpr_idx_on {S(sRT)}, gpr_idx(SRC0)
          v_mov_b32 v{gC}, v{cS(0)}
          v_mov_b32 v{gC+1}, v{cS(1)}
          s_set_gpr_idx_off
          s_cmp_eq_u32 {S(sRT)}, 1
          s_cselect_b64 vcc, -1, 0""")
    for r in range(4): A(f"v_cndmask_b32 v{gMP+r}, v{vMP+r}, v{vMP1+r}, vcc")
    n_patch = len(A.lines)
    def sigma(dst):
        A(f"""s_and_b32 {t4}, {S(sKEY)}, 0xFFFFF800
              s_ashr_i32 {t5}, {t4}, 31
              s_not_b32 {t5}, {t5}
              s_or_b32 {t5}, {t5}, 0x80000000
              s_xor_b32 {t4}, {t4}, {t5}
              v_mov_b32 v{dst}, 0xBFB8AA3B
              v_mul_f32 v{dst}, {t4}, v{dst}
              v_exp_f32 v{dst}, v{dst}
              s_nop 0
              v_add_f32 v{dst}, 1.0, v{dst}
              v_rcp_f32 v{dst}, v{dst}""")
    def selector(dst, scr):
        A(f"""v_mov_b32 v{dst}, 0x3F80
              v_mov_b32 v{dst+1}, 0
              v_and_b32 v{scr}, 48, v{vL16}
              s_mov_b32 vcc_lo, 0xF0F0F0F0
              s_mov_b32 vcc_hi, 0xF0F0F0F0
              v_lshlrev_b64 {vr(dst,2)}, v{scr}, {vr(dst,2)}
              v_cndmask_b32 v{dst+2}, 0, v{dst}, vcc
              v_cndmask_b32 v{dst+3}, 0, v{dst+1}, vcc
              v_cndmask_b32 v{dst}, v{dst}, 0, vcc
              v_cndmask_b32 v{dst+1}, v{dst+1}, 0, vcc""")
    A(f"""s_lshl_b32 {t4}, {S(sWV)}, 4
          s_lshl_b32 {t5}, {S(sR)}, 3
          s_sub_u32 {t4}, {t4}, {t5}
          v_add_u32 v{pa}, {t4}, v{vI}
          v_and_b32 v{pa}, 63, v{pa}
          v_lshlrev_b32 v{pa+1}, {S(sPS)}, v{pa}
          v_and_b32 v{px}, 1, v{vGq}
          v_lshlrev_b32 v{px}, 3, v{px}
          v_add3_u32 v{pa+1}, v{pa+1}, v{px}, {S(sPB)}
          v_lshl_add_u32 v{pa}, v{pa}, 4, v{px}
          v_add_u32 v{pa}, {T_ROW}, v{pa}
          s_lshl_b32 {t4}, {S(sRT)}, 4
          s_add_u32 {t4}, {t4}, {S(sI)}
          s_lshl_b32 {t4}, {t4}, 2
          s_add_u32 {t4}, {t4}, {T_NM}
          v_mov_b32 v{pb}, {t4}
          ds_read_b64 {vr(px,2)}, v{pa+1}
          ds_read2_b32 {vr(ptm,2)}, v{pb} offset0:0 offset1:160""")
    selector(psel, ptm + 2)
    sigma(psig)
    A(f"""v_mov_b32 v{pst}, {OOB}
          v_lshlrev_b32 v{prd}, 4, v{vGq}
          v_add_u32 v{prd}, {T_ROW}, v{prd}
          s_waitcnt lgkmcnt(0)
          v_mul_f32 v{ptm}, v{ptm}, v{ptm+1}
          v_add_f32 v{ptm+1}, 1.0, v{ptm+1}""")
    for h in range(2):
        A(f"v_lshlrev_b32 v{pb+2*h}, 16, v{px+h}\nv_and_b32 v{pb+2*h+1}, 0xFFFF0000, v{px+h}")
        A(f"v_pk_fma_f32 {vr(pb+2*h,2)}, {vr(pb+2*h,2)}, {vr(ptm,2)}, {vr(ptm,2)} op_sel:[0,1,0] op_sel_hi:[1,1,0]")
    A(f"""v_and_b32 v{ptm}, 1, v{vGq}
          s_sub_u32 {t4}, {S(sRT)}, 1
          v_add_u32 v{ptm}, {t4}, v{ptm}
          s_lshl_b32 {t4}, {t4}, 14
          v_cmp_gt_u32 vcc, 4, v{ptm}
          v_add_u32 v{ptm}, {t4}, v{vOST}
          s_add_u32 {t4}, {S(sWV)}, 1
          v_cndmask_b32 v{pst}, v{pst}, v{ptm}, vcc""")
    A(f"""s_cmp_eq_u32 {t4}, {S(sRT)}
          s_cselect_b32 {t4}, {S(sI)}, 99
          v_cmp_eq_u32 vcc, {t4}, v{vI}
          s_bfe_u32 {t5}, {S(sRB)}, 0x3000B
          s_lshl_b32 {t5}, {t5}, 7
          s_add_u32 {t5}, {t5}, {T_ROW}
          v_lshl_add_u32 v{ptm}, v{vGq}, 3, {t5}
          v_cndmask_b32 v{vAL}, v{vAL}, 1.0, vcc
          v_cndmask_b32 v{vAL+1}, v{vAL+1}, 0, vcc""")
    for c in range(4): A(f"v_cndmask_b32 v{vRA+c}, v{vRA+c}, v{ptm}, vcc\nv_add_u32 v{ptm}, 32, v{ptm}")
    A(f"""s_and_b32 {t4}, {S(sI)}, 1
          s_lshl_b32 {t4}, {t4}, 4
          s_lshl_b32 {t4}, 0xFFFF, {t4}
          s_lshr_b32 {t5}, {S(sI)}, 1
          v_lshlrev_b32 v{ptm}, 1, v{vGq}
          v_mov_b32 v{ptm+1}, {t4}
          v_cmp_eq_u32 vcc, {t5}, v{ptm}
          v_add_u32 v{ptm}, 1, v{ptm}
          v_cmp_eq_u32 s[{sT+6}:{sT+7}], {S(sI)}, v{vI}
          v_cndmask_b32 v{pvm}, 0, v{ptm+1}, vcc
          v_cmp_eq_u32 vcc, {t5}, v{ptm}
          v_cndmask_b32 v{pvm+1}, 0, v{ptm+1}, vcc""")
    L_, rest = interleave(A.lines[n_patch:], YL[3:], 9, first=9)
    assert not rest
    A.lines[n_patch:] = L_
    stamp("patch_rdy")
    ycheck("L_ypoll", YL, vY)
    stamp("y_in")
    for r in range(4): A(f"v_fma_f32 v{pb+r}, v{yacc+r}, v{psig}, v{pb+r}")
    A(f"""v_cvt_pk_bf16_f32 v{px}, v{pb}, v{pb+1}
          v_cvt_pk_bf16_f32 v{px+1}, v{pb+2}, v{pb+3}
          v_add_u32 v{pa+1}, {T_ROW}, v{vL16}
          ds_write_b64 v{pa}, {vr(px,2)}
          s_waitcnt lgkmcnt(0)
          s_barrier""")
    rw = base + 68; s1, s2 = base + 4, base + 5
    F = [f"ds_read_b128 {vr(rw,4)}, v{pa+1}"]
    F += sum(([f"v_lshlrev_b32 v{rw+4+2*d}, 16, v{rw+d}", f"v_and_b32 v{rw+5+2*d}, 0xFFFF0000, v{rw+d}"] for d in range(4)), [])
    F += [f"v_add_f32 v{s1}, v{rw+4}, v{rw+5}", f"v_mul_f32 v{s2}, v{rw+4}, v{rw+4}", f"v_fmac_f32 v{s2}, v{rw+5}, v{rw+5}"]
    F += sum(([f"v_add_f32 v{s1}, v{s1}, v{rw+k}", f"v_fmac_f32 v{s2}, v{rw+k}, v{rw+k}"] for k in range(6, 12)), [])
    F += [f"v_add_f32_dpp v{x}, v{x}, v{x} row_ror:{sh} row_mask:0xf bank_mask:0xf" for sh in (8, 4, 2, 1) for x in (s1, s2)]
    F += [f"v_permlane32_swap_b32 v{s1}, v{s2}", f"v_add_f32 v{rw}, v{s1}, v{s2}", f"v_add_f32 v{rw+1}, v{s1}, v{s2}",
          f"v_permlane16_swap_b32 v{rw}, v{rw+1}", f"v_add_f32 v{s1}, v{rw}, v{rw+1}", f"v_add_f32 v{s2}, v{rw}, v{rw+1}",
          f"v_permlane32_swap_b32 v{s1}, v{s2}",
          f"v_mul_f32 v{s1}, 0xBB000000, v{s1}", f"v_mul_f32 v{s2}, 0x3B000000, v{s2}", f"v_fma_f32 v{s2}, -v{s1}, v{s1}, v{s2}",
          f"v_max_f32 v{s2}, 0, v{s2}", f"v_add_f32 v{s2}, {EPS}, v{s2}", f"v_rsq_f32 v{s2}, v{s2}",
          f"v_mul_f32 v{rw}, 0x3EB8AA3B, v{s2}", f"v_cndmask_b32 v{gC}, v{gC}, v{rw}, s[{sT+6}:{sT+7}]"]
    A(";@aw_on")
    rs_ = tile_stream([0], rdf=lambda r, ks: f"ds_read_b128 {ar(r,4)}, v{prd} offset:{64*ks}", acc=racc, hasq=True)[0]
    A(F[0])
    emit(weave(rs_, F[1:], start=1, spread=True))
    xa = dict(Q=gQ1, Kp=gK0, Kc=gK1, V=gV, c=gC, mp=gMP, T=TA, O=TA + 10, R=TA + 14)
    xb = dict(Q=gQ2, Kp=gK1, Kc=gK2, V=gV + 2, c=gC + 1, mp=vMP, T=TBt, O=TBt + 10, R=TBt + 14)
    p_ = vr(s1, 2); m_ = f"s[{sT+6}:{sT+7}]"
    L = [attS(xb)[1]]
    for h in range(2): L.append(f"v_pk_fma_f32 {vr(racc+4+2*h,2)}, {vr(vCSK+2*h,2)}, {p_}, {vr(racc+4+2*h,2)} op_sel_hi:[1,0,1]")
    for h in range(2): L.append(f"v_pk_fma_f32 {vr(racc+2*h,2)}, {vr(vCSQ+2*h,2)}, {p_}, {vr(racc+2*h,2)} op_sel_hi:[1,0,1]")
    for h in range(2): L.append(f"v_pk_mul_f32 {vr(racc+4+2*h,2)}, {vr(racc+4+2*h,2)}, {p_} op_sel:[0,1] op_sel_hi:[1,1]")
    for h in range(2): L += [f"v_cvt_pk_bf16_f32 v{racc+h}, v{racc+2*h}, v{racc+2*h+1}", f"v_cvt_pk_bf16_f32 v{racc+4+h}, v{racc+4+2*h}, v{racc+5+2*h}"]
    for h in range(2): L += [f"v_cndmask_b32 v{gQ1+h}, v{gQ1+h}, v{racc+h}, {m_}", f"v_cndmask_b32 v{gK1+h}, v{gK1+h}, v{racc+4+h}, {m_}"]
    L += [f"v_fmac_f32 v{racc+8}, v{s1}, v{vCSV}", f"v_mul_f32 v{racc+8}, v{racc+8}, v{s2}"]
    L += attS(xa) + [attS(xb)[0]]
    L += [f"v_cvt_pk_bf16_f32 v{racc+8}, v{racc+8}, v{racc+8}"] + [f"v_bfi_b32 v{gV+2+h}, v{pvm+h}, v{racc+8}, v{gV+2+h}" for h in range(2)]
    L += attM(xa) + attM(xb) + attX2(xa, xb) + zipl(attE(xa, True), attE(xb, True)) + attP(xa) + attP(xb)
    L += zipl(attF(xa, vO2, True), attF(xb, vO2 + 2, True)) + swaps(vO2)
    L += [dual([f"buffer_store_dwordx4 {vr(vO2,4)}, v{pst}, {S(SL,4)}, 0 offen @"])]
    for x in L: A(x)
    A(";@aw_off\ns_branch L_oh")

    A.label("L_final")
    vXN = base + 24
    for d in range(8): A(f"v_pk_fma_f32 {vr(vXN+8+2*d,2)}, {vr(vXF+2*d,2)}, {vr(rs,2)}, {vr(vAL,2)} op_sel:[0,0,1] op_sel_hi:[1,0,1]")
    A(f"v_cmp_eq_u32 vcc, v{tmp+24}, v{vk}\ns_lshl_b32 {t4}, {S(sM)}, 7\ns_add_u32 {t3}, {t3}, {t4}")
    for d in range(8): A(f"v_cvt_pk_bf16_f32 v{vXN+d}, v{vXN+8+2*d}, v{vXN+9+2*d}")
    A(f"""s_mov_b64 s[{sT+6}:{sT+7}], vcc
          s_and_b64 exec, exec, vcc
          s_cbranch_execz L_norow
          buffer_store_dwordx4 {vr(vXN,4)}, v{vPI}, {S(SWS,4)}, {t3} offen sc1
          buffer_store_dwordx4 {vr(vXN+4,4)}, v{vPI}, {S(SWS,4)}, {t3} offen offset:64 sc1
          L_norow:
          s_mov_b64 exec, -1""")
    for d in range(8): A(f"v_pk_add_f32 {vr(vXF+2*d,2)}, {vr(vXF+2*d,2)}, {vr(vXN+8+2*d,2)}")
    A(f"""v_lshlrev_b32 v{tmp+27}, 1, v{vPI}
          v_add_u32 v{tmp+27}, {T_ROW}, v{tmp+27}
          s_mov_b64 exec, vcc""")
    for k in range(4): A(f"ds_write_b128 v{tmp+27}, {vr(vXF+4*k,4)} offset:{(k>>1)*128 + (k&1)*16}")
    A("s_mov_b64 exec, -1")
    vPK = base + 48
    for d in range(8): A(f"v_cvt_pk_bf16_f32 v{vPK+d}, v{vXF+2*d}, v{vXF+2*d+1}")
    A(f"""v_and_b32 v{tmp+27}, 7, v{vI}
          v_lshlrev_b32 v{tmp+27}, 4, v{tmp+27}
          v_xor_b32 v{tmp+27}, v{tmp+27}, v{vPI}
          v_lshl_add_u32 v{tmp+27}, v{vI}, 7, v{tmp+27}
          v_add_u32 v{tmp+27}, {S(sW14)}, v{tmp+27}
          v_xor_b32 v{tmp+29}, 64, v{tmp+27}
          v_add_u32 v{tmp+28}, {S(sW14)}, v{vL16}
          ds_write_b128 v{tmp+27}, {vr(vPK,4)}
          ds_write_b128 v{tmp+29}, {vr(vPK+4,4)}
          ds_read_b128 {vr(vPK+8,4)}, v{tmp+28}
          ds_read_b128 {vr(vPK+12,4)}, v{tmp+28} offset:1024
          s_add_u32 {S(sXB)}, {S(sXB)}, {t4}
          s_lshl_b32 {t1}, {S(sWV)}, 15
          s_add_u32 {t0}, {S(sXB)}, {t1}
          s_add_u32 {t1}, {t0}, 16384
          v_lshrrev_b32 v{tmp+27}, 3, v{vL}
          v_and_b32 v{tmp+28}, 7, v{vL}
          v_xor_b32 v{tmp+28}, v{tmp+28}, v{tmp+27}
          v_lshlrev_b32 v{tmp+28}, 4, v{tmp+28}
          v_lshl_add_u32 v{tmp+27}, v{tmp+27}, 11, v{tmp+28}
          s_waitcnt lgkmcnt(0)
          buffer_store_dwordx4 {vr(vPK+8,4)}, v{tmp+27}, {S(SOUT,4)}, {t0} offen sc1
          buffer_store_dwordx4 {vr(vPK+12,4)}, v{tmp+27}, {S(SOUT,4)}, {t1} offen sc1""")
    A(f"""s_add_u32 {t0}, s2, {S(sWV)}
          s_cmp_eq_u32 {t0}, 0
          s_cbranch_scc0 L_noepoch
          v_mov_b32 v{tmp}, {S(sTAG)}
          s_mov_b64 exec, 1
          buffer_store_dword v{tmp}, v{vL}, {S(SWS,4)}, 0 offen sc1
          s_mov_b64 exec, -1
          L_noepoch:""")
    stamp("out_stored")
    A(f"""s_cmp_lt_u32 {S(sF)}, 43
          s_cbranch_scc1 L_ffn
          s_cmp_eq_u64 s[{sT+6}:{sT+7}], 0
          s_cbranch_scc1 L_exit""")
    bpoll("L_bpoll3", 6)
    A.label("L_ffn_done")
    stamp("ffn_done")
    A(f"""s_bfe_u32 {t0}, {S(sKEY)}, 0x70004
          s_lshl_b32 {t1}, {S(sC)}, 2
          s_add_u32 {t1}, {t1}, {S(sWV)}
          s_cmp_eq_u32 {t0}, {t1}
          s_cbranch_scc0 L_exit""")
    selector(psel, pya)
    sigma(psig)
    A(f"""v_lshrrev_b32 v{pa}, 3, v{vL}
          v_and_b32 v{pa+1}, 7, v{vL}
          v_lshlrev_b32 v{pya}, 4, v{pa+1}
          v_lshl_add_u32 v{pya}, v{pa}, 14, v{pya}
          s_lshl_b32 {t4}, {S(sM)}, 7
          s_add_u32 {t4}, {t4}, {SENT + S_Y + 2048}
          v_add_u32 v{pya}, {t4}, v{pya}
          v_mov_b32 v{pyb}, {OOB}
          v_cmp_gt_u32 vcc, 3, v{pa}
          v_cndmask_b32 v{pyb}, v{pyb}, v{pya}, vcc
          v_and_b32 v{pa}, 1, v{vGq}
          v_lshl_add_u32 v{pa}, v{pa+1}, 1, v{pa}
          v_lshlrev_b32 v{pa+1}, 4, v{pa}
          v_add_u32 v{pa+1}, {T_ROW}, v{pa+1}
          ds_read_b128 {vr(pb,4)}, v{pa+1}
          v_lshlrev_b32 v{pa}, 3, v{pa}
          s_and_b32 {t0}, {S(sKEY)}, 63
          s_lshl_b32 {t0}, {t0}, 11
          s_add_u32 {t0}, {t0}, {S(sXB)}""")
    ZL = yloads([(t & 3) * 131072 + (t >> 2) * 1024 for t in range(6)], vY)
    for x in ZL: A(x)
    ycheck("L_zpoll", ZL, vY)
    A("s_waitcnt lgkmcnt(0)")
    for r in range(4): A(f"v_add_f32_dpp v{yacc+r}, v{yacc+r}, v{yacc+r} row_ror:8 row_mask:0xf bank_mask:0xf")
    for r in range(4): A(f"v_fma_f32 v{pb+r}, v{yacc+r}, v{psig}, v{pb+r}")
    A(f"""v_cvt_pk_bf16_f32 v{px}, v{pb}, v{pb+1}
          v_cvt_pk_bf16_f32 v{px+1}, v{pb+2}, v{pb+3}
          s_mov_b64 exec, 0x00FF00FF
          buffer_store_dwordx2 {vr(px,2)}, v{pa}, {S(SOUT,4)}, {t0} offen sc1
          s_mov_b64 exec, -1""")
    if O.get("dbgtime"):
        A(f"""s_mov_b64 exec, 1
              s_load_dwordx2 s[4:5], s[0:1], 72
              s_memrealtime s[92:93]
              s_memtime s[94:95]
              s_mov_b32 s6, 256
              s_waitcnt lgkmcnt(0)
              s_sub_u32 s92, s92, s96
              s_sub_u32 s94, s94, s98
              v_mov_b32 v2, s92
              v_mov_b32 v3, s94
              s_lshl_b32 s92, {S(sM)}, 3
              v_mov_b32 v4, s92
              buffer_store_dwordx2 v[2:3], v4, s[4:7], 0 offen""")
    if O.get("amp"):
        stamp("end")
        A(f"""s_memrealtime s[92:93]
              s_sub_u32 s90, s90, s96
              s_mul_i32 s90, s90, {O.get('ampk', 1)}
              s_min_u32 s90, s90, 20000
              s_waitcnt lgkmcnt(0)
              L_ampw:
              s_memrealtime s[94:95]
              s_waitcnt lgkmcnt(0)
              s_sub_u32 s94, s94, s92
              s_cmp_lt_u32 s94, s90
              s_cbranch_scc1 L_ampw""")
    A.label("L_exit")
    if O["stamps"]:
        stamp("exit")
        A(f"""s_mov_b64 exec, -1
              s_lshl_b32 {t0}, s2, 2
              s_add_u32 {t0}, {t0}, {S(sWV)}
              s_lshl_b32 {t0}, {t0}, 8
              s_add_u32 {t0}, {t0}, {DBG + 0x800000}
              v_lshlrev_b32 v254, 2, v{vL}
              buffer_store_dword v255, v254, {S(SWS,4)}, {t0} offen""")
    A.label("L_end")
    A("s_endpgm")
    for x in cold: A(x)
    A("L_last:\ns_endpgm")

    lines, nn = fix_hazards(autowait(A.lines), verbose=O.get("verbose", False))
    kn = O["kname"]
    hdr = open("interleave_layers__sliding_local_dilated__moe_arch_mod__prompt.s.ref").read().split("; Override launch")[0]
    out = hdr + f"; @launch grid=(256,1,1) block=(256,1,1) lds={LDS_BYTES}\n"
    out += f'.amdgcn_target "amdgcn-amd-amdhsa--gfx950"\n.text\n.globl {kn}\n.p2align 8\n.type {kn},@function\n{kn}:\n'
    out += "".join((l + "\n") if l.endswith(":") else ("    " + l + "\n") for l in lines)
    out += f""".section .rodata,"a"
.p2align 6
.amdhsa_kernel {kn}
  .amdhsa_next_free_vgpr 512
  .amdhsa_next_free_sgpr 102
  .amdhsa_accum_offset 256
  .amdhsa_group_segment_fixed_size 0
  .amdhsa_kernarg_size 88
  .amdhsa_user_sgpr_count 2
  .amdhsa_user_sgpr_kernarg_segment_ptr 1
  .amdhsa_system_sgpr_workgroup_id_x 1
  .amdhsa_float_denorm_mode_32 3
.end_amdhsa_kernel
"""
    return out, dict(names=names, rest4=info_rest, nops=nn, base=base, tmp=tmp, nstamps=nst[0], ninstr=len(lines))


if __name__ == "__main__":
    import json
    opt = json.loads(sys.argv[2]) if len(sys.argv) > 2 else {}
    s, info = gen(opt)
    open(sys.argv[1], "w").write(s)
    json.dump(info.pop("names"), open(sys.argv[1][:-2] + ".names.json", "w"))
    print(info)
```

```python
import re
class Asm:
    def __init__(self):
        self.lines = []
    def __call__(self, txt):
        for l in txt.split("\n"):
            l = l.strip()
            if l: self.lines.append(l)
    def label(self, n): self.lines.append(n + ":")

def regs_of(tok):
    tok = tok.strip()
    tok = tok.lstrip("-")
    if tok.startswith("abs("): tok = tok[4:-1]
    if tok.startswith("|"): tok = tok.strip("|")
    m = re.fullmatch(r"([vas])(\d+)", tok)
    if m: return [(m.group(1), int(m.group(2)))]
    m = re.fullmatch(r"([vas])\[(\d+):(\d+)\]", tok)
    if m: return [(m.group(1), i) for i in range(int(m.group(2)), int(m.group(3)) + 1)]
    if tok == "vcc": return [("s", 106), ("s", 107)]
    if tok == "vcc_lo": return [("s", 106)]
    if tok == "vcc_hi": return [("s", 107)]
    if tok == "exec": return [("s", 126), ("s", 127)]
    if tok == "exec_lo": return [("s", 126)]
    if tok == "exec_hi": return [("s", 127)]
    if tok == "m0": return [("s", 124)]
    return []

TRANS = ("v_exp_f32", "v_log_f32", "v_rcp_f32", "v_rsq_f32", "v_sqrt_f32", "v_sin_f32", "v_cos_f32")
class Ins:
    def __init__(self, text):
        self.text = text
        t = text.split(";")[0].strip()
        self.islabel = t.endswith(":")
        self.isdir = t.startswith(".")
        self.defs = set(); self.uses = set(); self.ab = set(); self.c = set(); self.data = set()
        self.mn = ""; self.kind = "other"; self.states = 1
        if self.islabel or self.isdir or not t:
            self.states = 0; self.kind = "none"; self.name = t[:-1] if self.islabel else None; return
        p = t.split(None, 1); self.mn = mn = p[0]
        rest = p[1] if len(p) > 1 else ""
        ops = []; cur = ""; d = 0
        for ch in rest:
            if ch in "[(": d += 1
            if ch in "])": d -= 1
            if ch == "," and d == 0: ops.append(cur.strip()); cur = ""
            else: cur += ch
        if cur.strip(): ops.append(cur.strip())
        mods = ""
        if ops:
            q = ops[-1].split(None, 1)
            ops[-1] = q[0]
            mods = q[1] if len(q) > 1 else ""
        self.ops = ops; self.mods = mods
        R = [regs_of(o) for o in ops]
        self.dpp = ("_dpp" in mn) or ("row_" in mods) or ("quad_perm" in mods)
        if mn == "s_nop": self.states = int(ops[0], 0) + 1; self.kind = "salu"; return
        if mn.startswith("v_mfma"):
            self.kind = "mfma"; self.defs = set(R[0]); self.ab = set(R[1] + R[2]); self.c = set(R[3]); self.uses = self.ab | self.c
            self.passes = 8 if "32x32" in mn else 4
            self.dtok = ops[0]; self.ctok = ops[3]
        elif mn.startswith("v_"):
            self.kind = "valu"
            if mn.startswith("v_permlane"):
                self.defs = set(R[0] + R[1]); self.uses = set(R[0] + R[1])
            elif mn.startswith("v_nop"):
                pass
            else:
                self.defs = set(R[0]); self.uses = set(sum(R[1:], []))
                if mn.startswith(("v_fmac", "v_dot2c", "v_writelane")) or self.dpp: self.uses |= set(R[0])
                if mn.startswith("v_cndmask") and len(ops) == 3: self.uses |= {("s", 106), ("s", 107)}
                if mn.startswith("v_cmpx"): self.defs |= {("s", 126), ("s", 127)}
            self.trans = mn.replace("_e32", "").replace("_e64", "") in TRANS
            self.dot = mn.startswith("v_dot")
        elif mn.startswith("ds_"):
            self.kind = "ds"
            if mn.startswith(("ds_read", "ds_bpermute", "ds_permute", "ds_swizzle")) or "_rtn" in mn:
                self.defs = set(R[0]); self.uses = set(sum(R[1:], []))
            else: self.uses = set(sum(R, []))
        elif mn.startswith(("buffer_", "global_")):
            self.kind = "vmem"
            islds = re.search(r"\blds\b", mods) is not None or "_lds_" in mn
            if "load" in mn and not islds:
                self.defs = set(R[0]); self.uses = set(sum(R[1:], []))
            else:
                self.uses = set(sum(R, []))
                if islds: self.uses.add(("s", 124)); self.ldsdma = True
                if "store" in mn and ("x4" in mn or "x3" in mn):
                    self.data = set(R[0]) if mn.startswith("buffer_") else set(R[1])
        elif mn.startswith("s_"):
            self.kind = "salu"
            if mn.startswith(("s_cmp", "s_cbranch", "s_branch", "s_waitcnt", "s_barrier", "s_endpgm", "s_sleep", "s_setprio", "s_bitcmp", "s_set_gpr")):
                self.uses = set(sum(R, []))
            else:
                self.defs = set(R[0]) if R else set(); self.uses = set(sum(R[1:], []))
                if "saveexec" in mn: self.defs |= {("s", 126), ("s", 127)}
        else:
            raise ValueError("unknown instr " + text)

def isv(r): return r[0] in "va"
def need(p, c):
    n = 0
    if p.kind == "valu":
        vd = {r for r in p.defs if isv(r)}; sd = {r for r in p.defs if r[0] == "s"}
        if c.kind == "mfma" and vd & c.uses: n = max(n, 3 if p.dot else 2)
        if c.kind == "mfma" and ("s", 126) in sd: n = max(n, 4)
        if c.kind == "valu":
            if c.mn.startswith("v_permlane") and vd & c.uses: n = max(n, 2)
            if c.dpp and vd & c.uses: n = max(n, 2)
            if c.dpp and ("s", 126) in sd: n = max(n, 5)
            if c.mn.startswith(("v_readlane", "v_readfirstlane")) and vd & c.uses: n = max(n, 1)
            if c.mn.startswith(("v_readlane", "v_readfirstlane", "v_writelane", "v_permlane")) and ("s", 126) in sd: n = max(n, 4)
            if p.trans and not c.trans and vd & c.uses: n = max(n, 1)
            if sd & c.uses: n = max(n, 4 if c.mn.startswith(("v_readlane", "v_writelane")) else 2)
            if p.dot and vd & (c.uses | c.defs):
                same = c.mn == p.mn
                if same:
                    srcab = set(sum([regs_of(o) for o in c.ops[1:3]], []))
                    if vd & srcab: n = max(n, 3)
                else: n = max(n, 3)
            if "sdwa" in p.mn and "dst_sel:DWORD" not in p.mods and vd & (c.uses | c.defs): n = max(n, 1)
        if c.kind in ("vmem", "ds") and p.dot and vd & c.uses: n = max(n, 3)
        if c.kind == "vmem" and sd & c.uses: n = max(n, 5)
    if p.kind == "mfma":
        big = {4: 8, 8: 12}[p.passes]
        if c.kind == "mfma":
            if p.defs & c.ab: n = max(n, big)
            if p.defs & c.c:
                if not (c.ctok == p.dtok and c.passes == p.passes): n = max(n, {4: 6, 8: 10}[p.passes])
            elif p.defs & c.defs: n = max(n, big)
        elif c.kind in ("valu", "vmem", "ds"):
            if p.defs & (c.uses | c.defs): n = max(n, big)
            if c.kind == "valu" and p.c & c.defs: n = max(n, {4: 3, 8: 7}[p.passes])
            if c.kind in ("vmem", "ds") and p.c & c.defs: n = max(n, {4: 3, 8: 7}[p.passes])
    if p.kind == "salu" and ("s", 124) in p.defs and getattr(c, "ldsdma", False): n = max(n, 1)
    if p.kind == "vmem" and p.data and (p.data & c.defs): n = max(n, 2 if c.kind == "valu" else 1)
    return n

def fix_hazards(lines, verbose=False):
    total = 0
    ins = [Ins(l) for l in lines]
    start = 0
    while True:
        lab = {x.name: i for i, x in enumerate(ins) if x.islabel}
        preds = [[] for _ in ins]
        for i, x in enumerate(ins):
            if i + 1 < len(ins) and x.mn not in ("s_branch", "s_endpgm", "s_setpc_b64"): preds[i + 1].append(i)
            if x.mn.startswith(("s_cbranch", "s_branch")):
                preds[lab[x.ops[0]]].append(i)
        fix = None
        for i in range(start, len(ins)):
            c = ins[i]
            if c.kind in ("none", "salu"): continue
            worst = 0; who = None
            stack = [(j, 0) for j in preds[i]]; seen = {}
            while stack:
                j, d = stack.pop()
                if d >= 12 or seen.get(j, 99) <= d: continue
                seen[j] = d
                p = ins[j]
                if p.kind != "none":
                    k = need(p, c) - d
                    if k > worst: worst = k; who = p
                for q in preds[j]: stack.append((q, d + p.states))
            if worst > 0:
                fix = (i, worst, who); break
        if not fix: break
        i, k, who = fix
        if verbose: print(f"hazard: +{k} before [{ins[i].text}] after [{who.text}]")
        ins.insert(i, Ins(f"s_nop {k-1}"))
        start = i
        total += k
    return [x.text for x in ins], total

class VM:
    def __init__(self): self.q = []
    def issue(self, tag, n=1): self.q += [tag] * n
    def cnt(self, *tags):
        last = max(i for i, t in enumerate(self.q) if t in tags)
        n = len(self.q) - 1 - last
        assert n <= 63
        return n
    def reset(self): self.q = []

class Alloc:
    def __init__(self, pfx, start, end): self.p = pfx; self.n = start; self.end = end
    def __call__(self, n=1, al=1):
        if n >= 2: al = max(al, 2)
        self.n = (self.n + al - 1) // al * al
        r = self.n; self.n += n
        assert self.n <= self.end, f"out of {self.p} regs"
        return r
def vr(b, n=1): return f"v{b}" if n == 1 else f"v[{b}:{b+n-1}]"
def ar(b, n=1): return f"a{b}" if n == 1 else f"a[{b}:{b+n-1}]"
def sr(b, n=1): return f"s{b}" if n == 1 else f"s[{b}:{b+n-1}]"

def autowait(lines):
    out = []; on = False; lq = []; vq = []; age = 10**9; pos = 0
    for l in lines:
        if l.startswith(";@aw_on"):
            on = True; lq = []; vq = []; p = l.split(); age = int(p[1]) if len(p) > 1 else 10**9; continue
        if l.startswith(";@aw_off"): on = False; continue
        if not on:
            assert not l.startswith(";@need"), l
            out.append(l); continue
        hint = l.startswith(";@need")
        if hint: l = "ds_nop " + l[7:]
        x = Ins(l); pos += 1
        if (x.islabel and x.name.startswith("L_join")) or (x.mn.startswith("s_cbranch") and x.ops[0].startswith(("L_slow", "L_join"))):
            out.append(l); continue
        if l.endswith(";cond"): out.append(l); continue
        assert not x.islabel and not x.mn.startswith(("s_cbranch", "s_branch", "s_load")), l
        if x.mn == "s_waitcnt":
            m = re.search(r"lgkmcnt\((\d+)\)", l)
            if m: n = int(m.group(1)); del lq[:max(0, len(lq) - n)]
            m = re.search(r"vmcnt\((\d+)\)", l)
            if m: n = int(m.group(1)); del vq[:max(0, len(vq) - n)]
            out.append(l); continue
        touch = x.uses | x.defs
        w = []
        for q, nm, mx in ((vq, "vmcnt", 63), (lq, "lgkmcnt", 15)):
            hit = [i for i, d in enumerate(q) if d[0] & touch]
            if hit:
                n = min(len(q) - 1 - max(hit), mx)
                if q is lq:
                    while n > 0 and pos - q[len(q) - n][1] >= age: n -= 1
                w.append(f"{nm}({n})")
                del q[:len(q) - n]
        if w: out.append("s_waitcnt " + " ".join(w))
        if hint: continue
        out.append(l)
        if x.kind == "ds": lq.append((set(x.defs), pos))
        if x.kind == "vmem": vq.append((set(x.defs), pos))
    return out

def lines_of(txt):
    if isinstance(txt, str): txt = [txt]
    return [l.strip() for t in txt for l in t.split("\n") if l.strip()]

def wt(l):
    if l.endswith(":"): return 0
    return 2 if l.startswith(("v_exp", "v_rcp", "v_rsq", "v_dot2")) else 1

def weave(main, fill, start=0, cap=2, spread=False):
    gaps = []; head = []
    for l in main:
        if l.startswith("v_mfma"): gaps.append([l])
        elif gaps: gaps[-1].append(l)
        else: head.append(l)
    out = list(head); k = 0; debt = 0
    free_tot = sum(max(0, cap - sum(map(wt, g[1:]))) for g in gaps[start:])
    need = sum(wt(x) for f in fill for x in lines_of(f) if not x.startswith("v_mfma"))
    duty = min(1.0, need / max(1, free_tot) * 1.15) if spread else 1.0; credit = 0.0
    for n, g in enumerate(gaps):
        pre = [x for x in g[1:] if not x.startswith(";@need")]; post_ = [x for x in g[1:] if x.startswith(";@need")]
        out += [g[0]] + pre
        free = cap - sum(map(wt, g[1:])) - debt; debt = 0
        if n >= start:
            credit += max(0, free) * duty
            while k < len(fill):
                it = lines_of(fill[k])
                if it[0].startswith("v_mfma"):
                    out += it; k += 1; free = cap - len(post_); credit += free * duty; continue
                w = sum(map(wt, it))
                if credit < 1 or free <= 0 or (w > free and w <= cap and free < cap): break
                out += it; k += 1; free -= w; credit -= w
            if free < 0: debt = 0
        out += post_
    return out, fill[k:]

def interleave(lines, items, gap, first=0):
    ins = [Ins(l) for l in lines]
    n = len(ins); safe = [True] * (n + 1)
    lab = {x.name: i for i, x in enumerate(ins) if x.islabel}
    for i, x in enumerate(ins):
        if x.mn.startswith(("s_cbranch", "s_branch")):
            for k in range(i + 1, lab[x.ops[0]] + 1): safe[k] = False
    live = False
    for i in range(n - 1, -1, -1):
        x = ins[i]
        if x.mn.startswith(("s_cselect", "s_cbranch_scc", "s_addc", "s_subb")): live = True
        elif x.mn.startswith("s_") and not x.mn.startswith(("s_mov", "s_mul_i32", "s_waitcnt", "s_nop", "s_load", "s_getreg", "s_branch", "s_barrier")): live = False
        if live: safe[i] = False
    ex = False
    for i, x in enumerate(ins):
        if ex: safe[i] = False
        if ("s", 126) in x.defs or ("s", 127) in x.defs: ex = not x.text.replace(" ", "").endswith("exec,-1")
    out = []; k = 0; since = gap - first
    for i, l in enumerate(lines):
        if k < len(items) and since >= gap and safe[i]:
            out += lines_of(items[k]); k += 1; since = 0
        out.append(l); since += 1
    return out, items[k:]

def sizes_of(lines):
    import subprocess, tempfile, os
    d = tempfile.mkdtemp()
    open(d + "/a.s", "w").write('.amdgcn_target "amdgcn-amd-amdhsa--gfx950"\n.text\nk:\n' + "\n".join(lines) + "\n")
    r = subprocess.run(["clang", "-x", "assembler", "-target", "amdgcn-amd-amdhsa", "-mcpu=gfx950", "-c", d + "/a.s", "-o", d + "/a.o"], capture_output=True, text=True)
    assert r.returncode == 0, r.stderr[:2000]
    o = subprocess.run(["llvm-objdump", "-d", "--mcpu=gfx950", d + "/a.o"], capture_output=True, text=True).stdout
    sz = [4 * len(m.group(1).split()) for m in re.finditer(r"// [0-9A-F]{12}: ((?:[0-9A-F]{8} ?)+)", o)]
    out = []; k = 0
    for l in lines:
        if l.endswith(":"): out.append(0)
        else: out.append(sz[k]); k += 1
    assert k == len(sz), (k, len(sz))
    return out

def add_pads(lines, start, targets, nchain):
    sz = sizes_of([l if not l.startswith("s_branch L_chain") and not l.startswith("s_cbranch_scc1 L_chain") else "s_nop 0" for l in lines])
    out = []; addr = start; pads = []; want = False; zero = False; past = False
    for l, n in zip(lines, sz):
        if l == "L_tour_end:": past = True
        if want and not zero and n and not l.startswith("s_endpgm"):
            pads.append(len(out)); out.append(None); addr += 4; want = False
        out.append(l)
        t = l.replace(" ", "")
        if t.startswith(("s_and_b64exec", "s_and_b32exec", "s_mov_b64exec,vcc", "s_mov_b64exec,0;", "s_and_saveexec")) or t == "s_mov_b64exec,0": zero = True
        if t == "s_mov_b64exec,-1": zero = False
        if past and ((addr + n) // 4096 != addr // 4096 or (l.endswith(":") and l[:-1] in targets)): want = True
        addr += n
    res = []; idx = {p: k for k, p in enumerate(pads)}
    for i, l in enumerate(out):
        if l is None:
            k = idx[i]
            if k < nchain: res.append(f"L_chain{k}:")
            res += [f"L_pad{k}:", f"s_cbranch_execz " + (f"L_pad{k+nchain}" if k + nchain < len(pads) else "L_tour_end")]
        else: res.append(l)
    return res, len(pads)
```

```python
import sys, os
sys.path.insert(0, os.path.dirname(os.path.abspath(__file__)))
from asmfw import *

KNAME = "interleave_layers__sliding_local_dilated__moe_arch_mod__prompt_kernel"

XSLOT, HST, CAND, SENT, LOC, DBG = 0x10000, 0x20000, 0x30000, 0x80000, 0x200000, 0xA00000
S_HROW, S_CROW, S_Y = 0, 8192, 10240
OBUF, STATS, FLAGS, X1BUF = 0, 0x10000, 0x12000, 0x20000
OOB = 0x7FFF0000
XM, XH, WB, TB = 0, 65536, 73728, 147456
T_NM, T_SC, T_RS = TB + 64, TB + 384, TB + 704
T_KEY, T_PST, T_FFN, T_ROW = TB + 1024 + 16, TB + 1024 + 64, TB + 8192, TB + 9216
LDS_BYTES = 163840
PH_X, PH_O1, PH_S1, PH_X1, PH_O2, PH_S2 = 0, 1, 2, 3, 4, 5
EPS = 0x3727C5AC
NINF = 0xFF800000


def gen(opt=None):
    O = dict(stamps=0, dump=0, force_slow=0, touch=-2, rot='gm', xpol="", ramp=3, ahead=5, fl0=1, b2=-1, wb=0, gap=4, pf_step=2, xw_step=3, xs_step=9,
             lf_step=-1, pw_step=10, ft_step=10, fpol="", pwpol="", wo_defer=4, nup=6, ng=4, tour=-1, ffn_s=2,
             pads=['L_final', 'L_patch', 'L_slow_ffn0', 'L_slow_rchk', 'L_pub1', 'L_pub3'], kname=KNAME)
    O.update(opt or {})
    A = Asm(); vm = VM()
    D = 6
    WS_SIZE = 0x2000000 if (O["dump"] or O["stamps"]) else DBG
    SX, SW, SWO, SWS, SOUT, SWG, SWU, SWD, SWR, SL = 4, 8, 12, 16, 20, 24, 28, 32, 36, 40
    sa = Alloc("s", 44, 102)
    sG, sM, sS, sWV, sC, sTAG, sFAST, sF, sPREV, sSPIN, sSUMW, sLAY = [sa() for _ in range(12)]
    sROT = sa(8)
    sT = sa(8, 2)
    sMA, sMB, sMV = sa(2), sa(2), sa(2)
    sR, sW14, sXB, sW3K, sKEY, sRT, sI, sRB, sW10, sPB, sPS, sHOK, sAFF, sW13, sH0, sH1 = [sa() for _ in range(16)]
    sDM = 3
    sST = sa(4, 2) if O["stamps"] else None
    t0, t1, t2, t3, t4, t5 = [f"s{sT+i}" for i in range(6)]
    S = lambda r, n=1: sr(r, n)
    va = Alloc("v", 1, 256)
    vL = 0
    vI, vGq = va(), va()
    vL16 = va()
    vA, vH = va(2), va(2)
    vWO = va(4)
    vOST, vOLD, vXST, vSTA, vSTL = va(), va(), va(), va(), va()
    vTI, vTG = va(), va()
    vAL = va(2)
    vMP, vMC, vMP1 = va(4), va(4), va(4)
    vPM = va(2)
    vONE = va(4)
    vCSQ, vCSK, vCSV = va(4), va(4), va(2)
    vWR = va(8)
    vFG = va(64)
    vGA, vGT = va(), va()
    vP = va(0, 4)
    base = va.n
    accQ = [base + 12 * t for t in range(5)]; accK = [x + 4 for x in accQ]; accV = [x + 8 for x in accQ]
    gOWN, gSUM, gHAL = base + 60, base + 64, base + 68
    tmp = base + 72
    assert tmp + 56 <= 256, tmp
    vXD, vXD2, vWD, vOD, vWT, vSO = vFG, vFG + 1, vFG + 2, vFG + 3, vFG + 4, vFG + 6
    vXH, vWD2, vOD2, vFT = vFG + 5, vFG + 14, vFG + 15, vFG + 16
    vXS = vFG + 8
    aW = lambda ks, seg: 12 * ks + 4 * seg
    aX = lambda buf, t: 192 + 24 * buf + 4 * t
    aWDN = 224
    nst = [0]
    lab = [0]
    def newlab(n):
        lab[0] += 1; return f"L_{n}_{lab[0]}"
    names = []
    def stamp(name="?"):
        if O.get("amp") and O["amp"][0] == name:
            l_ = newlab("amp")
            A(f"s_cmp_eq_u32 {S(sLAY)}, {O['amp'][1]}\ns_cbranch_scc0 {l_}\ns_memrealtime s[98:99]\ns_waitcnt lgkmcnt(0)\n{l_}:")
        if O["stamps"] and (not O.get("only") or name in O["only"] or name in ("kernarg", "exit")):
            k = nst[0]; nst[0] += 1; names.append(name)
            assert k < 32
            A(f"{'s_memrealtime' if O['stamps'] == 2 else 's_memtime'} s[{sST}:{sST+1}]\ns_lshl_b32 s{sST+2}, {S(sLAY)}, 5\ns_add_u32 s{sST+2}, s{sST+2}, {k}\ns_mov_b32 m0, s{sST+2}")
            A(f"s_waitcnt lgkmcnt(0)\nv_writelane_b32 v255, s{sST}, m0")
    def spin():
        A(f"s_sub_u32 {S(sSPIN)}, {S(sSPIN)}, 1\ns_cbranch_scc1 L_exit")
    def poll(name, loads, tagregs, tag, sleep=0):
        A.label(name)
        for x in loads: A(x)
        A(f"s_sub_u32 {S(sSPIN)}, {S(sSPIN)}, 1\ns_cbranch_scc1 L_exit\ns_waitcnt vmcnt(0)")
        if len(tagregs) == 1: A(f"v_cmp_ne_u32 vcc, {tag}, v{tagregs[0]}")
        else: A(f"v_cmp_ne_u32 vcc, {tag}, v{tagregs[0]}\nv_cmp_ne_u32 s[{sT+6}:{sT+7}], {tag}, v{tagregs[1]}\ns_or_b64 vcc, vcc, s[{sT+6}:{sT+7}]")
        if sleep:
            d = newlab("pd")
            A(f"s_and_b64 exec, exec, vcc\ns_cbranch_scc0 {d}\ns_sleep {sleep}\ns_branch {name}\n{d}:")
        else: A(f"s_and_b64 exec, exec, vcc\ns_cbranch_scc1 {name}")
        A("s_mov_b64 exec, -1")
    cold = []
    def dual(instrs):
        a, b = newlab("slow"), newlab("join")
        cold.append(f"{a}:\n" + "\n".join(x.replace("@", "sc1") for x in instrs) + f"\ns_branch {b}")
        return f"s_cmp_eq_u32 {S(sFAST)}, 1\ns_cbranch_scc0 {a}\n" + "\n".join(x.replace("@", "") for x in instrs) + f"\n{b}:"
    def dual_store(instrs): A(dual(instrs))
    def dump(slot, reg, n, acc=False):
        if O["dump"] != slot: return
        assert n <= 16
        t0, t1 = f"s{sT+6}", f"s{sT+7}"
        A(f"s_lshl_b32 {t0}, s2, 2\ns_add_u32 {t0}, {t0}, {S(sWV)}\ns_lshl_b32 {t0}, {t0}, 12\ns_lshl_b32 {t1}, {S(sLAY)}, 22\ns_add_u32 {t0}, {t0}, {t1}\ns_add_u32 {t0}, {t0}, {DBG}")
        A(f"v_lshlrev_b32 v254, 2, v{vL}")
        A("s_nop 7\ns_nop 7")
        for r in range(n):
            A(f"buffer_store_dword {'a' if acc else 'v'}{reg+r}, v254, {S(SWS,4)}, {t0} offen offset:{256*r}")
        A("s_waitcnt vmcnt(0)")

    if O.get("dbgtime") or O.get("amp"): A("s_memrealtime s[100:101]\ns_memtime s[98:99]")
    A(f"s_cmp_ge_u32 s2, 256\ns_cbranch_scc1 L_end")
    A(f"""s_load_dwordx2 {S(SX,2)}, s[0:1], 0
          s_load_dwordx2 {S(SW,2)}, s[0:1], 8
          s_load_dwordx2 {S(SWS,2)}, s[0:1], 80
          s_load_dwordx2 {S(SWO,2)}, s[0:1], 16
          s_load_dwordx2 {S(SWR,2)}, s[0:1], 32""")
    vT0 = vFG + 20
    A(f"""s_getpc_b64 s[{sT}:{sT+1}]
          L_pc:
          s_lshr_b32 {t2}, s2, 3
          v_and_b32 v{tmp}, 7, v0
          v_lshl_add_u32 v{tmp}, v{tmp}, 5, {t2}
          v_lshlrev_b32 v{tmp}, 7, v{tmp}
          v_min_u32 v{tmp}, L_last-L_pc, v{tmp}
          s_mov_b64 exec, 0xFF
          global_load_dword v{tmp+8}, v{tmp}, s[{sT}:{sT+1}]
          s_mov_b64 exec, -1""")
    vm.issue("code")
    A(f"""v_lshrrev_b32 v{tmp}, 6, v0
          v_min_u32 v{vT0}, 1, v0
          v_and_b32 v{vL}, 63, v0
          s_and_b32 {S(sG)}, s2, 7
          v_readfirstlane_b32 {S(sWV)}, v{tmp}
          s_bfe_u32 {S(sM)}, s2, 0x30003
          s_lshr_b32 {S(sS)}, s2, 6
          s_mov_b32 {S(sLAY)}, 0
          s_add_u32 {S(sR)}, {S(sG)}, {S(sM) if O['rot'] == 'gm' else 0}
          s_and_b32 {S(sR)}, {S(sR)}, 7
          s_lshl_b32 s{sROT}, {S(sR)}, 11""")
    if O["stamps"]: A("v_mov_b32 v255, 0")
    for r, n in ((SX, 2097152), (SW, 1572864), (SWR, 1024)):
        A(f"s_mov_b32 s{r+2}, {n}\ns_mov_b32 s{r+3}, 0x20000")
    A(f"""s_lshr_b32 {t0}, {S(sG)}, 1
          s_lshl_b32 {t0}, {t0}, 2
          s_add_u32 {t0}, {t0}, {S(sS)}
          s_lshl_b32 {t0}, {t0}, 17
          s_and_b32 {t1}, {S(sG)}, 1
          s_lshl_b32 {t1}, {t1}, 10
          s_add_u32 {S(sXB)}, {t0}, {t1}
          s_lshl_b32 {t1}, {S(sWV)}, 15
          s_add_u32 {t1}, {t1}, {S(sXB)}
          s_sub_u32 {t2}, {S(sXB)}, 16384
          s_cselect_b32 {t2}, {OOB}, {t2}
          s_mul_i32 {S(sW3K)}, {S(sWV)}, 3072
          s_lshl_b32 {S(sW14)}, {S(sWV)}, 14
          s_lshl_b32 {S(sW10)}, {S(sWV)}, 10""")
    A(f"""v_lshrrev_b32 v{tmp}, 3, v{vL}
          v_and_b32 v{tmp+1}, 7, v{vL}
          v_and_b32 v{tmp+2}, 6, v{tmp}
          v_xor_b32 v{tmp+2}, v{tmp+2}, v{tmp+1}
          v_lshlrev_b32 v{tmp+2}, 4, v{tmp+2}
          v_lshl_add_u32 v{tmp+2}, v{tmp}, 11, v{tmp+2}
          v_add_u32 v{vXD}, {t1}, v{tmp+2}
          v_add_u32 v{vXH}, {t2}, v{tmp+2}
          v_add_u32 v{vXD2}, {16384-1024}, v{vXD}""")
    A(f"""v_and_b32 v{tmp+2}, 2, v{tmp}
          v_xor_b32 v{tmp+2}, v{tmp+2}, v{tmp+1}
          s_and_b32 {t0}, {S(sWV)}, 1
          s_lshl_b32 {t0}, {t0}, 2
          v_xor_b32 v{tmp+2}, {t0}, v{tmp+2}
          s_lshl_b32 {t1}, {S(sM)}, 7
          v_lshl_add_u32 v{tmp+2}, v{tmp+2}, 4, {t1}
          s_lshl_b32 {t0}, {S(sWV)}, 3
          v_add_u32 v{tmp+3}, {t0}, v{tmp}
          v_lshl_add_u32 v{vOD}, v{tmp+3}, 10, v{tmp+2}
          v_mul_u32_u24 v{tmp+3}, 3072, v{tmp+3}
          v_add_u32 v{vWD}, v{tmp+3}, v{tmp+2}
          v_add_u32 v{vWD2}, 98304, v{vWD}""")
    A(f"""s_add_u32 {t3}, {S(sWV)}, {S(sR)}
          s_and_b32 {t3}, {t3}, 7
          s_lshl_b32 {S(sPB)}, {t3}, 7""")
    gA, gH, gP, gI = tmp + 20, tmp + 21, tmp + 22, tmp + 23
    A(f"""v_and_b32 v{vI}, 15, v{vL}
          v_lshrrev_b32 v{vGq}, 4, v{vL}
          v_lshlrev_b32 v{vL16}, 4, v{vL}
          v_and_b32 v{gA}, 1, v{vGq}
          v_lshrrev_b32 v{gH}, 1, v{vGq}
          v_lshl_add_u32 v{gP}, v{gA}, 1, v{gH}
          v_lshl_add_u32 v{tmp+3}, v{gP}, 4, {t1}""")
    dm = f"s{sDM}"
    def dma_x(lp):
        return [(f"s_add_u32 m0, {S(sW14)}, {lp*2048}\ns_lshr_b32 {dm}, s{sROT+lp}, 4\nbuffer_load_dwordx4 v{vXD}, {S(SX,4)}, {dm} offen {O['xpol']} lds", f"c{2*lp}"),
                (f"buffer_load_dwordx4 v{vXD2}, {S(SX,4)}, {dm} offen offset:1024 {O['xpol']} lds", f"c{2*lp}")]
    def dma_w(ks):
        L = []
        for seg in range(3):
            pre = f"s_add_u32 m0, {S(sW3K)}, {WB + (ks % D) * 12288}\ns_mul_i32 {dm}, s{sROT+(ks>>1)}, 96\n" if seg == 0 else ""
            L.append((pre + f"buffer_load_dwordx4 v{vWD2 if ks & 1 else vWD}, {S(SW,4)}, {dm} offen offset:{seg*1024} lds", f"c{ks}"))
        return L
    def dma_wo(sl):
        L = []
        for t in range(3):
            o = 12 * sl + 4 * t
            if o >= 64: continue
            L.append((f"s_add_u32 m0, {S(sW10)}, {WB + o*1024}\ns_lshl_b32 {dm}, s{sROT+(o>>3)}, 5\nbuffer_load_dwordx4 v{vOD2 if o & 4 else vOD}, {S(SWO,4)}, {dm} offen lds", "wo"))
        return L
    def dma_h(k):
        return [(f"s_add_u32 m0, {S(sW10)}, {XH + k*4096}\ns_xor_b32 {dm}, {S(sPB)}, {k*512}\nbuffer_load_dwordx4 v{vXH}, {S(SX,4)}, {dm} offen lds", f"c{8*k}")]
    def chunk(j):
        if j >= 16: return dma_wo(j % D)
        return (dma_h(1) if j == 7 else []) + (dma_x(7) if j == 11 else []) + (dma_x(j // 2) if j % 2 == 0 and j < 14 else []) + dma_w(j)
    def put(L):
        for x, g in L: A(x); vm.issue(g)
    A(f"s_waitcnt lgkmcnt(0)")
    stamp("kernarg")
    tv, pv = tmp + 4, tmp + 16
    first = chunk(0) + dma_h(0) + chunk(1) + [
        (f"buffer_load_dwordx4 {vr(tmp+12,4)}, v{vL16}, {S(SWR,4)}, 0 offen", "wr"),
        (f"buffer_load_dwordx4 {vr(vWR,4)}, v{tmp+3}, {S(SWR,4)}, 0 offen\nbuffer_load_dwordx4 {vr(vWR+4,4)}, v{tmp+3}, {S(SWR,4)}, 0 offen offset:64", "wr")]
    B = Asm()
    B(f"""s_load_dword {S(sTAG)}, {S(SWS,2)}, 0
          s_load_dwordx2 {S(SOUT,2)}, s[0:1], 64
          s_load_dwordx2 {S(SWG,2)}, s[0:1], 40
          s_load_dwordx2 {S(SWU,2)}, s[0:1], 48
          s_load_dwordx2 {S(SWD,2)}, s[0:1], 56""")
    for p in range(1, 3): B(f"s_add_u32 s{sROT+p}, s{sROT+p-1}, 2048\ns_and_b32 s{sROT+p}, s{sROT+p}, 16383")
    B(f"""s_lshr_b32 {t0}, s2, 3
          s_lshl_b32 {t0}, {t0}, 2
          s_add_u32 {t0}, {t0}, {S(sWV)}
          s_mul_i32 {t0}, {t0}, 12288
          s_add_u32 {t0}, {t0}, 384
          v_lshl_add_u32 v{tv}, v{vL}, 10, {t0}
""")
    u = tmp + 24
    B(f"""v_and_b32 v{u}, 7, v{vI}
          v_lshlrev_b32 v{u}, 7, v{u}
          v_and_b32 v{u+1}, 6, v{vI}
          v_xor_b32 v{u+1}, v{u+1}, v{vGq}
          v_lshl_add_u32 v{u}, v{u+1}, 4, v{u}
          v_xor_b32 v{u+1}, 64, v{u}
          v_lshrrev_b32 v{u+2}, 3, v{vI}
          v_cmp_gt_u32 vcc, 8, v{vI}
          v_lshl_add_u32 v{vA}, v{u+2}, 10, v{u}
          v_lshl_add_u32 v{vA+1}, v{u+2}, 10, v{u+1}
          v_add_u32 v{u}, {XH}, v{u}
          v_add_u32 v{u+1}, {XH}, v{u+1}
          v_mov_b32 v{u+3}, {TB}
          v_cndmask_b32 v{vH}, v{u}, v{u+3}, vcc
          v_cndmask_b32 v{vH+1}, v{u+1}, v{u+3}, vcc
          v_add_u32 v{vSO}, {S(sW14)}, v{vA}
          v_add_u32 v{vSO+1}, {S(sW14)}, v{vA+1}""")
    B(f"""v_lshrrev_b32 v{u}, 2, v{vI}
          v_and_b32 v{u+1}, 3, v{vI}
          v_lshlrev_b32 v{u+1}, 3, v{u+1}
          v_lshl_add_u32 v{u+1}, v{u}, 7, v{u+1}
          v_lshl_or_b32 v{u+2}, v{gA}, 1, v{u+2}
          v_lshl_add_u32 v{u+1}, v{u+2}, 5, v{u+1}
          v_add_u32 v{u+1}, {WB}, v{u+1}
          s_lshl_b32 {t0}, {S(sWV)}, 5
          v_xor_b32 v{vWT}, {t0}, v{u+1}
          v_mul_u32_u24 v{u}, 3072, v{vGq}
          v_add_u32 v{vWT}, v{vWT}, v{u}
          v_lshl_add_u32 v{vWO}, v{vGq}, 10, v{u+1}""")
    for r in range(4): B(f"v_mov_b32 v{vONE+r}, 0x3F803F80")
    B(f"""v_and_b32 v{u}, 7, v{vL}
          v_lshl_add_u32 v{u}, v{u}, 10, v{u+3}
          ds_write_b128 v{u}, {vr(vONE,4)}""")
    n1 = len(B.lines)
    for p in range(3, 8): B(f"s_add_u32 s{sROT+p}, s{sROT+p-1}, 2048\ns_and_b32 s{sROT+p}, s{sROT+p}, 16383")
    for r, n in ((SWS, WS_SIZE), (SWO, 524288), (SL, 0x30000), (SOUT, 2097152), (SWG, 1409024), (SWU, 1409024), (SWD, 1409024)):
        B(f"s_mov_b32 s{r+2}, {n}\ns_mov_b32 s{r+3}, 0x20000")
    B(f"""s_lshl_b32 {S(sC)}, {S(sG)}, 2
          s_add_u32 {S(sC)}, {S(sC)}, {S(sS)}
          s_lshl_b32 {t0}, {S(sC)}, 18
          s_add_u32 {t0}, {t0}, {LOC}
          s_add_u32 s{SL}, s{SWS}, {t0}
          s_addc_u32 s{SL+1}, s{SWS+1}, 0
          s_lshl_b32 {t5}, {S(sM)}, 2
          s_add_u32 {t5}, {t5}, {S(sWV)}
          s_lshl_b32 {t0}, {S(sC)}, 5
          s_add_u32 {t0}, {t0}, {t5}
          s_lshl_b32 {t0}, {t0}, 9
          s_add_u32 {t0}, {t0}, {SENT}
          v_lshl_add_u32 v{tv+2}, v{gH}, 30, {t0}
          v_add_u32 v{tv+2}, v{tv+2}, v{vL16}
          v_mov_b32 v{pv}, -1
          v_mov_b32 v{pv+1}, -1
          v_mov_b32 v{pv+2}, -1
          v_mov_b32 v{pv+3}, -1""")
    B(f"""s_sub_u32 {t0}, {S(sC)}, 1
          s_sub_u32 {t1}, {S(sC)}, 5
          s_cmp_lt_u32 {S(sG)}, 2
          s_cselect_b32 {t1}, 255, {t1}
          s_cmp_eq_u32 {S(sS)}, 0
          s_cselect_b32 {S(sPREV)}, {t1}, {t0}
          s_mov_b32 {S(sSPIN)}, 400000
          s_mov_b32 s{sMA}, 0xAAAAAAAA
          s_mov_b32 s{sMA+1}, 0xAAAAAAAA
          s_mov_b32 s{sMB}, 0xCCCCCCCC
          s_mov_b32 s{sMB+1}, 0xCCCCCCCC
          s_mov_b32 s{sMV}, 0x00F0000F
          s_mov_b32 s{sMV+1}, 0xF0000F00""")
    B(f"""s_sub_u32 {t0}, {S(sM)}, 2
          s_mul_i32 {t1}, {S(sG)}, 6
          s_add_u32 {t1}, {t1}, {t0}
          s_cmp_lt_u32 {t0}, 6
          s_cselect_b32 {t1}, {t1}, 255
          s_cmp_eq_u32 {S(sS)}, {O['ffn_s']}
          s_cselect_b32 {S(sF)}, {t1}, 255
          s_cmp_lt_u32 {S(sF)}, 43
          s_cselect_b32 s{SWG+2}, 1409024, 0
          s_mov_b32 s{SWU+2}, s{SWG+2}
          s_lshl_b32 {S(sW13)}, {S(sWV)}, 13
          s_mul_i32 {t0}, {S(sWV)}, {128*2752}
          s_lshl_b32 {S(sKEY)}, {S(sF)}, 6
          s_add_u32 {S(sKEY)}, {S(sKEY)}, {t0}
          s_mov_b32 {S(sAFF)}, 0""")
    vPW, vXW, vSF, vHC = vFG + 10, vFG + 22, vFG + 24, vFG + 25
    vHV = vFG + 28
    B(f"""s_mov_b32 {S(sI)}, 32768
          s_min_u32 {t1}, {S(sPREV)}, {S(sC)}
          s_lshl_b32 {t1}, {t1}, 14
          s_add_u32 {t1}, {t1}, {SENT + S_HROW}
          v_add_u32 v{vHC}, {t1}, v{vL16}
          s_lshl1_add_u32 {t1}, {S(sWV)}, {S(sR)}
          s_add_u32 {t0}, {t1}, 1
          s_and_b32 {t1}, {t1}, 7
          s_and_b32 {t0}, {t0}, 7
          s_lshl_b32 {S(sH0)}, {t1}, 10
          s_lshl_b32 {S(sH1)}, {t0}, 10
          s_lshl_b32 {t0}, {S(sC)}, 3
          v_and_b32 v{u}, 7, v{vL}
          v_add_lshl_u32 v{vPW+1}, v{u}, {t0}, 7
          s_add_u32 {t0}, {t0}, {S(sM)}
          s_lshl_b32 {t0}, {t0}, 7
          v_lshl_add_u32 v{vT0}, v{vT0}, 30, {t0}
          s_sub_u32 {t0}, {S(sM)}, {S(sR)}
          s_and_b32 {t0}, {t0}, 7
          s_lshl_b32 {t0}, {t0}, 11
          s_add_u32 {S(sRB)}, {t0}, {S(sW14)}
          s_cmp_eq_u32 {S(sPREV)}, 255
          s_cselect_b32 {S(sPS)}, {NINF}, 0
          s_getreg_b32 {S(sFAST)}, hwreg(HW_REG_XCC_ID)
          s_and_b32 {S(sFAST)}, {S(sFAST)}, 15
          v_mov_b32 v{vXW+1}, {S(sFAST)}""")
    if O["b2"] < 0: B("s_waitcnt lgkmcnt(0)")
    B(f"""s_lshr_b32 {S(sTAG)}, {S(sTAG)}, 3
          s_mul_i32 {S(sTAG)}, {S(sTAG)}, 1664525
          s_add_u32 {S(sTAG)}, {S(sTAG)}, 1013904223
          s_lshl_b32 {S(sTAG)}, {S(sTAG)}, 3
          v_mov_b32 v{vXW}, {S(sTAG)}
          s_lshr_b32 {t0}, s2, 3
          s_cmp_ge_u32 {S(sWV)}, 2
          s_cbranch_scc1 L_ft2
          s_cmp_eq_u32 {S(sWV)}, 0
          s_cselect_b32 s{SWR}, s{SWG}, s{SWU}
          s_cselect_b32 s{SWR+1}, s{SWG+1}, s{SWU+1}
          s_mov_b32 s{SWR+2}, 1409024
          s_mul_i32 {t0}, {t0}, {16*2752}
          s_mul_i32 {t2}, {S(sG)}, 384
          s_add_u32 {t0}, {t0}, {t2}
          v_lshrrev_b32 v{vFT}, 2, v{vL}
          v_mul_u32_u24 v{vFT}, 2752, v{vFT}
          v_and_b32 v{u}, 3, v{vL}
          v_lshlrev_b32 v{u}, 7, v{u}
          v_min_u32 v{u}, 380, v{u}
          v_add3_u32 v{vFT}, v{vFT}, v{u}, {t0}
          s_branch L_ftd
          L_ft2:
          s_mul_i32 {t0}, {t0}, 6144
          s_mul_i32 {t2}, {S(sG)}, {192*1024}
          s_add_u32 {t0}, {t0}, {t2}
          s_add_u32 {t0}, {t0}, {S(sW3K)}
          s_sub_u32 {t0}, {t0}, 6144
          s_mov_b32 s{SWR}, s{SWD}
          s_mov_b32 s{SWR+1}, s{SWD+1}
          s_mov_b32 s{SWR+2}, 1409024
          v_min_u32 v{vFT}, 23, v{vL}
          v_lshl_add_u32 v{vFT}, v{vFT}, 7, {t0}
          L_ftd:""")
    B(f"""s_lshl_b32 {t1}, {t5}, 9
          s_lshl_b32 {t2}, {S(sM)}, 11
          s_add_u32 {t2}, {t2}, {S(sW14)}
          s_add_u32 {t2}, {t2}, {X1BUF}
          s_lshl_b32 {t3}, {S(sWV)}, 8
          s_add_u32 {t3}, {t3}, {STATS}
          s_lshl_b32 {t4}, {S(sM)}, 10
          s_lshl_b32 {S(sRT)}, {S(sM)}, 7
          s_add_u32 {S(sRT)}, {S(sRT)}, {FLAGS}
          s_lshl_b32 {t5}, {S(sWV)}, 6""")
    L1_, rest = interleave(B.lines[:n1], [x for x, g in first], O["gap"])
    assert not rest
    for x in L1_: A(x)
    for x, g in first: vm.issue(g, x.count("buffer_load"))
    def touches():
        A(f"""s_mov_b64 exec, 0xFFF
              buffer_load_dword v{tmp+8}, v{tv}, {S(SW,4)}, 0 offen""")
        A("s_mov_b64 exec, -1")
        vm.issue("touch")
    if O["touch"] == -2: touches()
    pfst = (f"buffer_store_dwordx4 {vr(pv,4)}, v{tv+2}, {S(SWS,4)}, 0 offen sc1", "pf")
    B2 = B.lines[n1:]
    if O["b2"] < 0:
        for x in B2: A(x)
    vRA = tmp + 52
    vTW = vFG + 18
    q = tmp
    FL = lines_of(f"""v_lshlrev_b32 v{gI}, 4, v{vI}
          v_lshl_add_u32 v{vOST}, v{gH}, 8, v{gI}
          v_lshl_add_u32 v{vOST}, v{gA}, 14, v{vOST}
          v_add_u32 v{vOST}, {t1}, v{vOST}
          v_add_u32 v{vOLD}, {S(sW14)}, v{vL16}
          v_lshl_add_u32 v{vXST}, v{gP}, 8, v{gI}
          v_add_u32 v{vXST}, {t2}, v{vXST}
          v_add_u32 v{vSTL}, {t3}, v{gI}
          v_add_u32 v{vSTA}, {t4}, v{vSTL}
          v_lshl_add_u32 v{vSTL}, v{vGq}, 10, v{vSTL}
          v_and_b32 v{vSF}, 112, v{gI}
          v_add_u32 v{vSF}, {S(sRT)}, v{vSF}
          v_cmp_eq_u32 vcc, 0, v{vGq}
          v_lshlrev_b32 v{vTI}, 2, v{vI}
          v_cndmask_b32 v{vSF}, v{vSF}, v{vSTA}, vcc
          v_add_u32 v{vTI}, {T_NM}, v{vTI}
          v_lshlrev_b32 v{vTG}, 4, v{vGq}
          v_add_u32 v{vTG}, {T_NM}, v{vTG}
          v_add_u32 v{vOD2}, 32768, v{vOD}
          v_add_u32 v{u}, {t5}, v{vTI}
          v_add_u32 v{u+1}, 2048, v{vTI}
          v_cndmask_b32 v{vTW}, v{u+1}, v{u}, {S(sMV,2)}
          v_cndmask_b32 v{vTW+1}, v{u+1}, v{vTI}, {S(sMV,2)}
          v_lshrrev_b32 v{u}, 3, v{vI}
          v_and_b32 v{u+1}, 7, v{vI}
          v_lshlrev_b32 v{u+1}, 7, v{u+1}
          v_lshl_add_u32 v{u}, v{u}, 10, v{u+1}
          v_and_b32 v{u+1}, 6, v{vI}
          v_lshl_add_u32 v{u}, v{u+1}, 4, v{u}
          v_lshl_add_u32 v{u}, v{vGq}, 3, v{u}
          v_add_u32 v{vRA}, {S(sRB)}, v{u}""")
    FL += [f"v_xor_b32 v{vRA+c}, {32*c}, v{vRA}" for c in range(1, 4)] + [f"v_xor_b32 v{vWO+c}, {32*c}, v{vWO}" for c in range(1, 4)]
    FL += lines_of(f"""v_lshrrev_b32 v{vGA}, 2, v{vL}
          v_mul_u32_u24 v{vGA}, 2752, v{vGA}
          v_and_b32 v{u}, 3, v{vL}
          v_and_b32 v{u+1}, 2, v{vGq}
          v_xor_b32 v{u+1}, v{u}, v{u+1}
          v_lshl_add_u32 v{vGA}, v{u+1}, 4, v{vGA}
          v_add_u32 v{vGA}, {S(sKEY)}, v{vGA}
          v_lshrrev_b32 v{vGT}, 2, v{vI}
          v_lshlrev_b32 v{vGT}, 6, v{vGT}
          v_lshl_add_u32 v{vGT}, v{vGq}, 9, v{vGT}
          v_lshl_add_u32 v{vGT}, v{u}, 3, v{vGT}
          v_lshl_add_u32 v{vGT}, v{gA}, 5, v{vGT}
          v_add_u32 v{vGT}, {S(sW13)}, v{vGT}""")
    FL += lines_of(f"""v_lshlrev_b32 v{u}, 2, v{vGq}
          v_sub_u32 v{u}, v{u}, v{vI}
          v_mov_b32 v{u+1}, {NINF}""")
    for r in range(4):
        FL += lines_of(f"""v_cmp_le_i32 vcc, {9-r}, v{u}
              v_add_u32 v{u+2}, {r+7}, v{u}
              v_cndmask_b32 v{vMP+r}, v{u+1}, 0, vcc
              v_cmp_ge_u32 vcc, 7, v{u+2}
              v_or_b32 v{vMP1+r}, {S(sPS)}, v{vMP+r}
              v_cndmask_b32 v{vMC+r}, v{u+1}, 0, vcc""")
    FL += [f"v_mov_b32 v{u}, 0x0B0B0909"]
    for h in range(2): FL += [f"v_perm_b32 v{u+2}, v{vMP+2*h+1}, v{vMP+2*h}, v{u}", f"v_not_b32 v{vPM+h}, v{u+2}"]
    FL += [f"v_mov_b32 v{vAL}, 1.0", f"v_mov_b32 v{vAL+1}, 0", f"v_mov_b32 v{u}, 0"]
    FL += [f"v_dot2c_f32_bf16 v{u}, v{tmp+12+r}, v{vONE}" for r in range(4)]
    CM = sum(([f"v_cndmask_b32 v{vWR+r}, v{vONE}, v{vWR+r}, {S(sMA,2)}", f"v_cndmask_b32 v{vWR+r}, v{vWR+r}, 0, {S(sMB,2)}"] for r in range(8)), [])
    RD = [f"v_add_f32_dpp v{u}, v{u}, v{u} row_ror:{sh} row_mask:0xf bank_mask:0xf" for sh in (8, 4, 2, 1)]
    RD += [f"v_mov_b32 v{u+1}, v{u}", f"v_permlane32_swap_b32 v{u}, v{u+1}", f"v_add_f32 v{u}, v{u}, v{u+1}", f"v_mov_b32 v{u+1}, v{u}",
           f"v_permlane16_swap_b32 v{u}, v{u+1}", f"v_add_f32 v{u}, v{u}, v{u+1}", f"v_readfirstlane_b32 {S(sSUMW)}, v{u}"]
    for k in range(16): FL += [CM[k]] + RD[k:k + 1]

    def mf(d, a, b, c, shape="16x16x32"):
        return f"v_mfma_f32_{shape}_bf16 {vr(d,4)}, {a}, {b}, {c}"
    def diag(dst, g):
        return [f"v_cndmask_b32 v{g}, v{g}, v{g+1}, {S(sMA,2)}",
                f"v_cndmask_b32 v{g+2}, v{g+2}, v{g+3}, {S(sMA,2)}",
                f"v_cndmask_b32 v{dst}, v{g}, v{g+2}, {S(sMB,2)}"]
    def tbread(t, tb):
        return [f"ds_read2_b32 {vr(tb,2)}, v{vTI} offset0:{16*t} offset1:{80+16*t}",
                f"ds_read_b128 {vr(tb+2,4)}, v{vTG} offset:{64*t}",
                f"ds_read_b128 {vr(tb+6,4)}, v{vTG} offset:{320+64*t}"]
    def post(t, aq, ak, av, tb, dq, dk, dv, dc, pk):
        L = []; p = vr(tb, 2)
        if pk:
            for h in range(2):
                L.append(f"v_pk_fma_f32 {vr(ak+2*h,2)}, {vr(vCSK+2*h,2)}, {p}, {vr(ak+2*h,2)} op_sel_hi:[1,0,1]")
                if t: L.append(f"v_pk_fma_f32 {vr(aq+2*h,2)}, {vr(vCSQ+2*h,2)}, {p}, {vr(aq+2*h,2)} op_sel_hi:[1,0,1]")
            for h in range(2): L.append(f"v_pk_mul_f32 {vr(ak+2*h,2)}, {vr(ak+2*h,2)}, {p} op_sel:[0,1] op_sel_hi:[1,1]")
        else:
            for r in range(4):
                L.append(f"v_fmac_f32 v{ak+r}, v{vCSK+r}, v{tb}")
                if t: L.append(f"v_fmac_f32 v{aq+r}, v{vCSQ+r}, v{tb}")
            for r in range(4): L.append(f"v_mul_f32 v{ak+r}, v{ak+r}, v{tb+1}")
        for h in range(2):
            if t: L.append(f"v_cvt_pk_bf16_f32 v{dq+h}, v{aq+2*h}, v{aq+2*h+1}")
            L.append(f"v_cvt_pk_bf16_f32 v{dk+h}, v{ak+2*h}, v{ak+2*h+1}")
        if t: L.append(f"v_mul_f32 v{dc}, 0x3EB8AA3B, v{tb+1}")
        V = []
        if pk:
            for h in range(2): V.append(f"v_pk_fma_f32 {vr(av+2*h,2)}, {vr(tb+2+2*h,2)}, {vr(vCSV,2)}, {vr(av+2*h,2)} op_sel_hi:[1,0,1]")
            for h in range(2): V.append(f"v_pk_mul_f32 {vr(av+2*h,2)}, {vr(av+2*h,2)}, {vr(tb+6+2*h,2)}")
        else:
            for r in range(4): V.append(f"v_fmac_f32 v{av+r}, v{tb+2+r}, v{vCSV}")
            for r in range(4): V.append(f"v_mul_f32 v{av+r}, v{av+r}, v{tb+6+r}")
        for h in range(2): V.append(f"v_cvt_pk_bf16_f32 v{dv+h}, v{av+2*h}, v{av+2*h+1}")
        return L, V
    def attS(x): return [mf(x["T"] + 2, vr(x["Kp"], 2), vr(x["Q"], 2), vr(x["mp"], 4), "16x16x16"),
                         mf(x["T"] + 6, vr(x["Kc"], 2), vr(x["Q"], 2), vr(vMC, 4), "16x16x16")]
    def attM(x):
        T = x["T"]
        return [f"v_max_f32 v{T+2+r}, v{T+2+r}, v{T+6+r}" for r in range(4)] + \
               [f"v_max3_f32 v{T}, v{T+2}, v{T+3}, v{T+4}", f"v_max_f32 v{T}, v{T}, v{T+5}"]
    def attX2(a, b):
        a, b = a["T"], b["T"]
        return [f"v_permlane32_swap_b32 v{a}, v{b}", f"v_max_f32 v{a+1}, v{a}, v{b}", f"v_max_f32 v{b+1}, v{a}, v{b}",
                f"v_permlane16_swap_b32 v{a+1}, v{b+1}", f"v_max_f32 v{a}, v{a+1}, v{b+1}", f"v_max_f32 v{b}, v{a+1}, v{b+1}",
                f"v_permlane32_swap_b32 v{a}, v{b}"]
    def attX1(x):
        T = x["T"]
        return [f"v_mov_b32 v{T+1}, v{T}", f"v_permlane32_swap_b32 v{T}, v{T+1}", f"v_max_f32 v{T+6}, v{T}, v{T+1}", f"v_max_f32 v{T+7}, v{T}, v{T+1}",
                f"v_permlane16_swap_b32 v{T+6}, v{T+7}", f"v_max_f32 v{T}, v{T+6}, v{T+7}"]
    def attE(x, pk):
        T, c = x["T"], x["c"]; P = T + 6
        L = [f"v_mul_f32 v{T}, v{T}, v{c}"]
        if pk: L += [f"v_pk_fma_f32 {vr(T+2+2*h,2)}, {vr(T+2+2*h,2)}, {vr(c & ~1,2)}, {vr(T,2)} op_sel:[0,{c&1},0] op_sel_hi:[1,{c&1},0] neg_lo:[0,0,1] neg_hi:[0,0,1]" for h in range(2)]
        else: L += [f"v_fma_f32 v{T+2+r}, v{T+2+r}, v{c}, -v{T}" for r in range(4)]
        L += [f"v_exp_f32 v{T+2+r}, v{T+2+r}" for r in range(4)]
        L += [f"v_cvt_pk_bf16_f32 v{T}, v{T+2}, v{T+3}", f"v_cvt_pk_bf16_f32 v{T+1}, v{T+4}, v{T+5}",
              f"v_and_b32 v{P}, v{vPM}, v{T}", f"v_and_b32 v{P+1}, v{vPM+1}, v{T+1}",
              f"v_bfi_b32 v{P+2}, v{vPM}, 0, v{T}", f"v_bfi_b32 v{P+3}, v{vPM+1}, 0, v{T+1}"]
        return L
    def attP(x): return [mf(x["R"], vr(vONE, 2), vr(x["T"], 2), "0", "16x16x16"), mf(x["O"], vr(x["V"], 4), vr(x["T"] + 6, 4), "0")]
    def attF(x, dst, pk):
        Or, R = x["O"], x["R"]
        L = [f"v_rcp_f32 v{R}, v{R}"]
        if pk: L += [f"v_pk_mul_f32 {vr(Or+2*h,2)}, {vr(Or+2*h,2)}, {vr(R,2)} op_sel_hi:[1,0]" for h in range(2)]
        else: L += [f"v_mul_f32 v{Or+r}, v{Or+r}, v{R}" for r in range(4)]
        return L + [f"v_cvt_pk_bf16_f32 v{dst+h}, v{Or+2*h}, v{Or+2*h+1}" for h in range(2)]
    def zipl(*Ls):
        out = []
        for k in range(max(map(len, Ls))):
            for L in Ls:
                if k < len(L): out.append(L[k])
        return out
    def swaps(d): return [f"v_permlane16_swap_b32 v{d+h}, v{d+2+h}" for h in range(2)]

    aE = lambda b, j: 240 + 8 * b + 4 * j
    def reads(ks):
        e = ks & 1; b = ks & 1; L = []
        for seg in range(3):
            for hf in range(2):
                L.append(f"ds_read_b64_tr_b16 {ar(aW(ks,seg)+2*hf,2)}, v{vWT} offset:{(ks%D)*12288 + seg*1024 + hf*512}")
        X = [f"ds_read_b128 {ar(aX(b,0),4)}, v{vH+e} offset:{(ks>>1)*1024}"]
        for t in range(1, 5): X.append(f"ds_read_b128 {ar(aX(b,t),4)}, v{vA+e} offset:{(t-1)*16384 + (ks>>1)*2048}")
        if ks < 14: X.append(f"ds_read_b128 {ar(aX(b,5),4)}, v{vSO+e} offset:{(ks>>1)*2048}")
        if ks in (12, 13):
            X.append(f"ds_read_b128 {ar(aE(b,0),4)}, v{vSO+e} offset:{7*2048}")
            X.append(f"ds_read_b128 {ar(aE(b,1),4)}, v{vH+e} offset:{7*1024}")
        return X + L
    def mfmas(ks):
        b = ks & 1; L = []
        C = lambda d: "0" if ks == 0 else vr(d, 4)
        st = lambda xo, xh: [mf(gOWN, xo, xo, C(gOWN)), mf(gSUM, vr(vONE, 4), xo, C(gSUM)), mf(gHAL, xh, xh, C(gHAL))]
        if ks < 14: L += st(ar(aX(b, 5), 4), ar(aX(b, 0), 4))
        if ks in (12, 13): L += st(ar(aE(b, 0), 4), ar(aE(b, 1), 4))
        QK, V = [], []
        for t in range(5):
            x = ar(aX(b, t), 4)
            QK += [mf(accQ[t], ar(aW(ks, 0), 4), x, C(accQ[t])), mf(accK[t], ar(aW(ks, 1), 4), x, C(accK[t]))]
            V.append(mf(accV[t], x, ar(aW(ks, 2), 4), C(accV[t])))
        return L + QK + V
    tl = lambda t: tmp + 10 * t
    F14 = [f"v_mov_b32 v{q}, v{gHAL}", f"v_mov_b32 v{q+1}, v{gHAL}"] + diag(q + 2, gOWN) + [f"v_permlane32_swap_b32 v{q}, v{q+1}"] + diag(q + 3, gHAL)
    F14 += zipl(*[[f"v_mul_f32 v{d}, 0xBB000000, v{s1}", f"v_mul_f32 v{s2}, 0x3B000000, v{s2}", f"v_fma_f32 v{s2}, -v{d}, v{d}, v{s2}",
                   f"v_max_f32 v{s2}, 0, v{s2}", f"v_add_f32 v{s2}, {EPS}, v{s2}", f"v_rsq_f32 v{d+1}, v{s2}"]
                  for (s1, s2, d) in ((gSUM, q + 2, q + 4), (q, q + 3, q + 6))])
    F14 += [f"v_cmp_eq_u32 vcc, {S(sTAG)}, v{vXS}",
            f"ds_write2_b32 v{vTW}, v{q+4}, v{q+5} offset0:16 offset1:96", f"ds_write2_b32 v{vTW+1}, v{q+6}, v{q+7} offset0:0 offset1:80",
            f"v_cmp_eq_u32 s[{sT+6}:{sT+7}], {S(sFAST)}, v{vXS+1}",
            f"s_and_b32 {t0}, vcc_lo, s{sT+6}\ns_cmp_eq_u32 {t0}, -1\ns_cselect_b32 {S(sFAST)}, {0 if O['force_slow'] else 1}, 0"]
    F13 = [f"v_min3_u32 v{vHV}, v{vHV}, v{vHV+1}, v{vHV+2}", f"v_min3_u32 v{vHV+3}, v{vHV+3}, v{vHV+4}, v{vHV+5}",
           f"v_min3_u32 v{vHV}, v{vHV}, v{vHV+6}, v{vHV+7}", f"v_min_u32 v{vHV}, v{vHV}, v{vHV+3}", f"v_cmp_ne_u32 vcc, -1, v{vHV}",
           f"s_or_b32 {S(sHOK)}, vcc_lo, vcc_hi"] + ([f"s_mov_b32 {S(sHOK)}, 1"] if O.get("force_hslow") else [])
    F15 = sum((tbread(t, tl(t)) for t in range(5)), [])
    F15 += sum(([f"v_mov_b32_dpp v{vCSK+r}, v{accK[0]+r} row_newbcast:0 row_mask:0xf bank_mask:0xf",
                 f"v_mov_b32_dpp v{vCSQ+r}, v{accQ[0]+r} row_newbcast:0 row_mask:0xf bank_mask:0xf"] for r in range(4)), [])
    stamp("setup_done")
    for j in range(2, O["ramp"]): put(chunk(j))
    if O["touch"] == -1: touches()
    A(f"s_waitcnt vmcnt({vm.cnt('c0')}) lgkmcnt(0)\ns_barrier")
    stamp("c0_landed")
    for x in reads(0): A(x)
    nxt = O["ramp"]; last = 21 - O["wo_defer"]
    for ks in range(16):
        if ks < 15: waited = vm.cnt(f'c{ks+1}'); A(f"s_waitcnt vmcnt({waited}) lgkmcnt(0)")
        else: A("s_waitcnt lgkmcnt(0)")
        A("s_barrier")
        if O.get("amp") or (O.get("kst") and ks in O["kst"]): stamp(f"k{ks}")
        if ks == 13: assert vm.cnt("xs") >= waited
        if ks == 15: A(";@aw_on")
        M = mfmas(ks); R = reads(ks + 1) if ks < 15 else []
        Dm = []
        for _ in range(2):
            lim = ks + (O["ahead"] if nxt < 16 else D)
            if nxt <= min(lim, last): Dm += chunk(nxt); nxt += 1
        own = [(vOST, "0", ""), (vOST, S(sI), ""), (vXST, "0", ""), (vXST, "0", "offset:1024"), (vSF, "0", "")]
        lf = ks - O["lf_step"]
        if 0 <= lf < 3 and O["lf_step"] >= 0: Dm += [(f"buffer_store_dwordx4 {vr(pv,4)}, v{a_}, {S(SL,4)}, {b_} offen {c_} sc1", f"lf{lf}") for a_, b_, c_ in own[2*lf:2*lf+2]]
        lf = ks - O["pw_step"]
        if 0 <= lf < 3 and O["pw_step"] >= 0:
            assert O["lf_step"] < 0 or waited <= vm.cnt(f"lf{lf}")
            Dm += [(f"buffer_load_dword v{vPW+2}, v{a_}, {S(SL,4)}, {b_} offen {c_} {O['pwpol']}", "pw") for a_, b_, c_ in own[2*lf:2*lf+2]]
        if ks == O["pf_step"]: Dm.insert(0, pfst)
        if ks == O["xw_step"]:
            Dm.append((f"s_mov_b32 {t0}, {XSLOT}\nbuffer_store_dwordx2 {vr(vXW,2)}, v{vT0}, {S(SWS,4)}, {t0} offen sc1", "xw"))
        if ks == O["xs_step"]: Dm.insert(0, (f"buffer_load_dwordx2 {vr(vXS,2)}, v{vPW+1}, {S(SWS,4)}, {t0} offen sc1", "xs"))
        if ks == O["xs_step"] - 1: Dm += [(f"buffer_load_dwordx4 {vr(vHV+4*e,4)}, v{vHC}, {S(SWS,4)}, {S(sH1 if e else sH0)} offen sc1", "xs") for e in range(2)]
        if ks == O["ft_step"]: Dm.append((f"buffer_load_dword v{vPW+2}, v{vFT}, {S(SWR,4)}, 0 offen {O['fpol']}", "ft"))
        if ks == O.get("ft2_step", -1): Dm.append((f"buffer_load_dword v{vPW+2}, v{vFT}, {S(SWR,4)}, 0 offen sc1", "ft"))
        F = {13: F13, 14: F14, 15: F15}.get(ks, [])
        G = [[] for _ in M]; head = []
        for k, (x, g_) in enumerate(Dm):
            p_ = int(k * (len(M) - 1.0) / len(Dm)) + (1 if len(Dm) < 9 else 0); ls = lines_of(x)
            (G[p_ - 1] if p_ else head).extend(ls[:-1]); G[p_].append(ls[-1]); vm.issue(g_)
        R = zipl([y for y in R if "b128" in y], [y for y in R if "b128" not in y]); ri = 0
        lastg = len(G) - O.get("rdgap", 5)
        for n_, g_ in enumerate(G[:lastg]):
            room = sum(1 for h_ in G[n_ + 1:lastg] if len(h_) < 2)
            while ri < len(R) and (len(g_) < 2 and (not any(y.startswith("ds_") for y in g_) or len(R) - ri > room) or n_ == lastg - 1): g_.append(R[ri]); ri += 1
        if ks < 15: G[-1] += [";@slot", ";@slot"]
        main = head + sum(([m_] + g_ for m_, g_ in zip(M, G)), [])
        if O["fl0"] <= ks < 12: F = FL
        W_, rest = weave([y for y in main], F)
        if F is FL: FL = rest; rest = FL if ks == 11 else []
        for x in W_ + rest:
            if x != ";@slot": A(x)
        if ks == O["b2"]:
            for x in B2: A(x)
        if ks == O["touch"]: touches()
        if ks == O["tour"]:
            A("s_mov_b64 exec, 0")
            for w in range(3): A(f"s_cmp_eq_u32 {S(sWV)}, {w}\ns_cbranch_scc1 L_chain{w}")
            A("s_branch L_chain3\nL_tour_end:\ns_mov_b64 exec, -1")
    late = []
    while nxt <= 21: late += [x for x, g in chunk(nxt)]; nxt += 1
    vV = gOWN
    X1 = {t: dict(Q=accQ[t], Kp=accK[t-1], Kc=accK[t], V=vV + 2 * (t - 1), c=accQ[t] + 2, mp=vMP1 if t == 1 else vMP,
                  T=tl(t), O=accV[t], R=accK[t]) for t in range(1, 5)}
    PL = [post(t, accQ[t], accK[t], accV[t], tl(t), accQ[t], accK[t], vV + 2 * t, accQ[t] + 2, True) for t in range(5)]
    L = PL[0][0] + [f"v_mov_b32 v{vCSV}, v{accV[0]}", f"v_mov_b32 v{vCSV+1}, v{accV[0]}"] + PL[1][0] + [f"v_permlane32_swap_b32 v{vCSV}, v{vCSV+1}"]
    L += PL[1][1] + attS(X1[1])
    for t in (2, 3, 4): L += PL[t][0] + PL[t][1] + attS(X1[t])
    L += PL[0][1]
    for t in (1, 2, 3, 4): L += attM(X1[t])
    L += zipl(attX2(X1[1], X1[2]), attX2(X1[3], X1[4]))
    E = [attE(X1[t], True) for t in (1, 2, 3, 4)]
    vO = accQ[0]
    L += zipl(E[0], E[1]) + E[2][:3] + attP(X1[1]) + attP(X1[2]) + zipl(E[2][3:], E[3]) + zipl(attF(X1[1], vO, True), attF(X1[2], vO + 2, True))[:2]
    L += attP(X1[3]) + attP(X1[4]) + zipl(attF(X1[1], vO, True), attF(X1[2], vO + 2, True))[2:]
    L += [f"s_mov_b32 {t1}, 32768"] + swaps(vO) + [dual([f"buffer_store_dwordx4 {vr(vO,4)}, v{vOST}, {S(SL,4)}, 0 offen @"])]
    L += zipl(attF(X1[3], vO + 4, True), attF(X1[4], vO + 6, True)) + swaps(vO + 4)
    L += [dual([f"buffer_store_dwordx4 {vr(vO+4,4)}, v{vOST}, {S(SL,4)}, {t1} offen @"])]
    if O["stamps"]: stamp("gemm1_end")
    gap = max(1, 150 // (len(late) + 1))
    for k, x in enumerate(L):
        assert not (late and "buffer_store" in x)
        A(x)
        if late and k % gap == gap - 1: A(late.pop(0))
    assert not late
    A(";@aw_off")

    A.label("L_oh")
    stamp("o_stored")
    vRX = tmp
    for c in range(4): A(f"ds_read_b64 {vr(vRX+2*c,2)}, v{vRA+c}")
    accP = tmp + 12
    vOF = tmp + 28
    NOR = 8 if not (O["stamps"] or O["dump"]) else 7
    vFA, vFV, vFP = tmp + 8, tmp + 9, tmp + 10
    A(f"""s_mov_b32 {t0}, {FLAGS}
          s_lshl_b32 {t1}, {S(sM)}, 7
          s_lshl_b32 {t2}, {S(sWV)}, 2
          s_add_u32 {t1}, {t1}, {t2}
          v_mov_b32 v{vFA}, {t1}
          s_mul_i32 {t2}, {S(sLAY)}, {PH_O2-PH_O1}
          s_add_u32 {t2}, {t2}, {S(sTAG)}
          s_add_u32 {t2}, {t2}, {PH_O1}
          v_mov_b32 v{vFV}, {t2}
          v_bfe_u32 v{vFP}, v{vL}, 2, 3
          v_and_b32 v{vFP+1}, 3, v{vL}
          v_lshlrev_b32 v{vFP+1}, 2, v{vFP+1}
          v_lshl_add_u32 v{vFP}, v{vFP}, 7, v{vFP+1}
          s_waitcnt vmcnt(2) lgkmcnt(0)
          s_barrier""")
    NP = 26
    def wof(f, n=4, off=0):
        k = f % NP
        return vr(base + 4 * k + off, n) if k < 18 else ar(192 + 4 * (k - 18) + off, n)
    def word(f): return [f"ds_read_b64_tr_b16 {wof(f,2,2*hf)}, v{vWO+(f&3)} offset:{(f>>2)*4096 + hf*512}" for hf in range(2)]
    def gdma(mat):
        return [f"s_add_u32 m0, {S(sW13)}, {mat*32768 + n*1024}\ns_mov_b32 {dm}, {n*16*2752}\nbuffer_load_dwordx4 v{vGA}, {S(SWU if mat else SWG,4)}, {dm} offen lds" for n in range(8)]
    fE = lambda t, mat, par: vFG + 16 * t + 8 * mat + 4 * par
    def gtr(mat, a0, a1): return [f"ds_read_b64_tr_b16 {vr(fE(t,mat,par)+2*hf,2)}, v{a1 if par else a0} offset:{mat*32768 + t*2048 + hf*256}" for t in range(4) for par in range(2) for hf in range(2)]
    PR = sum((word(f) for f in range(NP)), []); GD = gdma(0); nA, nB = O.get("pra", 24), O.get("prb", 40)
    for x in PR[:nA]: A(x)
    A(f"s_waitcnt vmcnt(0)\ns_mov_b64 exec, 1")
    dual_store([f"buffer_store_dword v{vFV}, v{vFA}, {S(SL,4)}, {t0} offen @"])
    A("s_mov_b64 exec, -1")
    if O.get("stop") == 1: A("s_branch L_exit")
    stamp("o_flagged")
    RI = []
    for c in range(4):
        for h in range(2):
            s_ = vRX + 2 * c + h; d = accP + 4 * c + 2 * h
            RI += [f"v_lshlrev_b32 v{d}, 16, v{s_}", f"v_and_b32 v{d+1}, 0xFFFF0000, v{s_}",
                   f"v_pk_fma_f32 {vr(d,2)}, {vr(d,2)}, {vr(vAL,2)}, {vr(vAL,2)} op_sel:[0,0,1] op_sel_hi:[1,0,1]"]
    ng = O["ng"]
    L_, rest = interleave(PR[nA:nB], GD[:ng], 2)
    for x in L_ + rest: A(x)
    ofl = f"buffer_load_dword v{vFP+1}, v{vFP}, {S(SL,4)}, {t0} offen sc1"
    A(ofl)
    for x in zipl(PR[nB:], RI): A(x)
    A(f"s_waitcnt vmcnt(0)\nv_cmp_ne_u32 vcc, {t2}, v{vFP+1}\ns_cbranch_vccnz L_oslow\nL_ook:")
    def side(fn):
        hot = A.lines; A.lines = []; fn(); cold.append("\n".join(A.lines)); A.lines = hot
    side(lambda: (A("L_oslow:\ns_mov_b32 exec_lo, vcc_lo\ns_mov_b32 exec_hi, vcc_hi"), poll("L_opoll", [ofl], [vFP + 1], t2), A("s_branch L_ook")))
    stamp("o_seen")
    old = lambda ks: f"buffer_load_dwordx4 {vr(vOF+4*(ks%NOR),4)}, v{vOLD}, {S(SL,4)}, s{sROT+(ks>>1)} offen offset:{(ks&1)*1024} sc1"
    A(";@aw_on")
    NUP = O["nup"]
    for ks in range(NUP): A(old(ks))
    A("s_waitcnt lgkmcnt(0)")
    GU = lines_of(GD[ng:] + gdma(1))
    pend = []
    for f in range(64):
        ks, c = f >> 2, f & 3
        if c == 0: A(f";@need {vr(vOF + 4 * (ks % NOR), 4)}, " + ", ".join(wof(f + k) for k in range(4)))
        A(mf(accP + 4 * c, wof(f), vr(vOF + 4 * (ks % NOR), 4), vr(accP + 4 * c, 4)))
        if f + NP < 64: pend += word(f + NP)
        n = 2
        if c == 0 and ks + NUP < 16: A(old(ks + NUP)); n = O.get("p2a", 1)
        if c == 3: n = 1
        for _ in range(n):
            if pend: A(pend.pop(0))
            elif GU and ks + NUP >= 16: A(GU.pop(0))
    for x in GU: A(x)
    assert not pend and NUP < NOR
    A(";@aw_off")
    stamp("p2_end")
    vX = base
    gS, gG = tmp, tmp + 4
    A(f"s_add_u32 {t2}, {t2}, 1\ns_mov_b32 {t1}, 4096")
    for c in range(4):
        for h in range(2): A(f"v_cvt_pk_bf16_f32 v{vX+2*c+h}, v{accP+4*c+2*h}, v{accP+4*c+2*h+1}")
        if c & 1:
            if c == 3: A(mf(gG, vr(vX, 4), vr(vX, 4), "0")); A(mf(gS, vr(vWR, 4), vr(vX, 4), "0"))
            for x in swaps(vX + 2 * c - 2): A(x)
    A(mf(gG, vr(vX + 4, 4), vr(vX + 4, 4), vr(gG, 4))); A(mf(gS, vr(vWR + 4, 4), vr(vX + 4, 4), vr(gS, 4)))
    g0, g1 = tmp + 16, tmp + 20
    vU, vKA, vKB, vPI = tmp + 28, tmp + 29, tmp + 30, tmp + 26
    A(f"""s_lshl_b32 {t4}, {S(sC)}, 6
          s_lshl_b32 {t5}, {S(sWV)}, 4
          s_add_u32 {t4}, {t4}, {t5}
          v_add_u32 v{vU}, {t4}, v{vI}
          s_lshl_b32 {t4}, {S(sWV)}, 2
          s_add_u32 {t4}, {t4}, {T_KEY}
          v_mov_b32 v{vKA}, {t4}
          v_mov_b32 v{vKB}, {T_KEY}""")
    for x in diag(gS + 2, gG): A(x)
    A(f"v_mov_b32 v{gS+3}, {t2}\ns_mov_b64 exec, {S(sMV,2)}")
    dual_store([f"buffer_store_dwordx4 {vr(gS,4)}, v{vSTA}, {S(SL,4)}, 0 offen @"])
    A(f"s_mov_b64 exec, -1\ns_cmp_eq_u32 {S(sLAY)}, 0\ns_cbranch_scc0 L_nox1")
    dual_store([f"buffer_store_dwordx4 {vr(vX,4)}, v{vXST}, {S(SL,4)}, 0 offen @",
                f"buffer_store_dwordx4 {vr(vX+4,4)}, v{vXST}, {S(SL,4)}, 0 offen offset:1024 @"])
    vWDR = base + 24
    vXA = tmp + 50
    B = lines_of(f"""s_add_u32 {t4}, {S(sTAG)}, {PH_X1}
          v_xor_b32 v{tmp+4}, 32, v{vGT}
          v_mov_b32 v{vFV}, {t4}
          s_mov_b32 s{SWG+2}, 0
          s_mov_b32 s{SWU+2}, 0
          v_add_u32 v{vXA}, {X1BUF}, v{vL16}""") + gtr(0, vGT, tmp + 4)
    A("s_waitcnt vmcnt(11)")
    for x in B: A(x)
    A(f"s_waitcnt vmcnt(0)\ns_mov_b64 exec, 1")
    dual_store([f"buffer_store_dword v{vFV}, v{vFA}, {S(SL,4)}, {t0} offen offset:16 @"])
    A("s_mov_b64 exec, -1")
    A.label("L_nox1")
    stamp("stats_out")
    A(f"""s_lshl_b32 {t3}, {S(sLAY)}, 5
          s_add_u32 {t3}, {t3}, {S(sC)}
          s_lshl_b32 {t5}, {t3}, 7
          s_add_u32 {t5}, {t5}, {CAND}
          s_lshl_b32 {t3}, {S(sC)}, 4
          s_add_u32 {t3}, {t3}, {S(sLAY)}
          s_lshl_b32 {t3}, {t3}, 10
          s_add_u32 {t3}, {t3}, {SENT + S_CROW}""")
    poll("L_spoll", [f"buffer_load_dwordx4 {vr(g0,4)}, v{vSTL}, {S(SL,4)}, 0 offen sc1",
                     f"buffer_load_dwordx4 {vr(g1,4)}, v{vSTL}, {S(SL,4)}, {t1} offen sc1"], [g0 + 3, g1 + 3], t2)
    stamp("stats_seen")
    def red3(a, b, c, d):
        A(f"""v_permlane32_swap_b32 v{a}, v{b}
              v_permlane32_swap_b32 v{c}, v{d}
              v_add_f32 v{a}, v{a}, v{b}
              v_add_f32 v{c}, v{c}, v{d}
              v_permlane16_swap_b32 v{a}, v{c}
              v_add_f32 v{b}, v{a}, v{c}
              v_add_f32 v{c}, v{a}, v{c}
              v_permlane16_swap_b32 v{b}, v{c}
              v_mov_b32 v{a}, v{b}
              v_permlane32_swap_b32 v{a}, v{b}""")
    A(f"v_pk_add_f32 {vr(g0,2)}, {vr(g0,2)}, {vr(g1,2)}\nv_add_f32 v{g0+3}, v{g0+2}, v{g1+2}\nv_add_f32 v{g0+2}, v{g0+2}, v{g1+2}")
    red3(g0, g0 + 1, g0 + 2, g0 + 3)
    nm, sc2, rs, var, vk = g1, g1 + 1, g1 + 2, g0 + 2, tmp + 27
    A(f"""v_mul_f32 v{nm}, 0xBB000000, v{g0}
          v_mul_f32 v{var}, 0x3B000000, v{var}
          v_fma_f32 v{var}, -v{nm}, v{nm}, v{var}
          v_max_f32 v{var}, 0, v{var}
          v_add_f32 v{rs}, {EPS}, v{var}
          v_rsq_f32 v{rs}, v{rs}
          v_fma_f32 v{vk}, v{nm}, {S(sSUMW)}, v{g0+1}
          v_mul_f32 v{vk}, v{vk}, v{rs}
          v_ashrrev_i32 v{g0+1}, 31, v{vk}
          v_or_b32 v{g0+1}, 0x80000000, v{g0+1}
          v_xor_b32 v{vk}, v{vk}, v{g0+1}
          v_and_b32 v{vk}, 0xFFFFF800, v{vk}
          v_or_b32 v{vk}, v{vk}, v{vU}
          v_add_f32 v{vAL}, 1.0, v{rs}
          v_mul_f32 v{vAL+1}, v{nm}, v{rs}
          v_max_u32_dpp v{g0}, v{vk}, v{vk} row_ror:8 row_mask:0xf bank_mask:0xf
          v_mul_f32 v{sc2}, v{vAL}, v{vAL}
          v_mov_b32 v{g0+1}, {EPS}
          v_max_u32_dpp v{g0}, v{g0}, v{g0} row_ror:4 row_mask:0xf bank_mask:0xf
          v_fma_f32 v{sc2}, v{var}, v{sc2}, v{g0+1}
          v_mov_b32 v{tmp+25}, {t2}
          v_max_u32_dpp v{g0}, v{g0}, v{g0} row_ror:2 row_mask:0xf bank_mask:0xf
          v_rsq_f32 v{sc2}, v{sc2}
          v_bfe_u32 v{vPI}, v{vXST}, 8, 2
          v_max_u32_dpp v{g0}, v{g0}, v{g0} row_ror:1 row_mask:0xf bank_mask:0xf
          ds_write_b32 v{vKA}, v{g0}
          buffer_load_dword v{vFP+1}, v{vFP}, {S(SL,4)}, {t0} offen offset:16 sc1
          v_mul_f32 v{sc2}, v{sc2}, v{vAL}
          s_add_u32 {t1}, {S(sM)}, {S(sWV)}
          s_lshl_b32 {t1}, {t1}, 26
          v_mov_b32 v{vU}, {t1}""")
    vXF = base + 8
    for d in range(4): A(f"v_lshlrev_b32 v{vXF+2*d}, 16, v{vX+d}\nv_and_b32 v{vXF+2*d+1}, 0xFFFF0000, v{vX+d}")
    A(f"""s_waitcnt lgkmcnt(0)
          s_barrier
          ds_read_b128 {vr(tmp+32,4)}, v{vKB}""")
    for d in range(4, 8): A(f"v_lshlrev_b32 v{vXF+2*d}, 16, v{vX+d}\nv_and_b32 v{vXF+2*d+1}, 0xFFFF0000, v{vX+d}")
    A(f"""v_lshlrev_b32 v{vPI}, 4, v{vPI}
          s_waitcnt lgkmcnt(0)
          v_max3_u32 v{tmp+24}, v{tmp+32}, v{tmp+33}, v{tmp+34}
          v_max_u32 v{tmp+24}, v{tmp+24}, v{tmp+35}
          s_mov_b64 exec, 1
          buffer_store_dwordx2 {vr(tmp+24,2)}, v{vU}, {S(SWS,4)}, {t5} offen sc1
          s_mov_b64 exec, -1""")
    stamp("cand_out")
    A(f"s_cmp_eq_u32 {S(sLAY)}, 0\ns_cbranch_scc0 L_final")

    A(f"""s_nop 0
          s_lshl_b32 {S(sPB)}, {S(sWV)}, 12
          v_readfirstlane_b32 {S(sKEY)}, v{tmp+24}
          v_and_b32 v{tmp+13}, 112, v{vL16}
          s_waitcnt vmcnt(1)
          v_cmp_ne_u32 vcc, {t4}, v{vFP+1}
          s_cbranch_vccnz L_xslow
          L_xok:""")
    cold.append(f"""L_xslow:
          buffer_load_dword v{vFP+1}, v{vFP}, {S(SL,4)}, {t0} offen offset:16 sc1
          s_sub_u32 {S(sSPIN)}, {S(sSPIN)}, 1
          s_cbranch_scc1 L_exit
          s_waitcnt vmcnt(0)
          v_cmp_ne_u32 vcc, {t4}, v{vFP+1}
          s_cbranch_vccnz L_xslow
          s_branch L_xok""")
    stamp("x_seen")
    A(f"""s_cmp_eq_u32 {S(sM)}, 1
          s_cbranch_scc1 L_pub1
          L_pubr:""")
    cold.append(f"""L_pub1:
          s_and_b32 {t4}, {S(sKEY)}, 15
          s_lshl_b32 {t5}, {t4}, 4
          s_add_u32 {t5}, {t5}, {S(sW14)}
          s_add_u32 {t5}, {t5}, {X1BUF}
          v_lshlrev_b32 v{tmp+4}, 8, v{vL}
          s_bfe_u32 {t1}, {S(sKEY)}, 0x20004
          s_cmp_eq_u32 {t1}, {S(sWV)}
          s_cselect_b32 {t1}, 0, {OOB}
          v_or_b32 v{tmp+4}, {t1}, v{tmp+4}
          buffer_load_dwordx4 {vr(tmp+40,4)}, v{tmp+4}, {S(SL,4)}, {t5} offen sc1
          v_lshrrev_b32 v{tmp+4}, 3, v{vL}
          v_lshl_add_u32 v{tmp+4}, v{tmp+4}, 8, v{tmp+13}
          s_add_u32 {t5}, {S(sPB)}, {X1BUF + 49152 + 128}
          buffer_load_dwordx4 {vr(tmp+32,4)}, v{tmp+4}, {S(SL,4)}, {t5} offen sc1
          buffer_load_dwordx4 {vr(tmp+36,4)}, v{tmp+4}, {S(SL,4)}, {t5} offen offset:2048 sc1
          v_readlane_b32 {t5}, v{vAL+1}, {t4}
          v_readlane_b32 {t4}, v{rs}, {t4}
          s_branch L_pubr""")
    def xdma(t):
        L = []
        for e, sh in enumerate((sH0, sH1)):
            L.append(f"s_add_u32 m0, {S(sPB)}, {(t-1)*16384 + e*2048}\ns_lshl1_add_u32 {dm}, {S(sh)}, {(t-1)*16384}\nbuffer_load_dwordx4 v{vXA}, {S(SL,4)}, {dm} offen sc1 lds")
            L.append(f"buffer_load_dwordx4 v{vXA}, {S(SL,4)}, {dm} offen offset:1024 sc1 lds")
        return L
    B = lines_of(f"""s_lshl_b32 {t2}, {S(sWV)}, 6
          v_add_u32 v{g0+1}, {t2}, v{vTI}
          ds_write2_b32 v{g0+1}, v{nm}, v{sc2} offset0:16 offset1:96
          ds_write_b32 v{g0+1}, v{rs} offset:{4*176}
          v_mov_b32 v{vA}, v{vL16}
          v_add_u32 v{vA+1}, 1024, v{vL16}
          v_lshl_add_u32 v{tmp+6}, v{vGq}, 7, v{tmp+13}
          v_cmp_gt_u32 vcc, 8, v{vI}
          v_add_u32 v{tmp+6}, {XH}, v{tmp+6}
          v_add_u32 v{tmp+7}, 512, v{tmp+6}
          v_cndmask_b32 v{vH}, v{tmp+6}, v{vH}, vcc
          v_cndmask_b32 v{vH+1}, v{tmp+7}, v{vH+1}, vcc""")
    L_, rest = interleave(B, xdma(1) + xdma(2), 2)
    for x in L_ + rest: A(x)
    A(f"""s_cmp_eq_u32 {S(sM)}, 1
          s_cbranch_scc1 L_pub3
          s_waitcnt vmcnt(4) lgkmcnt(0)
          L_pubs:
          s_barrier""")
    cold.append(f"L_pub3:\nv_mov_b32 v{tmp+4}, {t5}\nv_or_b32 v{tmp+5}, {t1}, v{vL16}\ns_waitcnt vmcnt(8)\n" + "".join(f"""v_lshlrev_b32 v{tmp+6}, 16, v{tmp+40+d}
              v_and_b32 v{tmp+7}, 0xFFFF0000, v{tmp+40+d}
              v_fma_f32 v{tmp+6}, v{tmp+6}, {t4}, v{tmp+4}
              v_fma_f32 v{tmp+7}, v{tmp+7}, {t4}, v{tmp+4}
              v_cvt_pk_bf16_f32 v{tmp+40+d}, v{tmp+6}, v{tmp+7}
              """ for d in range(4)) + f"""buffer_store_dwordx4 {vr(tmp+40,4)}, v{tmp+5}, {S(SWS,4)}, {t3} offen sc1
          s_lshl_b32 {t4}, {S(sWV)}, 11
          s_add_u32 {t4}, {t4}, {t3}
          s_sub_u32 {t4}, {t4}, {S_CROW - S_HROW}
          buffer_store_dwordx4 {vr(tmp+32,4)}, v{vL16}, {S(SWS,4)}, {t4} offen sc1
          buffer_store_dwordx4 {vr(tmp+36,4)}, v{vL16}, {S(SWS,4)}, {t4} offen offset:1024 sc1
          s_cmp_eq_u32 {S(sWV)}, 3
          s_cselect_b32 {t1}, 0, {OOB}
          v_or_b32 v{tmp+5}, {t1}, v{tmp+13}
          s_lshl_b32 {t4}, {S(sC)}, 7
          s_add_u32 {t4}, {t4}, {HST}
          s_mov_b64 exec, 0xFF00
          buffer_store_dwordx4 {vr(g1,4)}, v{tmp+5}, {S(SWS,4)}, {t4} offen sc1
          s_mov_b64 exec, -1
          s_waitcnt vmcnt(4) lgkmcnt(0)
          s_branch L_pubs""")
    stamp("x1_landed")
    pQ = lambda t: base + 2 * (t - 1); pK = lambda t: base + 8 + 2 * t; pV = lambda t: base + 18 + 2 * t
    cS = lambda t: base + 28 + (t - 1)
    order = [1, 2, 3, 4, 0]
    aS = lambda t: base + 32 + 12 * (order.index(t) & 1)
    tB = lambda t: base + 56 + 10 * (order.index(t) & 1)
    TA, TBt, vO2, vHS, vHR = base + 76, base + 94, base + 112, base + 116, base + 120
    vHA, vHB, vO3 = base + 128, base + 129, base + 130
    NB, LA = 8, 6
    def tile_stream(tiles, rdf=None, acc=None, hasq=None, sync=None):
        seq = [(t, ks) for t in tiles for ks in range(16)]
        fr = lambda n: 192 + 4 * (n % NB)
        def rd(n):
            t, ks = seq[n]
            if rdf: return rdf(fr(n), ks)
            if t == 0: return f"ds_read_b128 {ar(fr(n),4)}, v{vH+(ks&1)} offset:{(ks>>1)*1024}"
            return f"ds_read_b128 {ar(fr(n),4)}, v{vA+(ks&1)} offset:{(t-1)*16384 + (ks>>1)*2048}"
        out = {t: [] for t in tiles}
        out[tiles[0]] += [rd(n) for n in range(LA)]
        for n, (t, ks) in enumerate(seq):
            a = acc if acc else aS(t); x = ar(fr(n), 4); C = lambda d: "0" if ks == 0 else vr(d, 4)
            L = out[t]
            if n % 2 == 0: (out[seq[n-1][0]] if n else L).append(f";@need {x}, {ar(fr(n+1),4)}" if n else f";@need {x}")
            L.append(mf(a + 4, ar(aW(ks, 1), 4), x, C(a + 4)))
            if sync and n in sync: L += lines_of(sync[n])
            if n + LA < len(seq): L.append(rd(n + LA))
            if t or hasq: L.append(mf(a, ar(aW(ks, 0), 4), x, C(a)))
            L.append(mf(a + 8, x, ar(aW(ks, 2), 4), C(a + 8)))
        return out
    def post2(t, pk): return post(t, aS(t), aS(t) + 4, aS(t) + 8, tB(t), pQ(t) if t else None, pK(t), pV(t), cS(t) if t else None, pk)
    def X2(t, T): return dict(Q=pQ(t), Kp=pK(t - 1), Kc=pK(t), V=pV(t - 1), c=cS(t), mp=vMP1 if t == 1 else vMP, T=T, O=T + 10, R=T + 14)
    def emit(wv_):
        for x in wv_[0] + wv_[1]: A(x)
    bk = tmp
    def bload(): return f"buffer_load_dwordx2 {vr(bk,2)}, v{bk+2}, {S(SWS,4)}, {t3} offen sc1"
    def bred(dst):
        A(f"v_max_u32_dpp v{bk+3}, v{bk}, v{bk} row_ror:8 row_mask:0xf bank_mask:0xf")
        for sh in (4, 2, 1): A(f"v_max_u32_dpp v{bk+3}, v{bk+3}, v{bk+3} row_ror:{sh} row_mask:0xf bank_mask:0xf")
        A(f"""v_readlane_b32 {t2}, v{bk+3}, 0
              v_readlane_b32 {dst}, v{bk+3}, 16
              s_max_u32 {dst}, {t2}, {dst}""")
    def bpoll(name, sleep, mask="-1"):
        A(f"""v_lshlrev_b32 v{bk+2}, 7, v{vL}
              v_mov_b32 v{bk}, 0
              s_lshl_b32 {t3}, {S(sLAY)}, 12
              s_add_u32 {t3}, {t3}, {CAND}
              s_mul_i32 {t5}, {S(sLAY)}, {PH_S2-PH_S1}
              s_add_u32 {t5}, {t5}, {S(sTAG)}
              s_add_u32 {t5}, {t5}, {PH_S1}
              s_mov_b32 exec_hi, 0""")
        if mask == "-1": poll(name, [bload()], [bk + 1], t5, sleep)
        else:
            A(f"""{name}:
                  {bload()}
                  s_sub_u32 {S(sSPIN)}, {S(sSPIN)}, 1
                  s_cbranch_scc1 L_exit
                  s_waitcnt vmcnt(0)
                  v_cmp_ne_u32 vcc, {t5}, v{bk+1}
                  s_and_b32 exec_lo, exec_lo, vcc_lo
                  s_andn2_b32 {t2}, exec_lo, {mask}
                  s_cbranch_scc1 {name}
                  s_mov_b32 {mask}, exec_lo
                  v_mov_b32 v{bk}, 0
                  s_mov_b64 exec, -1""")
        bred(S(sKEY))
    xr = tmp + 4; fa = tmp + 20; vRW = tmp + 48
    def ffn_code():
        A(f"""L_slow_ffn0:
              s_lshl_b32 {t3}, {S(sWV)}, 8
              s_lshl_b32 {t5}, {S(sF)}, 15
              s_add_u32 {t3}, {t3}, {t5}
              s_add_u32 {t5}, {t3}, 16384
              v_lshlrev_b32 v{tmp+5}, 12, v{vGq}
              v_lshl_add_u32 v{tmp+5}, v{vI}, 4, v{tmp+5}
              v_xor_b32 v{tmp+4}, 32, v{vGT}""")
        for x in zipl([f"buffer_load_dwordx4 {vr(vWDR+4*e,4)}, v{tmp+5}, {S(SWD,4)}, {t5 if e & 1 else t3} offen offset:{(e>>1)*1024}" for e in range(8)],
                      gtr(1, vGT, tmp + 4)[0::2], gtr(1, vGT, tmp + 4)[1::2]): A(x)
        A(f"s_mov_b32 {t4}, 0x05040100\ns_mov_b32 {t5}, 0x07060302\ns_waitcnt lgkmcnt(0)\ns_barrier")
        for d in range(4):
            A(f"s_waitcnt vmcnt({6-2*d})")
            for n in range(8):
                A(f"v_perm_b32 v{tmp+4+(n&1)}, v{vWDR+8*d+4+(n>>1)}, v{vWDR+8*d+(n>>1)}, {t5 if n & 1 else t4}\nv_accvgpr_write_b32 a{aWDN+4*n+d}, v{tmp+4+(n&1)}")
        A.label("L_ffn")
        A(f"v_lshlrev_b32 v{vRW}, 4, v{vGq}")
        bpoll("L_bpoll", 0, S(sAFF))
        stamp("b_seen")
        A.label("L_rload")
        A(f"""s_bfe_u32 {t4}, {S(sKEY)}, 0x50006
              s_lshl4_add_u32 {t4}, {t4}, {S(sLAY)}
              s_lshl2_add_u32 {t4}, {t4}, {S(sWV)}
              s_lshl_b32 {t4}, {t4}, 8
              s_add_u32 {t4}, {t4}, {SENT + S_CROW}""")
        rowld = [f"buffer_load_dwordx4 {vr(xr+4*t,4)}, v{vRW}, {S(SWS,4)}, {t4} offen offset:{64*t} sc1" for t in range(4)]
        for x in rowld: A(x)
        A(f"s_cmp_eq_u32 {S(sLAY)}, 0\ns_cbranch_scc1 L_join_t1")
        A(f"""s_cmp_eq_u32 {S(sAFF)}, 0
              s_cbranch_scc1 L_slow_rchk
              s_mov_b32 exec_hi, 0
              s_mov_b32 exec_lo, {S(sAFF)}
              s_mov_b32 {S(sAFF)}, 0""")
        poll("L_bpollb", [bload()], [bk + 1], t5)
        bred(t1)
        stamp("b2_seen")
        A(f"""s_cmp_eq_u32 {t1}, {S(sKEY)}
              s_mov_b32 {S(sKEY)}, {t1}
              s_cbranch_scc0 L_rload""")
        A.label("L_slow_rchk")
        A("s_waitcnt vmcnt(0)")
        stamp("row_in")
        for t in range(4):
            for k in range(4):
                A(mf(fa + 4 * k, vr(xr + 4 * t, 4), vr(fE(t, k >> 1, k & 1), 4), "0" if t == 0 else vr(fa + 4 * k, 4)))
        A(f"""s_lshl_b32 {t5}, {S(sWV)}, 8
          s_add_u32 {t5}, {t5}, {T_FFN}
          v_lshlrev_b32 v{bk}, 4, v{vI}
          v_add_u32 v{bk}, {t5}, v{bk}
          v_and_b32 v{bk+1}, 3, v{vI}
          v_lshl_add_u32 v{bk+1}, v{vGq}, 2, v{bk+1}
          v_lshlrev_b32 v{bk+1}, 4, v{bk+1}
          v_add_u32 v{bk+1}, {T_FFN}, v{bk+1}
          v_cmp_u_f32 vcc, v{fa}, v{fa}
          v_mov_b32 v{fa+1}, v{fa+4}
          v_mov_b32 v{fa+2}, v{fa+8}
          v_mov_b32 v{fa+3}, v{fa+12}
          s_cbranch_vccnz L_rretry
          s_mov_b64 exec, 0xFFFF
          ds_write_b128 v{bk}, {vr(fa,4)}
          s_mov_b64 exec, -1
          s_waitcnt lgkmcnt(0)
          s_barrier""")
        for w in range(4): A(f"ds_read_b128 {vr(xr+4*w,4)}, v{bk+1} offset:{256*w}")
        A(f"""s_and_b32 {t4}, {S(sF)}, 31
          s_lshl3_add_u32 {t4}, {t4}, {S(sLAY)}
          s_lshr_b32 {t5}, {S(sF)}, 5
          s_lshl1_add_u32 {t4}, {t4}, {t5}
          s_lshl2_add_u32 {t4}, {t4}, {S(sWV)}
          s_lshl_b32 {t4}, {t4}, 8
          s_add_u32 {t4}, {t4}, {SENT + S_Y}
          s_waitcnt lgkmcnt(0)""")
        for h in range(2):
            A(f"v_pk_add_f32 {vr(xr+2*h,2)}, {vr(xr+2*h,2)}, {vr(xr+4+2*h,2)}\nv_pk_add_f32 {vr(xr+8+2*h,2)}, {vr(xr+8+2*h,2)}, {vr(xr+12+2*h,2)}")
        for h in range(2): A(f"v_pk_add_f32 {vr(xr+2*h,2)}, {vr(xr+2*h,2)}, {vr(xr+8+2*h,2)}")
        A(f"""v_mul_f32 v{xr+4}, 0xBFB8AA3B, v{xr}
          v_mul_f32 v{xr+5}, 0xBFB8AA3B, v{xr+1}
          v_exp_f32 v{xr+4}, v{xr+4}
          v_exp_f32 v{xr+5}, v{xr+5}
          v_pk_mul_f32 {vr(xr,2)}, {vr(xr,2)}, {vr(xr+2,2)}
          v_add_f32 v{xr+4}, 1.0, v{xr+4}
          v_add_f32 v{xr+5}, 1.0, v{xr+5}
          v_rcp_f32 v{xr+4}, v{xr+4}
          v_rcp_f32 v{xr+5}, v{xr+5}
          s_nop 0
          v_pk_mul_f32 {vr(xr,2)}, {vr(xr,2)}, {vr(xr+4,2)}
          v_cvt_pk_bf16_f32 v{xr}, v{xr}, v{xr+1}""")
        for d in range(4): A(f"v_mov_b32_dpp v{xr+4+d}, v{xr} quad_perm:[{d},{d},{d},{d}] row_mask:0xf bank_mask:0xf")
        yo = tmp + 16
        for n in range(8): A(mf(yo + 4 * n, vr(xr + 4, 4), ar(aWDN + 4 * n, 4), "0"))
        for d in range(4): A(f"v_cvt_pk_bf16_f32 v{xr+d}, v{yo+8*d}, v{yo+8*d+4}")
        A(f"""s_mov_b64 exec, 0xFFFF
          buffer_store_dwordx4 {vr(xr,4)}, v{vL16}, {S(SWS,4)}, {t4} offen sc1
          s_mov_b64 exec, -1
          s_cmp_eq_u32 {S(sLAY)}, 0
          s_cbranch_scc1 L_join_t2
          s_branch L_ffn_done
          L_rretry:""")
        for x in rowld: A(x)
        A(f"s_sub_u32 {S(sSPIN)}, {S(sSPIN)}, 1\ns_cbranch_scc0 L_slow_rchk\ns_branch L_exit")
    side(ffn_code)
    x2, x3, x4, x1 = X2(2, TA), X2(3, TBt), X2(4, TA), X2(1, TBt)
    hsld = f"buffer_load_dwordx4 {vr(vHS,4)}, v{vHA}, {S(SWS,4)}, 0 offen sc1"
    hrld = [f"buffer_load_dwordx4 {vr(vHR,4)}, v{vHB}, {S(SWS,4)}, {S(sH0)} offen sc1", f"buffer_load_dwordx4 {vr(vHR+4,4)}, v{vHB}, {S(SWS,4)}, {S(sH1)} offen sc1"]
    sHT = sPS
    hset = [f"s_lshl_b32 {t2}, {S(sPREV)}, 7", f"s_add_u32 {t2}, {t2}, {HST}", f"s_lshl_b32 {t3}, {S(sPREV)}, 14", f"s_add_u32 {t3}, {t3}, {SENT + S_HROW}",
            f"s_add_u32 {t0}, {S(sTAG)}, {PH_S1}",
            f"s_cmp_eq_u32 {S(sPREV)}, 255\ns_cselect_b32 {t2}, {OOB}, {t2}\ns_cselect_b32 {t3}, {OOB}, {t3}\ns_cselect_b32 {S(sHT)}, 0, {t0}",
            f"v_and_b32 v{vHA}, 112, v{vL16}", f"v_add_u32 v{vHA}, {t2}, v{vHA}", f"v_add_u32 v{vHB}, {t3}, v{vL16}",
            f"v_and_b32 v{vO3}, 1, v{vGq}", f"v_lshlrev_b32 v{vO3}, 16, v{vO3}", f"v_sub_u32 v{vO3}, v{vOST}, v{vO3}", f"v_add_u32 v{vO3}, 49152, v{vO3}"]
    hchk = [f"v_cmp_ne_u32 vcc, {S(sHT)}, v{vHS+3}", f"s_lshl_b32 {t4}, {S(sWV)}, 11", f"s_add_u32 {t4}, {t4}, {XH}",
            f"s_or_b32 {t5}, {S(sHOK)}, vcc_hi", f"s_or_b32 {t5}, {t5}, vcc_lo\ns_cbranch_scc1 L_slow_h\nL_join_h:",
            f"v_max3_u32 v{vHS+3}, v{vHR}, v{vHR+1}, v{vHR+2}\nv_max3_u32 v{vHS+3}, v{vHS+3}, v{vHR+3}, v{vHR+4}\nv_max3_u32 v{vHS+3}, v{vHS+3}, v{vHR+5}, v{vHR+6}\nv_max_u32 v{vHS+3}, v{vHS+3}, v{vHR+7}\n"
            f"v_cmp_eq_u32 vcc, -1, v{vHS+3}\nv_add_u32 v{vHA}, {t4}, v{vL16}\ns_cbranch_vccnz L_slow_hr\nL_join_hr:",
            f"ds_write_b128 v{vHA}, {vr(vHR,4)}", f"ds_write_b128 v{vHA}, {vr(vHR+4,4)} offset:1024",
            f"ds_write2_b32 v{vTI}, v{vHS}, v{vHS+1} offset0:0 offset1:80", f"ds_write_b32 v{vTI}, v{vHS+2} offset:{4*160}"]
    cold.append(f"""L_slow_h:
          {hsld}
          s_sub_u32 {S(sSPIN)}, {S(sSPIN)}, 1
          s_cbranch_scc1 L_exit
          s_waitcnt vmcnt(0)
          v_cmp_ne_u32 vcc, {S(sHT)}, v{vHS+3}
          s_cbranch_vccnz L_slow_h
          {hrld[0]}
          {hrld[1]}
          s_waitcnt vmcnt(0)
          s_branch L_join_h
          L_slow_hr:
          {hrld[0]}
          {hrld[1]}
          s_sub_u32 {S(sSPIN)}, {S(sSPIN)}, 1
          s_cbranch_scc1 L_exit
          s_waitcnt vmcnt(0)
          v_max3_u32 v{vHS+3}, v{vHR}, v{vHR+1}, v{vHR+2}
          v_max3_u32 v{vHS+3}, v{vHS+3}, v{vHR+3}, v{vHR+4}
          v_max3_u32 v{vHS+3}, v{vHS+3}, v{vHR+5}, v{vHR+6}
          v_max_u32 v{vHS+3}, v{vHS+3}, v{vHR+7}
          v_cmp_eq_u32 vcc, -1, v{vHS+3}
          s_cbranch_vccnz L_slow_hr
          s_branch L_join_hr""")
    b2 = vHS
    Bq = [f"v_and_b32 v{b2+2}, 31, v{vL}", f"v_lshlrev_b32 v{b2+2}, 7, v{b2+2}", f"s_mov_b32 {t4}, {CAND}",
          f"buffer_load_dwordx2 {vr(b2,2)}, v{b2+2}, {S(SWS,4)}, {t4} offen sc1"]
    Br = [f"v_cmp_ne_u32 s[{sT+6}:{sT+7}], {t0}, v{b2+1}"] + [f"v_max_u32_dpp v{b2}, v{b2}, v{b2} row_ror:{sh} row_mask:0xf bank_mask:0xf" for sh in (8, 4, 2, 1)]
    Br += [f"v_readlane_b32 {t2}, v{b2}, 0", f"v_readlane_b32 {t3}, v{b2}, 16"]
    RA = lines_of(f"""v_lshrrev_b32 v{vRA}, 1, v{vGq}
          v_lshlrev_b32 v{vRA}, 8, v{vRA}
          v_lshl_add_u32 v{vRA}, v{vI}, 4, v{vRA}
          v_and_b32 v{vRA+1}, 1, v{vGq}
          v_lshl_add_u32 v{vRA}, v{vRA+1}, 3, v{vRA}
          v_add_u32 v{vRA}, {S(sRB)}, v{vRA}""") + [f"v_add_u32 v{vRA+c}, {512*c}, v{vRA}" for c in range(1, 4)]
    sSK = sRT
    sync = {16 - LA: f"s_bitcmp1_b32 {S(sSK)}, 0\ns_cbranch_scc1 L_join_w1\ns_waitcnt vmcnt(8) ;cond\nL_join_w1:\ns_barrier",
            32 - LA: f"s_bitcmp1_b32 {S(sSK)}, 1\ns_cbranch_scc1 L_join_w2\ns_waitcnt vmcnt(0) ;cond\nL_join_w2:\ns_barrier",
            64 - LA: "@HALOSYNC"}
    st = tile_stream(order, sync=sync)
    p1, p2, p3, p4 = [post2(t, False) for t in (1, 2, 3, 4)]
    A(f"""s_cmp_eq_u32 {S(sM)}, 1
          s_cselect_b32 {S(sSK)}, 1, 0
          s_cmp_lt_u32 {S(sF)}, 43
          s_cselect_b32 {S(sSK)}, 3, {S(sSK)}""")
    A(";@aw_on")
    A("s_cbranch_scc1 L_slow_ffn0\nL_join_t1:")
    k1 = st[1].index("s_barrier") - 4
    XD = xdma(3) + xdma(4)
    emit(weave(st[1][:k1], sum((lines_of(x) + hset[k:k+1] for k, x in enumerate(XD)), []), spread=True))
    emit(weave(st[1][k1:], hset[8:] + tbread(1, tB(1))))
    A(f"s_cmp_lt_u32 {S(sF)}, 43\ns_cbranch_scc1 L_slow_rchk\nL_join_t2:")
    st_ = lambda n: stamp(n) if O["stamps"] else None
    st_("ffn_ret1")
    emit(weave(st[2], [f"s_mov_b32 {t1}, 16384"] + p1[0] + p1[1] + tbread(2, tB(2)), start=3))
    sp = lambda L, k: sum(([x] + [";@slot"] * 0 for x in L), [])
    F = p2[0][:6] + [hsld] + p2[0][6:12] + hrld[:1] + p2[0][12:] + attS(x2) + hrld[1:] + p2[1] + tbread(3, tB(3)) + attM(x2) + attX1(x2) + attE(x2, False) + attP(x2)
    W_, rest = weave(st[3], F, start=3)
    for x in W_: A(x)
    assert len(rest) < 20
    st_("tiles_done")
    k4 = st[4].index("@HALOSYNC")
    F = rest + hchk; n0 = len(F)
    F += p3[0] + attS(x3) + p3[1]; n1 = len(F)
    F += tbread(4, tB(4)) + attF(x2, vO2, False) + attM(x3) + attX1(x3) + attE(x3, False) + attP(x3)
    W_, rest = weave(st[4][:k4], F)
    assert len(F) - len(rest) >= n0 + 12
    for x in W_: A(x)
    nl = sum(1 for y in W_[max(k for k, y in enumerate(W_) if y.startswith("ds_write")) + 1:] if y.startswith("ds_"))
    A(f"s_waitcnt lgkmcnt({nl})\ns_barrier")
    W_, rest2 = weave(st[4][k4 + 1:], Bq + rest)
    assert len(F) - len(rest2) >= n1
    for x in W_: A(x)
    st_("halo_in")
    F = tbread(0, tB(0)) + rest2 + p4[0] + attS(x4) + attF(x3, vO2 + 2, False) + p4[1][:4] + swaps(vO2)
    F += [dual([f"buffer_store_dwordx4 {vr(vO2,4)}, v{vOST}, {S(SL,4)}, {t1} offen @"])] + zipl(p4[1][4:], Br)
    W_, rest = weave(st[0], F, cap=O.get("cap0", 2))
    info_rest = len(rest)
    for x in W_ + rest: A(x)
    A("s_waitcnt lgkmcnt(0)\n;@aw_off")
    stamp("tile0_done")
    A(f"""s_max_u32 {S(sKEY)}, {t2}, {t3}
          s_cmp_eq_u64 s[{sT+6}:{sT+7}], 0
          s_cbranch_scc0 L_bslow
          L_bok:
          s_mov_b32 {S(sLAY)}, 1
          s_bfe_u32 {t0}, {S(sKEY)}, 0x50006
          s_and_b32 {t1}, {S(sKEY)}, 63
          s_and_b32 {t2}, {t0}, 3
          s_cmp_eq_u32 {t2}, 3
          s_cselect_b32 {t2}, 33, 3
          s_cmp_ge_u32 {t1}, 57
          s_cselect_b32 {t2}, {t2}, 1
          s_lshl_b32 {S(sAFF)}, {t2}, {t0}
          s_bitcmp1_b32 {S(sAFF)}, {S(sC)}
          s_cbranch_scc1 L_patch""")
    def bslow():
        nonlocal bk
        bk = vHS
        A.label("L_bslow"); bpoll("L_bpoll2", 0); A("s_branch L_bok")
        bk = tmp
    side(bslow)
    p0 = post2(0, True)
    def tail():
        L = attM(x4) + p0[0] + RA[:2] + attS(x1) + RA[2:] + p0[1] + attM(x1) + attX2(x4, x1) + zipl(attE(x4, True), attE(x1, True)) + attP(x4) + attP(x1)
        L2 = zipl(attF(x4, vO2, True), attF(x1, vO2 + 2, True)) + swaps(vO2)
        L2 += [dual([f"buffer_store_dwordx4 {vr(vO2,4)}, v{vO3}, {S(SL,4)}, 0 offen @"])]
        return L, L2
    for x in sum(tail(), []): A(x)
    A("s_branch L_oh")
    pa, px, pb, psel, psig, pvm, pst, prd = base, base + 2, base + 4, base + 8, base + 14, base + 16, base + 18, base + 19
    pya, pyb, ptm = base + 116, base + 117, base + 24
    yacc, racc = base + 20, base + 44
    def yloads(offs, regs):
        n = len(offs)
        return [f"s_mov_b32 {dm}, {o}\nbuffer_load_dwordx4 {regs[t]}, v{pyb if t == n-1 else pya}, {S(SWS,4)}, {dm} offen sc1" for t, o in enumerate(offs)]
    def ycheck(name, lds_, regs):
        n = len(lds_)
        A.label(name)
        for t in range(n):
            A(f"s_waitcnt vmcnt({n-1-t})")
            A(mf(yacc, vr(psel, 4), regs[t], "0" if t == 0 else vr(yacc, 4)))
        A(f"v_cmp_u_f32 vcc, v{yacc}, v{yacc}\ns_cbranch_vccnz {name}_r")
        cold.append(f"{name}_r:\n" + "\n".join(lds_) + f"\ns_sub_u32 {S(sSPIN)}, {S(sSPIN)}, 1\ns_cbranch_scc0 {name}\ns_branch L_exit")
    A(f"""L_patch:
          s_lshl_b32 {t4}, {S(sWV)}, 8
          s_add_u32 {t4}, {t4}, {SENT + S_Y}
          v_lshlrev_b32 v{pya}, 14, v{vGq}
          v_cmp_gt_u32 vcc, 3, v{vGq}
          v_lshl_add_u32 v{pya}, v{vI}, 4, v{pya}
          v_add_u32 v{pya}, {t4}, v{pya}
          v_mov_b32 v{pyb}, {OOB}
          v_cndmask_b32 v{pyb}, v{pyb}, v{pya}, vcc""")
    YR = [ar(192 + 4 * t, 4) for t in range(8)] + [vr(racc + 4 * t, 4) for t in range(3)]
    YL = yloads([(t & 7) * 65536 + (t >> 3) * 1024 for t in range(11)], YR)
    T1, T2 = tail()
    ny = O.get("ny", 6)
    L_, rest = interleave(T1, YL[:ny], len(T1) // max(1, ny)); assert not rest
    for x in L_: A(x)
    A(f"""s_and_b32 {S(sI)}, {S(sKEY)}, 15
          s_lshr_b32 {t2}, {t1}, 4
          s_add_u32 {S(sRT)}, {t2}, 1
          s_lshl_b32 {t2}, {t2}, 14
          s_lshl_b32 {t3}, {S(sI)}, 4
          s_add_u32 {t2}, {t2}, {t3}
          s_add_u32 {t3}, {t3}, {XH - 128}
          s_cmp_eq_u32 {t0}, {S(sC)}
          s_cselect_b32 {S(sRT)}, {S(sRT)}, 0
          s_cselect_b32 {S(sPB)}, {t2}, {t3}
          s_cselect_b32 {S(sPS)}, 8, 7""")
    for x in T2: A(x)
    gK0, gK1, gK2, gQ1, gQ2, gV, gC, gMP = base + 66, base + 68, base + 70, base + 72, base + 74, base + 32, base + 38, base + 40
    A(f"s_lshl_b32 {t4}, {S(sRT)}, 1\ns_set_gpr_idx_on {t4}, gpr_idx(SRC0)")
    for d, s_, n in ((gK0, pK(-1), 6), (gQ1, pQ(0), 4), (gV, pV(-1), 6)):
        for k in range(n): A(f"v_mov_b32 v{d+k}, v{s_+k}")
    A(f"""s_set_gpr_idx_off
          s_set_gpr_idx_on {S(sRT)}, gpr_idx(SRC0)
          v_mov_b32 v{gC}, v{cS(0)}
          v_mov_b32 v{gC+1}, v{cS(1)}
          s_set_gpr_idx_off
          s_cmp_eq_u32 {S(sRT)}, 1
          s_cselect_b64 vcc, -1, 0""")
    for r in range(4): A(f"v_cndmask_b32 v{gMP+r}, v{vMP+r}, v{vMP1+r}, vcc")
    n_patch = len(A.lines)
    def sigma(dst):
        A(f"""s_and_b32 {t4}, {S(sKEY)}, 0xFFFFF800
              s_ashr_i32 {t5}, {t4}, 31
              s_not_b32 {t5}, {t5}
              s_or_b32 {t5}, {t5}, 0x80000000
              s_xor_b32 {t4}, {t4}, {t5}
              v_mov_b32 v{dst}, 0xBFB8AA3B
              v_mul_f32 v{dst}, {t4}, v{dst}
              v_exp_f32 v{dst}, v{dst}
              s_nop 0
              v_add_f32 v{dst}, 1.0, v{dst}
              v_rcp_f32 v{dst}, v{dst}""")
    def selector(dst, scr):
        A(f"""v_mov_b32 v{dst}, 0x3F80
              v_mov_b32 v{dst+1}, 0
              v_and_b32 v{scr}, 48, v{vL16}
              s_mov_b32 vcc_lo, 0xF0F0F0F0
              s_mov_b32 vcc_hi, 0xF0F0F0F0
              v_lshlrev_b64 {vr(dst,2)}, v{scr}, {vr(dst,2)}
              v_cndmask_b32 v{dst+2}, 0, v{dst}, vcc
              v_cndmask_b32 v{dst+3}, 0, v{dst+1}, vcc
              v_cndmask_b32 v{dst}, v{dst}, 0, vcc
              v_cndmask_b32 v{dst+1}, v{dst+1}, 0, vcc""")
    A(f"""s_lshl_b32 {t4}, {S(sWV)}, 4
          s_lshl_b32 {t5}, {S(sR)}, 3
          s_sub_u32 {t4}, {t4}, {t5}
          v_add_u32 v{pa}, {t4}, v{vI}
          v_and_b32 v{pa}, 63, v{pa}
          v_lshlrev_b32 v{pa+1}, {S(sPS)}, v{pa}
          v_and_b32 v{px}, 1, v{vGq}
          v_lshlrev_b32 v{px}, 3, v{px}
          v_add3_u32 v{pa+1}, v{pa+1}, v{px}, {S(sPB)}
          v_lshl_add_u32 v{pa}, v{pa}, 4, v{px}
          v_add_u32 v{pa}, {T_ROW}, v{pa}
          s_lshl_b32 {t4}, {S(sRT)}, 4
          s_add_u32 {t4}, {t4}, {S(sI)}
          s_lshl_b32 {t4}, {t4}, 2
          s_add_u32 {t4}, {t4}, {T_NM}
          v_mov_b32 v{pb}, {t4}
          ds_read_b64 {vr(px,2)}, v{pa+1}
          ds_read2_b32 {vr(ptm,2)}, v{pb} offset0:0 offset1:160""")
    selector(psel, ptm + 2)
    sigma(psig)
    A(f"""v_mov_b32 v{pst}, {OOB}
          v_lshlrev_b32 v{prd}, 4, v{vGq}
          v_add_u32 v{prd}, {T_ROW}, v{prd}
          s_waitcnt lgkmcnt(0)
          v_mul_f32 v{ptm}, v{ptm}, v{ptm+1}
          v_add_f32 v{ptm+1}, 1.0, v{ptm+1}""")
    for h in range(2):
        A(f"v_lshlrev_b32 v{pb+2*h}, 16, v{px+h}\nv_and_b32 v{pb+2*h+1}, 0xFFFF0000, v{px+h}")
        A(f"v_pk_fma_f32 {vr(pb+2*h,2)}, {vr(pb+2*h,2)}, {vr(ptm,2)}, {vr(ptm,2)} op_sel:[0,1,0] op_sel_hi:[1,1,0]")
    A(f"""v_and_b32 v{ptm}, 1, v{vGq}
          s_sub_u32 {t4}, {S(sRT)}, 1
          v_add_u32 v{ptm}, {t4}, v{ptm}
          s_lshl_b32 {t4}, {t4}, 14
          v_cmp_gt_u32 vcc, 4, v{ptm}
          v_add_u32 v{ptm}, {t4}, v{vOST}
          s_add_u32 {t4}, {S(sWV)}, 1
          v_cndmask_b32 v{pst}, v{pst}, v{ptm}, vcc""")
    A(f"""s_cmp_eq_u32 {t4}, {S(sRT)}
          s_cselect_b32 {t4}, {S(sI)}, 99
          v_cmp_eq_u32 vcc, {t4}, v{vI}
          s_bfe_u32 {t5}, {S(sRB)}, 0x3000B
          s_lshl_b32 {t5}, {t5}, 7
          s_add_u32 {t5}, {t5}, {T_ROW}
          v_lshl_add_u32 v{ptm}, v{vGq}, 3, {t5}
          v_cndmask_b32 v{vAL}, v{vAL}, 1.0, vcc
          v_cndmask_b32 v{vAL+1}, v{vAL+1}, 0, vcc""")
    for c in range(4): A(f"v_cndmask_b32 v{vRA+c}, v{vRA+c}, v{ptm}, vcc\nv_add_u32 v{ptm}, 32, v{ptm}")
    A(f"""s_and_b32 {t4}, {S(sI)}, 1
          s_lshl_b32 {t4}, {t4}, 4
          s_lshl_b32 {t4}, 0xFFFF, {t4}
          s_lshr_b32 {t5}, {S(sI)}, 1
          v_lshlrev_b32 v{ptm}, 1, v{vGq}
          v_mov_b32 v{ptm+1}, {t4}
          v_cmp_eq_u32 vcc, {t5}, v{ptm}
          v_add_u32 v{ptm}, 1, v{ptm}
          v_cmp_eq_u32 s[{sT+6}:{sT+7}], {S(sI)}, v{vI}
          v_cndmask_b32 v{pvm}, 0, v{ptm+1}, vcc
          v_cmp_eq_u32 vcc, {t5}, v{ptm}
          v_cndmask_b32 v{pvm+1}, 0, v{ptm+1}, vcc""")
    L_, rest = interleave(A.lines[n_patch:], YL[ny:], 9)
    assert not rest
    A.lines[n_patch:] = L_
    stamp("patch_rdy")
    ycheck("L_ypoll", YL, YR)
    stamp("y_in")
    for r in range(4): A(f"v_fma_f32 v{pb+r}, v{yacc+r}, v{psig}, v{pb+r}")
    A(f"""v_cvt_pk_bf16_f32 v{px}, v{pb}, v{pb+1}
          v_cvt_pk_bf16_f32 v{px+1}, v{pb+2}, v{pb+3}
          v_add_u32 v{pa+1}, {T_ROW}, v{vL16}
          ds_write_b64 v{pa}, {vr(px,2)}
          s_waitcnt lgkmcnt(0)
          s_barrier""")
    rw = base + 76; s1, s2 = base + 4, base + 5
    F = [f"ds_read_b128 {vr(rw,4)}, v{pa+1}"]
    F += sum(([f"v_lshlrev_b32 v{rw+4+2*d}, 16, v{rw+d}", f"v_and_b32 v{rw+5+2*d}, 0xFFFF0000, v{rw+d}"] for d in range(4)), [])
    F += [f"v_add_f32 v{s1}, v{rw+4}, v{rw+5}", f"v_mul_f32 v{s2}, v{rw+4}, v{rw+4}", f"v_fmac_f32 v{s2}, v{rw+5}, v{rw+5}"]
    F += sum(([f"v_add_f32 v{s1}, v{s1}, v{rw+k}", f"v_fmac_f32 v{s2}, v{rw+k}, v{rw+k}"] for k in range(6, 12)), [])
    F += [f"v_add_f32_dpp v{x}, v{x}, v{x} row_ror:{sh} row_mask:0xf bank_mask:0xf" for sh in (8, 4, 2, 1) for x in (s1, s2)]
    F += [f"v_permlane32_swap_b32 v{s1}, v{s2}", f"v_add_f32 v{rw}, v{s1}, v{s2}", f"v_add_f32 v{rw+1}, v{s1}, v{s2}",
          f"v_permlane16_swap_b32 v{rw}, v{rw+1}", f"v_add_f32 v{s1}, v{rw}, v{rw+1}", f"v_add_f32 v{s2}, v{rw}, v{rw+1}",
          f"v_permlane32_swap_b32 v{s1}, v{s2}",
          f"v_mul_f32 v{s1}, 0xBB000000, v{s1}", f"v_mul_f32 v{s2}, 0x3B000000, v{s2}", f"v_fma_f32 v{s2}, -v{s1}, v{s1}, v{s2}",
          f"v_max_f32 v{s2}, 0, v{s2}", f"v_add_f32 v{s2}, {EPS}, v{s2}", f"v_rsq_f32 v{s2}, v{s2}",
          f"v_mul_f32 v{rw}, 0x3EB8AA3B, v{s2}", f"v_cndmask_b32 v{gC}, v{gC}, v{rw}, s[{sT+6}:{sT+7}]"]
    A(";@aw_on")
    rs_ = tile_stream([0], rdf=lambda r, ks: f"ds_read_b128 {ar(r,4)}, v{prd} offset:{64*ks}", acc=racc, hasq=True)[0]
    A(F[0])
    emit(weave(rs_, F[1:], start=1, spread=True))
    xa = dict(Q=gQ1, Kp=gK0, Kc=gK1, V=gV, c=gC, mp=gMP, T=TA, O=TA + 10, R=TA + 14)
    xb = dict(Q=gQ2, Kp=gK1, Kc=gK2, V=gV + 2, c=gC + 1, mp=vMP, T=TBt, O=TBt + 10, R=TBt + 14)
    p_ = vr(s1, 2); m_ = f"s[{sT+6}:{sT+7}]"
    L = [attS(xb)[1]]
    for h in range(2): L.append(f"v_pk_fma_f32 {vr(racc+4+2*h,2)}, {vr(vCSK+2*h,2)}, {p_}, {vr(racc+4+2*h,2)} op_sel_hi:[1,0,1]")
    for h in range(2): L.append(f"v_pk_fma_f32 {vr(racc+2*h,2)}, {vr(vCSQ+2*h,2)}, {p_}, {vr(racc+2*h,2)} op_sel_hi:[1,0,1]")
    for h in range(2): L.append(f"v_pk_mul_f32 {vr(racc+4+2*h,2)}, {vr(racc+4+2*h,2)}, {p_} op_sel:[0,1] op_sel_hi:[1,1]")
    for h in range(2): L += [f"v_cvt_pk_bf16_f32 v{racc+h}, v{racc+2*h}, v{racc+2*h+1}", f"v_cvt_pk_bf16_f32 v{racc+4+h}, v{racc+4+2*h}, v{racc+5+2*h}"]
    for h in range(2): L += [f"v_cndmask_b32 v{gQ1+h}, v{gQ1+h}, v{racc+h}, {m_}", f"v_cndmask_b32 v{gK1+h}, v{gK1+h}, v{racc+4+h}, {m_}"]
    L += [f"v_fmac_f32 v{racc+8}, v{s1}, v{vCSV}", f"v_mul_f32 v{racc+8}, v{racc+8}, v{s2}"]
    L += attS(xa) + [attS(xb)[0]]
    L += [f"v_cvt_pk_bf16_f32 v{racc+8}, v{racc+8}, v{racc+8}"] + [f"v_bfi_b32 v{gV+2+h}, v{pvm+h}, v{racc+8}, v{gV+2+h}" for h in range(2)]
    L += attM(xa) + attM(xb) + attX2(xa, xb) + zipl(attE(xa, True), attE(xb, True)) + attP(xa) + attP(xb)
    L += zipl(attF(xa, vO2, True), attF(xb, vO2 + 2, True)) + swaps(vO2)
    L += [dual([f"buffer_store_dwordx4 {vr(vO2,4)}, v{pst}, {S(SL,4)}, 0 offen @"])]
    for x in L: A(x)
    A(";@aw_off\ns_branch L_oh")

    A.label("L_final")
    vXN = base + 24
    for d in range(8): A(f"v_pk_fma_f32 {vr(vXN+8+2*d,2)}, {vr(vXF+2*d,2)}, {vr(rs,2)}, {vr(vAL,2)} op_sel:[0,0,1] op_sel_hi:[1,0,1]")
    A(f"v_cmp_eq_u32 vcc, v{tmp+24}, v{vk}\ns_lshl_b32 {t4}, {S(sM)}, 7\ns_add_u32 {t3}, {t3}, {t4}")
    for d in range(8): A(f"v_cvt_pk_bf16_f32 v{vXN+d}, v{vXN+8+2*d}, v{vXN+9+2*d}")
    A(f"""s_mov_b64 s[{sT+6}:{sT+7}], vcc
          s_and_b64 exec, exec, vcc
          s_cbranch_execz L_norow
          buffer_store_dwordx4 {vr(vXN,4)}, v{vPI}, {S(SWS,4)}, {t3} offen sc1
          buffer_store_dwordx4 {vr(vXN+4,4)}, v{vPI}, {S(SWS,4)}, {t3} offen offset:64 sc1
          L_norow:
          s_mov_b64 exec, -1""")
    for d in range(8): A(f"v_pk_add_f32 {vr(vXF+2*d,2)}, {vr(vXF+2*d,2)}, {vr(vXN+8+2*d,2)}")
    A(f"""v_lshlrev_b32 v{tmp+27}, 1, v{vPI}
          v_add_u32 v{tmp+27}, {T_ROW}, v{tmp+27}
          s_mov_b64 exec, vcc""")
    for k in range(4): A(f"ds_write_b128 v{tmp+27}, {vr(vXF+4*k,4)} offset:{(k>>1)*128 + (k&1)*16}")
    vPJ = base + 64
    A(f"""s_mov_b64 exec, -1
          v_mov_b32 v{vPJ}, v{vPI}
          s_add_u32 {S(sXB)}, {S(sXB)}, {t4}
          s_cmp_lt_u32 {S(sF)}, 43
          s_cbranch_scc1 L_ffn
          L_ffn_done:""")
    stamp("ffn_done")
    vPK = base + 48
    for d in range(8): A(f"v_cvt_pk_bf16_f32 v{vPK+d}, v{vXF+2*d}, v{vXF+2*d+1}")
    A(f"""v_and_b32 v{tmp+27}, 7, v{vI}
          v_lshlrev_b32 v{tmp+27}, 4, v{tmp+27}
          v_xor_b32 v{tmp+27}, v{tmp+27}, v{vPJ}
          v_lshl_add_u32 v{tmp+27}, v{vI}, 7, v{tmp+27}
          v_add_u32 v{tmp+27}, {S(sW14)}, v{tmp+27}
          v_xor_b32 v{tmp+29}, 64, v{tmp+27}
          v_add_u32 v{tmp+28}, {S(sW14)}, v{vL16}
          ds_write_b128 v{tmp+27}, {vr(vPK,4)}
          ds_write_b128 v{tmp+29}, {vr(vPK+4,4)}
          ds_read_b128 {vr(vPK+8,4)}, v{tmp+28}
          ds_read_b128 {vr(vPK+12,4)}, v{tmp+28} offset:1024
          s_lshl_b32 {t1}, {S(sWV)}, 15
          s_add_u32 {t0}, {S(sXB)}, {t1}
          s_add_u32 {t1}, {t0}, 16384
          v_lshrrev_b32 v{tmp+27}, 3, v{vL}
          v_and_b32 v{tmp+28}, 7, v{vL}
          v_xor_b32 v{tmp+28}, v{tmp+28}, v{tmp+27}
          v_lshlrev_b32 v{tmp+28}, 4, v{tmp+28}
          v_lshl_add_u32 v{tmp+27}, v{tmp+27}, 11, v{tmp+28}
          s_waitcnt lgkmcnt(0)
          buffer_store_dwordx4 {vr(vPK+8,4)}, v{tmp+27}, {S(SOUT,4)}, {t0} offen sc1
          buffer_store_dwordx4 {vr(vPK+12,4)}, v{tmp+27}, {S(SOUT,4)}, {t1} offen sc1""")
    A(f"""s_add_u32 {t0}, s2, {S(sWV)}
          s_cmp_eq_u32 {t0}, 0
          s_cbranch_scc0 L_noepoch
          v_mov_b32 v{tmp}, {S(sTAG)}
          s_mov_b64 exec, 1
          buffer_store_dword v{tmp}, v{vL}, {S(SWS,4)}, 0 offen sc1
          s_mov_b64 exec, -1
          L_noepoch:""")
    stamp("out_stored")
    A(f"""s_cmp_eq_u64 s[{sT+6}:{sT+7}], 0
          s_cbranch_scc1 L_exit""")
    bpoll("L_bpoll3", 6)
    stamp("b3_seen")
    A(f"""s_bfe_u32 {t0}, {S(sKEY)}, 0x70004
          s_lshl_b32 {t1}, {S(sC)}, 2
          s_add_u32 {t1}, {t1}, {S(sWV)}
          s_cmp_eq_u32 {t0}, {t1}
          s_cbranch_scc0 {'L_wb' if O['wb'] else 'L_exit'}""")
    if O["wb"]:
        cold.append(f"""L_wb:
          s_lshr_b32 {t0}, s2, 3
          s_and_b32 {t0}, {t0}, {O['wb']}
          s_cmp_eq_u32 {t0}, {O['wb']}
          s_cbranch_scc0 L_exit
          buffer_wbl2 sc1
          s_branch L_exit""")
    selector(psel, pya)
    sigma(psig)
    A(f"""v_lshrrev_b32 v{pa}, 3, v{vL}
          v_and_b32 v{pa+1}, 7, v{vL}
          v_lshlrev_b32 v{pya}, 4, v{pa+1}
          v_lshl_add_u32 v{pya}, v{pa}, 14, v{pya}
          s_lshl_b32 {t4}, {S(sM)}, 7
          s_add_u32 {t4}, {t4}, {SENT + S_Y + 2048}
          v_add_u32 v{pya}, {t4}, v{pya}
          v_mov_b32 v{pyb}, {OOB}
          v_cmp_gt_u32 vcc, 3, v{pa}
          v_cndmask_b32 v{pyb}, v{pyb}, v{pya}, vcc
          v_and_b32 v{pa}, 1, v{vGq}
          v_lshl_add_u32 v{pa}, v{pa+1}, 1, v{pa}
          v_lshlrev_b32 v{pa+1}, 4, v{pa}
          v_add_u32 v{pa+1}, {T_ROW}, v{pa+1}
          ds_read_b128 {vr(pb,4)}, v{pa+1}
          v_lshlrev_b32 v{pa}, 3, v{pa}
          s_and_b32 {t0}, {S(sKEY)}, 63
          s_lshl_b32 {t0}, {t0}, 11
          s_add_u32 {t0}, {t0}, {S(sXB)}""")
    ZL = yloads([(t & 3) * 131072 + (t >> 2) * 1024 for t in range(6)], YR)
    if O.get("zsleep"): A(f"s_sleep {O['zsleep']}")
    for x in ZL: A(x)
    ycheck("L_zpoll", ZL, YR)
    A("s_waitcnt lgkmcnt(0)")
    for r in range(4): A(f"v_add_f32_dpp v{yacc+r}, v{yacc+r}, v{yacc+r} row_ror:8 row_mask:0xf bank_mask:0xf")
    for r in range(4): A(f"v_fma_f32 v{pb+r}, v{yacc+r}, v{psig}, v{pb+r}")
    A(f"""v_cvt_pk_bf16_f32 v{px}, v{pb}, v{pb+1}
          v_cvt_pk_bf16_f32 v{px+1}, v{pb+2}, v{pb+3}
          s_mov_b64 exec, 0x00FF00FF
          buffer_store_dwordx2 {vr(px,2)}, v{pa}, {S(SOUT,4)}, {t0} offen sc1
          s_mov_b64 exec, -1""")
    if O.get("dbgtime"):
        A(f"""s_mov_b64 exec, 1
              s_load_dwordx2 s[4:5], s[0:1], 72
              s_memrealtime s[8:9]
              s_memtime s[12:13]
              s_mov_b32 s6, 256
              s_waitcnt lgkmcnt(0)
              s_sub_u32 s8, s8, s100
              s_sub_u32 s12, s12, s98
              v_mov_b32 v2, s8
              v_mov_b32 v3, s12
              s_lshl_b32 s8, {S(sM)}, 3
              v_mov_b32 v4, s8
              buffer_store_dwordx2 v[2:3], v4, s[4:7], 0 offen""")
    if O.get("amp"):
        stamp("end")
        A(f"""s_memrealtime s[8:9]
              s_sub_u32 s98, s98, s100
              s_mul_i32 s98, s98, {O.get('ampk', 1)}
              s_min_u32 s98, s98, 20000
              s_waitcnt lgkmcnt(0)
              L_ampw:
              s_memrealtime s[12:13]
              s_waitcnt lgkmcnt(0)
              s_sub_u32 s12, s12, s8
              s_cmp_lt_u32 s12, s98
              s_cbranch_scc1 L_ampw""")
    A.label("L_exit")
    if O["stamps"]:
        stamp("exit")
        A(f"""s_mov_b64 exec, -1
              s_lshl_b32 {t0}, s2, 2
              s_add_u32 {t0}, {t0}, {S(sWV)}
              s_lshl_b32 {t0}, {t0}, 8
              s_add_u32 {t0}, {t0}, {DBG + 0x800000}
              v_lshlrev_b32 v254, 2, v{vL}
              buffer_store_dword v255, v254, {S(SWS,4)}, {t0} offen""")
    A.label("L_end")
    A("s_endpgm")
    for x in cold: A(x)
    A("L_last:\ns_endpgm")

    lines = autowait(A.lines)
    if O["tour"] >= 0: lines += [f"L_chain{w}:" for w in range(4)]
    lines, nn = fix_hazards(lines, verbose=O.get("verbose", False))
    if O["tour"] >= 0:
        lines, npad = add_pads(lines[:-4], 0x300, O["pads"], 4)

    kn = O["kname"]
    hdr = open("interleave_layers__sliding_local_dilated__moe_arch_mod__prompt.s.ref").read().split("; Override launch")[0]
    out = hdr + f"; @launch grid=(256,1,1) block=(256,1,1) lds={LDS_BYTES}\n"
    out += f'.amdgcn_target "amdgcn-amd-amdhsa--gfx950"\n.text\n.p2align 12\n.globl {kn}\n.p2align 8\n.type {kn},@function\n{kn}:\n'
    out += "".join((l + "\n") if l.endswith(":") else ("    " + l + "\n") for l in lines)
    out += f""".section .rodata,"a"
.p2align 6
.amdhsa_kernel {kn}
  .amdhsa_next_free_vgpr 512
  .amdhsa_next_free_sgpr 102
  .amdhsa_accum_offset 256
  .amdhsa_group_segment_fixed_size 0
  .amdhsa_kernarg_size 88
  .amdhsa_user_sgpr_count 2
  .amdhsa_user_sgpr_kernarg_segment_ptr 1
  .amdhsa_system_sgpr_workgroup_id_x 1
  .amdhsa_float_denorm_mode_32 3
.end_amdhsa_kernel
"""
    return out, dict(names=names, rest4=info_rest, nops=nn, base=base, tmp=tmp, nstamps=nst[0], ninstr=len(lines))


if __name__ == "__main__":
    import json
    opt = json.loads(sys.argv[2]) if len(sys.argv) > 2 else {}
    s, info = gen(opt)
    open(sys.argv[1], "w").write(s)
    json.dump(info.pop("names"), open(sys.argv[1][:-2] + ".names.json", "w"))
    print(info)
```
